```python
import torch

def _softmax(x, axis=-1):
    return torch.softmax(x, dim=axis)
def _gelu(x):
    return torch.nn.functional.gelu(x, approximate="tanh")
def _silu(x):
    return torch.nn.functional.silu(x)
def _sigmoid(x):
    return torch.sigmoid(x)
def _layernorm(x, axis=-1, eps=1e-5):
    m = x.mean(dim=axis, keepdim=True)
    v = x.var(dim=axis, keepdim=True, unbiased=False)
    return (x - m) / torch.sqrt(v + eps)
def _scatter_add(tgt, idx, src, axis=0):
    return tgt.clone().index_add_(axis, idx, src)
def _segment_sum(src, seg, n):
    out = torch.zeros((n,) + src.shape[1:], dtype=src.dtype)
    return out.index_add_(0, seg, src)
def _pad(x, pw):
    flat = tuple(v for pair in reversed(pw) for v in pair)
    return torch.nn.functional.pad(x, flat)

kernel_name = 'recurrent_scan__mha_block_cached__swiglu_ffn__prompt'

def setup_inputs():

    _w = (lambda a: (lambda t: t.to(torch.bfloat16) if t.is_floating_point() else t)(torch.as_tensor(a)))
    def _A_setup():
        B, Sq, D = 1, 2048, 640
        H, Sk, Dh = 32, 2048, 192
        return {
            "x": _w((lambda *s: torch.randn(*s, dtype=torch.bfloat16) * 0.05)(B, Sq, D)),
            "k_cache": _w((lambda *s: torch.randn(*s, dtype=torch.bfloat16) * 0.8)(B, H, Sk, Dh)),
            "v_cache": _w((lambda *s: torch.randn(*s, dtype=torch.bfloat16) * 0.2)(B, H, Sk, Dh)),
            "wq": _w((lambda *s: torch.randn(*s, dtype=torch.bfloat16) * 0.8)(D, H * Dh) * (D ** -0.5)),
            "wo": _w((lambda *s: torch.randn(*s, dtype=torch.bfloat16) * 0.2)(H * Dh, D) * ((H * Dh) ** -0.5)),
        }
    _A_in = _A_setup()

    def _B_setup():
        B, S, D, F = 1, 2048, 640, 1536
        return {
            "x": _w((lambda *s: torch.randn(*s, dtype=torch.bfloat16) * 0.05)(B, S, D)),
            "w_gate": _w((lambda *s: torch.randn(*s, dtype=torch.bfloat16) * 0.1)(D, F)),
            "w_up": _w((lambda *s: torch.randn(*s, dtype=torch.bfloat16) * 0.1)(D, F)),
            "w_down": _w((lambda *s: torch.randn(*s, dtype=torch.bfloat16) * 0.1)(F, D)),
        }
    _B_in = _B_setup()

    return {
        "A_x": _A_in["x"],
        "A_k_cache": _A_in["k_cache"],
        "A_v_cache": _A_in["v_cache"],
        "A_wq": _A_in["wq"],
        "A_wo": _A_in["wo"],
        "B_x": _B_in["x"],
        "B_w_gate": _B_in["w_gate"],
        "B_w_up": _B_in["w_up"],
        "B_w_down": _B_in["w_down"],
    }

def reference(A_x, A_k_cache, A_v_cache, A_wq, A_wo, B_x, B_w_gate, B_w_up, B_w_down):
    def _A_ref(x, k_cache, v_cache, wq, wo):
        B, Sq, D = x.shape
        H, Dh = 32, 192
        q = (lambda x, *d: x.permute(*d))((x @ wq).reshape(B, Sq, H, Dh), 0, 2, 1, 3)
        scores = torch.einsum("bhqd,bhkd->bhqk", q, k_cache) * (Dh ** -0.5)
        p = _softmax(scores, axis=-1)
        o = torch.einsum("bhqk,bhkd->bhqd", p, v_cache)
        return (lambda x, *d: x.permute(*d))(o, 0, 2, 1, 3).reshape(B, Sq, H * Dh) @ wo

    def _B_ref(x, w_gate, w_up, w_down):
        g = _silu(x @ w_gate)
        u = x @ w_up
        return (g * u) @ w_down

    x = A_x
    xn = _layernorm(x, axis=-1)
    s = _A_ref(xn, A_k_cache, A_v_cache, A_wq, A_wo)
    g = _silu(_B_ref(xn, B_w_gate, B_w_up, B_w_down))
    return x + s * g
```

```python
import sys, math, struct

NAME = "recurrent_scan__mha_block_cached__swiglu_ffn__prompt"
XN_OFF = 0
WP_OFF = 0x400000
OF_OFF = 0x1000000
RT_STRIDE = 240 * 1024
LOG2E = 1.4426950408889634


def f2u(x):
    return struct.unpack("<I", struct.pack("<f", x))[0]


class Asm:
    def __init__(self):
        self.L = []

    def __call__(self, s):
        self.L.append("    " + s)

    def label(self, s):
        self.L.append(s + ":")

    def raw(self, s):
        self.L.append(s)

    def text(self):
        return "\n".join(self.L) + "\n"


def vr(b, n=1):
    return f"v{b}" if n == 1 else f"v[{b}:{b+n-1}]"


def ar(b, n=1):
    return f"a{b}" if n == 1 else f"a[{b}:{b+n-1}]"


def sr(b, n=1):
    return f"s{b}" if n == 1 else f"s[{b}:{b+n-1}]"


def kernel_begin(A, name):
    A.raw(".text")
    A.raw(f".globl {name}")
    A.raw(".p2align 8")
    A.raw(f".type {name},@function")
    A.label(name)


def kernel_desc(A, name, nv, ns, ao):
    A.raw('.section .rodata,"a"')
    A.raw(".p2align 6")
    A.raw(f".amdhsa_kernel {name}")
    A.raw(f"  .amdhsa_next_free_vgpr {nv}")
    A.raw(f"  .amdhsa_next_free_sgpr {ns}")
    A.raw(f"  .amdhsa_accum_offset {ao}")
    A.raw("  .amdhsa_group_segment_fixed_size 0")
    A.raw("  .amdhsa_kernarg_size 96")
    A.raw("  .amdhsa_user_sgpr_count 2")
    A.raw("  .amdhsa_user_sgpr_kernarg_segment_ptr 1")
    A.raw("  .amdhsa_system_sgpr_workgroup_id_x 1")
    A.raw(".end_amdhsa_kernel")


def srd(A, d, ptr, off_sgpr=None, off_imm=0, size=None, size_sgpr=None):
    if off_sgpr is not None:
        A(f"s_add_u32 s{d}, s{ptr}, s{off_sgpr}")
        A(f"s_addc_u32 s{d+1}, s{ptr+1}, 0")
        if off_imm:
            A(f"s_add_u32 s{d}, s{d}, {off_imm}")
            A(f"s_addc_u32 s{d+1}, s{d+1}, 0")
    elif off_imm:
        A(f"s_add_u32 s{d}, s{ptr}, {off_imm}")
        A(f"s_addc_u32 s{d+1}, s{ptr+1}, 0")
    else:
        A(f"s_mov_b32 s{d}, s{ptr}")
        A(f"s_mov_b32 s{d+1}, s{ptr+1}")
    if size_sgpr is not None:
        A(f"s_mov_b32 s{d+2}, s{size_sgpr}")
    else:
        A(f"s_mov_b32 s{d+2}, {size}")
    A(f"s_mov_b32 s{d+3}, 0x00020000")


def mfma(d, a, b, c):
    return f"v_mfma_f32_16x16x32_bf16 {d}, {a}, {b}, {c}"


def gen_k0(A):
    name = "k0_kernel"
    kernel_begin(A, name)
    A("s_cmp_ge_u32 s2, 368")
    A("s_cbranch_scc1 K0_END")
    A("s_load_dwordx2 s[4:5], s[0:1], 0")
    A("s_load_dwordx2 s[6:7], s[0:1], 32")
    A("s_load_dwordx2 s[8:9], s[0:1], 64")
    A("s_load_dwordx2 s[10:11], s[0:1], 88")
    A("s_waitcnt lgkmcnt(0)")
    A("s_cmp_ge_u32 s2, 128")
    A("s_cbranch_scc1 K0_PACK")
    srd(A, 12, 4, size=2621440)
    srd(A, 16, 10, off_imm=XN_OFF, size=2621440)
    A("v_lshrrev_b32 v1, 4, v0")
    A("s_lshl_b32 s3, s2, 4")
    A("v_add_u32 v1, s3, v1")
    A("v_mul_u32_u24 v1, 1280, v1")
    A("v_and_b32 v2, 15, v0")
    A("v_lshl_add_u32 v1, v2, 4, v1")
    for n in range(5):
        A(f"buffer_load_dwordx4 v[{8+4*n}:{11+4*n}], v1, s[12:15], 0 offen offset:{256*n}")
    A("s_waitcnt vmcnt(0)")
    X = 32
    for i in range(20):
        A(f"v_lshlrev_b32 v{X+2*i}, 16, v{8+i}")
        A(f"v_and_b32 v{X+2*i+1}, 0xffff0000, v{8+i}")
    A(f"v_add_f32 v4, v{X}, v{X+1}")
    A(f"v_add_f32 v5, v{X+2}, v{X+3}")
    for i in range(4, 40, 2):
        A(f"v_add_f32 v4, v4, v{X+i}")
        A(f"v_add_f32 v5, v5, v{X+i+1}")
    A("v_add_f32 v4, v4, v5")

    def rowsum(r):
        for sh in (8, 4, 2, 1):
            A("s_nop 1")
            A(f"v_add_f32_dpp v{r}, v{r}, v{r} row_ror:{sh} row_mask:0xf bank_mask:0xf")
    rowsum(4)
    A(f"v_mul_f32 v4, {hex(f2u(1.0/640))}, v4")
    A("v_mov_b32 v5, 0")
    A("v_mov_b32 v6, 0")
    for i in range(0, 40, 2):
        A(f"v_sub_f32 v2, v{X+i}, v4")
        A(f"v_sub_f32 v3, v{X+i+1}, v4")
        A("v_fmac_f32 v5, v2, v2")
        A("v_fmac_f32 v6, v3, v3")
    A("v_add_f32 v5, v5, v6")
    rowsum(5)
    A(f"v_mul_f32 v5, {hex(f2u(1.0/640))}, v5")
    A("v_cvt_pk_bf16_f32 v6, v4, v5")
    A("v_lshlrev_b32 v4, 16, v6")
    A("v_and_b32 v5, 0xffff0000, v6")
    A(f"v_add_f32 v5, {hex(f2u(1e-5))}, v5")
    A("v_cvt_pk_bf16_f32 v5, v5, v5")
    A("v_lshlrev_b32 v5, 16, v5")
    A("v_sqrt_f32 v5, v5")
    A("s_nop 0")
    A("v_cvt_pk_bf16_f32 v5, v5, v5")
    A("v_lshlrev_b32 v5, 16, v5")
    A("v_rcp_f32 v5, v5")
    A("s_nop 0")
    for i in range(20):
        A(f"v_sub_f32 v2, v{X+2*i}, v4")
        A(f"v_sub_f32 v3, v{X+2*i+1}, v4")
        A("v_cvt_pk_bf16_f32 v6, v2, v3")
        A("v_lshlrev_b32 v2, 16, v6")
        A("v_and_b32 v3, 0xffff0000, v6")
        A("v_mul_f32 v2, v2, v5")
        A("v_mul_f32 v3, v3, v5")
        A(f"v_cvt_pk_bf16_f32 v{8+i}, v2, v3")
    for n in range(5):
        A(f"buffer_store_dwordx4 v[{8+4*n}:{11+4*n}], v1, s[16:19], 0 offen offset:{256*n}")
    A("s_endpgm")
    A.label("K0_PACK")
    A("s_sub_u32 s3, s2, 128")
    A("s_cmp_ge_u32 s3, 192")
    A("s_cselect_b32 s20, s8, s6")
    A("s_cselect_b32 s21, s9, s7")
    A("s_cselect_b32 s22, 192, 0")
    A("s_sub_u32 s22, s3, s22")
    A("s_mul_i32 s22, s22, 40960")
    srd(A, 12, 20, off_sgpr=22, size=40960)
    A("s_mul_i32 s22, s3, 40960")
    srd(A, 16, 10, off_sgpr=22, off_imm=WP_OFF, size=40960)
    A("v_lshrrev_b32 v1, 6, v0")
    A("v_and_b32 v2, 63, v0")
    A("v_mul_u32_u24 v3, 10240, v1")
    A("v_lshl_add_u32 v3, v2, 4, v3")
    A("v_mul_u32_u24 v4, 10496, v1")
    A("v_lshl_add_u32 v4, v2, 4, v4")
    for r in range(8):
        A(f"v_add_u32 v5, {r*1280}, v3")
        A(f"buffer_load_dwordx4 v[{8+4*r}:{11+4*r}], v5, s[12:15], 0 offen")
    A("v_lshrrev_b32 v5, 4, v2")
    A("v_and_b32 v6, 15, v2")
    A("v_mul_u32_u24 v7, 1280, v5")
    A("v_lshl_add_u32 v7, v6, 4, v7")
    A("v_mul_u32_u24 v48, 10240, v1")
    A("v_add_u32 v7, v7, v48")
    A("v_add_u32 v7, 1024, v7")
    A("buffer_load_dwordx4 v[40:43], v7, s[12:15], 0 offen")
    A(f"v_add_u32 v7, {4*1280}, v7")
    A("buffer_load_dwordx4 v[44:47], v7, s[12:15], 0 offen")
    A("v_mul_u32_u24 v7, 1312, v5")
    A("v_lshl_add_u32 v7, v6, 4, v7")
    A("v_mul_u32_u24 v48, 10496, v1")
    A("v_add_u32 v7, v7, v48")
    A("s_waitcnt vmcnt(0)")
    for r in range(8):
        A(f"ds_write_b128 v4, v[{8+4*r}:{11+4*r}] offset:{r*1312}")
    A("ds_write_b128 v7, v[40:43] offset:1024")
    A(f"ds_write_b128 v7, v[44:47] offset:{1024+4*1312}")
    A("v_lshrrev_b32 v5, 2, v2")
    A("v_mul_u32_u24 v5, 1312, v5")
    A("v_and_b32 v6, 3, v2")
    A("v_lshl_add_u32 v5, v6, 3, v5")
    A("v_mul_u32_u24 v6, 320, v1")
    A("v_add_u32 v5, v5, v6")
    A("s_waitcnt lgkmcnt(0)")
    A("s_barrier")
    for ct in range(10):
        A(f"ds_read_b64_tr_b16 v[{8+4*ct}:{9+4*ct}], v5 offset:{32*ct}")
        A(f"ds_read_b64_tr_b16 v[{10+4*ct}:{11+4*ct}], v5 offset:{32*ct+16*1312}")
        if ct == 4:
            A("s_waitcnt lgkmcnt(0)")
    A("s_waitcnt lgkmcnt(0)")
    for ct in range(10):
        A(f"v_add_u32 v6, {ct*1024}, v3")
        A(f"buffer_store_dwordx4 v[{8+4*ct}:{11+4*ct}], v6, s[16:19], 0 offen")
    A.label("K0_END")
    A("s_endpgm")
    kernel_desc(A, name, 80, 32, 80)


def gen_k2(A, cfg):
    name = "k2_kernel"
    D = 6
    kernel_begin(A, name)
    A("s_cmp_ge_u32 s2, 256")
    A("s_cbranch_scc1 K2_END")
    A("s_load_dwordx2 s[4:5], s[0:1], 0")
    A("s_load_dwordx2 s[6:7], s[0:1], 72")
    A("s_load_dwordx2 s[8:9], s[0:1], 88")
    A("v_lshrrev_b32 v1, 6, v0")
    A("v_and_b32 v2, 63, v0")
    A("v_readfirstlane_b32 s28, v1")
    A("s_and_b32 s29, s2, 7")
    A("s_lshr_b32 s30, s2, 3")
    if cfg.get("k2map", 0) == 0:
        A("s_lshr_b32 s31, s29, 1")
        A("s_lshl_b32 s31, s31, 3")
        A("s_lshr_b32 s32, s30, 2")
        A("s_add_u32 s31, s31, s32")
        A("s_and_b32 s32, s29, 1")
        A("s_lshl_b32 s32, s32, 2")
        A("s_and_b32 s33, s30, 3")
        A("s_add_u32 s32, s32, s33")
    else:
        A("s_lshl_b32 s31, s29, 2")
        A("s_lshr_b32 s32, s30, 3")
        A("s_add_u32 s31, s31, s32")
        A("s_and_b32 s32, s30, 7")
    A("s_waitcnt lgkmcnt(0)")
    A(f"s_mul_i32 s33, s31, {4*RT_STRIDE}")
    srd(A, 12, 8, off_sgpr=33, off_imm=OF_OFF, size=4*RT_STRIDE)
    A("s_mul_i32 s33, s32, 5120")
    A(f"s_sub_u32 s34, {240*40960}, s33")
    srd(A, 16, 8, off_sgpr=33, off_imm=WP_OFF, size_sgpr=34)
    srd(A, 20, 4, size=2621440)
    srd(A, 24, 6, size=2621440)
    A("v_lshlrev_b32 v8, 4, v2")
    A("v_add_u32 v9, 4096, v8")
    for t in range(4):
        A(f"s_add_u32 s33, s28, {t}")
        A("s_and_b32 s33, s33, 3")
        A(f"s_mul_i32 s33, s33, {RT_STRIDE}")
        A(f"v_add_u32 v{4+t}, s33, v8")
    A("s_lshl_b32 s33, s31, 6")
    A("s_lshl_b32 s34, s28, 4")
    A("s_add_u32 s33, s33, s34")
    A("v_and_b32 v3, 15, v2")
    A("v_add_u32 v3, s33, v3")
    A("v_mul_u32_u24 v3, 1280, v3")
    A("v_lshrrev_b32 v10, 4, v2")
    A("v_lshl_add_u32 v3, v10, 3, v3")
    A("s_mul_i32 s33, s32, 160")
    A("v_add_u32 v3, s33, v3")
    XR = 232
    for c in range(5):
        A(f"buffer_load_dwordx2 v[{XR+2*c}:{XR+2*c+1}], v3, s[20:23], 0 offen offset:{32*c}")
    A("s_mul_i32 s36, s28, 12")
    A("s_add_u32 s36, s36, 192")
    A("s_mul_i32 s37, s36, 40960")
    A("s_lshl_b32 s36, s36, 10")
    A("s_mul_i32 s38, s28, 48")
    A("s_mul_i32 s39, s38, 40960")
    A("s_lshl_b32 s38, s38, 10")
    NS = 60
    BUF = 16

    def loads(n):
        out = []
        b = BUF + 36 * (n % D)
        pre = []
        if n == 12:
            pre = ["s_mov_b32 s36, s38", "s_mov_b32 s37, s39"]
        elif n > 0:
            pre = ["s_add_u32 s36, s36, 1024", "s_add_u32 s37, s37, 40960"]
        for t in range(4):
            out.append(f"buffer_load_dwordx4 v[{b+4*t}:{b+4*t+3}], v{4+t}, s[12:15], s36 offen")
        for c in range(5):
            vo, im = (8, 1024*c) if c < 4 else (9, 0)
            out.append(f"buffer_load_dwordx4 v[{b+16+4*c}:{b+16+4*c+3}], v{vo}, s[16:19], s37 offen offset:{im}")
        return pre, out
    for n in range(D - 1):
        pre, ld = loads(n)
        for s in pre + ld:
            A(s)
    for n in range(NS):
        rem = min(NS - 1, n + D - 2) - n
        A(f"s_waitcnt vmcnt({9*rem})")
        if n + D - 1 < NS:
            pre, ld = loads(n + D - 1)
        else:
            pre, ld = [], []
        for s in pre:
            A(s)
        b = BUF + 36 * (n % D)
        base = 80 if n < 12 else 0
        first = n == 0 or n == 12
        k = 0
        for c in range(5):
            for t in range(4):
                acc = ar(base + 16*c + 4*t, 4)
                A(mfma(acc, vr(b+16+4*c, 4), vr(b+4*t, 4), "0" if first else acc))
                if k % 2 == 1 and ld:
                    A(ld.pop(0))
                k += 1
        assert not ld
    for t in range(1, 4):
        A(f"s_add_u32 s33, s28, {t}")
        A("s_and_b32 s33, s33, 3")
        A("s_mul_i32 s33, s33, 30720")
        A(f"s_add_u32 s33, s33, {(t-1)*10240}")
        A(f"v_add_u32 v{11+t}, s33, v8")
    A("s_mul_i32 s33, s28, 30720")
    A("v_add_u32 v11, s33, v8")
    A("s_nop 7")
    for t in range(1, 4):
        for st in range(2):
            for c in range(5):
                A(f"ds_write_b128 v{11+t}, {ar(80*st+16*c+4*t, 4)} offset:{(st*5+c)*1024}")
    R = 16
    for st in range(2):
        for c in range(5):
            for r in range(4):
                A(f"v_accvgpr_read_b32 v{R+st*20+c*4+r}, a{80*st+16*c+r}")
    A("s_waitcnt lgkmcnt(0)")
    A("s_barrier")
    T = 64
    for si in range(3):
        for q in range(10):
            A(f"ds_read_b128 v[{T+40*si+4*q}:{T+40*si+4*q+3}], v11 offset:{(si*10+q)*1024}")
        if si > 0:
            A("s_waitcnt lgkmcnt(10)")
            for q in range(40):
                A(f"v_add_f32 v{R+q}, v{R+q}, v{T+40*(si-1)+q}")
    A("s_waitcnt lgkmcnt(0)")
    for q in range(40):
        A(f"v_add_f32 v{R+q}, v{R+q}, v{T+80+q}")
    A(f"s_mov_b32 s33, {hex(f2u(-LOG2E))}")
    for p in range(10):
        s0, s1, f0, f1 = R+2*p, R+2*p+1, R+20+2*p, R+21+2*p
        t0, t1 = T, T+1
        A(f"v_cvt_pk_bf16_f32 v{t0}, v{s0}, v{s1}")
        A(f"v_cvt_pk_bf16_f32 v{t1}, v{f0}, v{f1}")
        A(f"v_lshlrev_b32 v{s0}, 16, v{t0}")
        A(f"v_and_b32 v{s1}, 0xffff0000, v{t0}")
        A(f"v_lshlrev_b32 v{f0}, 16, v{t1}")
        A(f"v_and_b32 v{f1}, 0xffff0000, v{t1}")
        A(f"v_mul_f32 v{t0}, s33, v{f0}")
        A(f"v_mul_f32 v{t1}, s33, v{f1}")
        A(f"v_exp_f32 v{t0}, v{t0}")
        A(f"v_exp_f32 v{t1}, v{t1}")
        A("s_nop 0")
        A(f"v_add_f32 v{t0}, 1.0, v{t0}")
        A(f"v_add_f32 v{t1}, 1.0, v{t1}")
        A(f"v_rcp_f32 v{t0}, v{t0}")
        A(f"v_rcp_f32 v{t1}, v{t1}")
        A("s_nop 0")
        A(f"v_mul_f32 v{f0}, v{f0}, v{t0}")
        A(f"v_mul_f32 v{f1}, v{f1}, v{t1}")
        A(f"v_cvt_pk_bf16_f32 v{t0}, v{f0}, v{f1}")
        A(f"v_lshlrev_b32 v{f0}, 16, v{t0}")
        A(f"v_and_b32 v{f1}, 0xffff0000, v{t0}")
        A(f"v_mul_f32 v{s0}, v{s0}, v{f0}")
        A(f"v_mul_f32 v{s1}, v{s1}, v{f1}")
        A(f"v_cvt_pk_bf16_f32 v{t0}, v{s0}, v{s1}")
        A(f"v_lshlrev_b32 v{s0}, 16, v{t0}")
        A(f"v_and_b32 v{s1}, 0xffff0000, v{t0}")
        A(f"v_lshlrev_b32 v{f0}, 16, v{XR+p}")
        A(f"v_and_b32 v{f1}, 0xffff0000, v{XR+p}")
        A(f"v_add_f32 v{s0}, v{s0}, v{f0}")
        A(f"v_add_f32 v{s1}, v{s1}, v{f1}")
        A(f"v_cvt_pk_bf16_f32 v{XR+p}, v{s0}, v{s1}")
    for c in range(5):
        A(f"buffer_store_dwordx2 v[{XR+2*c}:{XR+2*c+1}], v3, s[24:27], 0 offen offset:{32*c}")
    A.label("K2_END")
    A("s_endpgm")
    kernel_desc(A, name, 256 + 160, 48, 256)


QF = 160
SB = 96
NM = 80
VF = 48
LS = 40
VK, VV, DK, DV = 2, 4, 8, 11
KF = 192
KREG, VREG = 0, 49152


def qf(qt, u):
    return vr(QF + (qt*6+u)*4, 4)


def sreg(buf, qt, kt):
    return SB + buf*32 + qt*8 + kt*4


def oacc(dt, qt):
    return (dt*4 + qt) * 4


def k_read(slot, kt, u):
    return f"ds_read_b128 {ar(KF+kt*24+u*4, 4)}, v{VK+(u&1)} offset:{slot*12288+kt*6144+128*(u>>1)}"


def v_read(slot, dt, rd):
    b = VF + (dt % 8)*4 + 2*rd
    return f"ds_read_b64_tr_b16 {vr(b, 2)}, v{VV+(dt&3)} offset:{slot*12288+rd*6144+128*(dt>>2)}"


def softmax_ops(buf, qts):
    E, S = [], []
    for qt in qts:
        b = sreg(buf, qt, 0)
        for p in range(4):
            e0 = len(E)
            E.append(f"v_exp_f32 v{b+2*p}, v{b+2*p}")
            E.append(f"v_exp_f32 v{b+2*p+1}, v{b+2*p+1}")
            S.append((e0, f"v_add_f32 v{LS+2*qt}, v{LS+2*qt}, v{b+2*p}"))
            S.append((e0+1, f"v_add_f32 v{LS+2*qt+1}, v{LS+2*qt+1}, v{b+2*p+1}"))
            S.append((e0+1, f"v_cvt_pk_bf16_f32 v{b+p}, v{b+2*p}, v{b+2*p+1}"))
    return E, S


def fill_valu(gaps, lo, hi, E, S):
    ei, si = 0, 0
    epos = {}
    n_empty = sum(1 for g in range(lo, hi) if not gaps[g][0] and not gaps[g][2])
    assert n_empty >= len(E), (n_empty, len(E))
    for g in range(lo, hi):
        used = len(gaps[g][0]) + len(gaps[g][2])
        avail = [k for k in range(si, len(S)) if S[k][0] in epos and epos[S[k][0]] < g]
        navail = 0
        for k in range(si, len(S)):
            if S[k][0] in epos and epos[S[k][0]] < g:
                navail += 1
            else:
                break
        if used == 0:
            empty_left = sum(1 for q in range(g, hi) if not gaps[q][0] and not gaps[q][2])
            must_exp = empty_left <= len(E) - ei
            if ei < len(E) and (must_exp or navail < 4):
                gaps[g][1].append(E[ei])
                epos[ei] = g
                ei += 1
                continue
        free = 2 - used
        while free > 0 and navail > 0:
            gaps[g][1].append(S[si][1])
            si += 1
            navail -= 1
            free -= 1
    assert ei == len(E) and si == len(S), (ei, len(E), si, len(S))


def gen_stage(A, sg, extra=None):
    nb, cb = (sg + 1) & 1, sg & 1
    M = []
    for kt in range(2):
        for qt in range(4):
            d = vr(sreg(nb, qt, kt), 4)
            for u in range(6):
                M.append(mfma(d, ar(KF+kt*24+u*4, 4), qf(qt, u), vr(NM+qt*4, 4) if u == 0 else d))
    for dt in range(12):
        for qt in range(4):
            o = ar(oacc(dt, qt), 4)
            M.append(mfma(o, vr(VF+(dt % 8)*4, 4), vr(sreg(cb, qt, 0), 4), o))
    gaps = [[[], [], []] for _ in range(96)]
    for u in range(6):
        gaps[1+3*u][0].append(k_read((sg+1) % 4, 1, u))
    gaps[23][2].append("s_waitcnt lgkmcnt(0)")
    for j in range(24):
        gaps[26+2*j][0].append(v_read(sg, j // 2, j & 1))
    for g in (47, 59, 71):
        gaps[g][2].append("s_waitcnt lgkmcnt(5)")
    gaps[79][2].append("s_waitcnt vmcnt(12) lgkmcnt(0)")
    gaps[79][2].append("s_barrier")
    for u in range(6):
        gaps[81+u][0].append(k_read((sg+2) % 4, 0, u))
    gaps[95][2].append("s_waitcnt lgkmcnt(0)")
    gaps[1][2].append(f"s_add_u32 m0, s29, {KREG + sg*12288}")
    for n in range(3):
        gaps[3+3*n][0].append(f"buffer_load_dwordx4 v{DK+n}, s[16:19], s30 offen offset:{1024*n} lds")
    gaps[10][2].append(f"s_add_u32 m0, s29, {VREG + ((sg+3) % 4)*12288}")
    for n in range(3):
        gaps[12+3*n][0].append(f"buffer_load_dwordx4 v{DV+n}, s[20:23], s30 offen offset:{1024*n} lds")
    gaps[26][2].append("s_add_u32 s30, s30, 12288")
    if extra:
        for g, s in extra:
            gaps[g][2].append(s)
    E, S = softmax_ops(cb, (2, 3))
    fill_valu(gaps, 0, 47, E, S)
    E, S = softmax_ops(nb, (0, 1))
    fill_valu(gaps, 48, 96, E, S)
    for g in range(96):
        A(M[g])
        for s in gaps[g][0] + gaps[g][1] + gaps[g][2]:
            A(s)


def gen_tail(A, sg):
    cb = sg & 1
    for j in range(16):
        A(v_read(sg, j // 2, j & 1))
        if j == 11:
            A("s_waitcnt lgkmcnt(4)")
    E, S = softmax_ops(cb, (2, 3))
    for e in E:
        A(e)
    A("s_nop 0")
    for _, s in S:
        A(s)
    A("s_waitcnt lgkmcnt(0)")
    A("s_nop 1")
    for dt in range(12):
        if dt == 8:
            A("s_waitcnt lgkmcnt(0)")
        for qt in range(4):
            o = ar(oacc(dt, qt), 4)
            A(mfma(o, vr(VF+(dt % 8)*4, 4), vr(sreg(cb, qt, 0), 4), o))
            if 1 <= dt <= 4 and qt < 2:
                A(v_read(sg, dt + 7, qt))


def xlane_reduce(A, op, regs, tmp):
    for swap in ("v_permlane32_swap_b32", "v_permlane16_swap_b32"):
        for i, r in enumerate(regs):
            A(f"v_mov_b32 v{tmp+i}, v{r}")
        A("s_nop 1")
        for i, r in enumerate(regs):
            A(f"{swap} v{tmp+i}, v{r}")
        A("s_nop 1")
        for i, r in enumerate(regs):
            A(f"{op} v{r}, v{r}, v{tmp+i}")


def gen_k1(A, cfg):
    name = "k1_kernel"
    kernel_begin(A, name)
    A("s_cmp_ge_u32 s2, 256")
    A("s_cbranch_scc1 K1_END")
    A("s_load_dwordx4 s[40:43], s[0:1], 8")
    A("s_load_dwordx2 s[44:45], s[0:1], 24")
    A("s_load_dwordx4 s[48:51], s[0:1], 48")
    A("s_load_dwordx2 s[52:53], s[0:1], 88")
    A("v_lshrrev_b32 v1, 6, v0")
    A("v_and_b32 v0, 63, v0")
    A("v_readfirstlane_b32 s28, v1")
    A("s_and_b32 s31, s2, 7")
    A("s_lshr_b32 s32, s2, 3")
    A("s_lshl_b32 s31, s31, 2")
    A("s_and_b32 s33, s32, 3")
    A("s_add_u32 s31, s31, s33")
    A("s_lshr_b32 s32, s32, 2")
    A("s_mul_i32 s29, s28, 3072")
    A("s_waitcnt lgkmcnt(0)")
    A("s_lshl_b32 s33, s32, 2")
    A("s_add_u32 s33, s33, s28")
    A(f"s_mul_i32 s34, s33, {64*1280}")
    srd(A, 4, 52, off_sgpr=34, off_imm=XN_OFF, size=64*1280)
    A(f"s_mul_i32 s34, s33, {4*RT_STRIDE}")
    srd(A, 24, 52, off_sgpr=34, off_imm=OF_OFF, size=4*RT_STRIDE)
    A("s_mul_i32 s34, s31, 384")
    A(f"s_sub_u32 s35, {640*12288}, s34")
    srd(A, 8, 44, off_sgpr=34, size_sgpr=35)
    A("s_cmp_lt_u32 s28, 2")
    A("s_cselect_b32 s46, s48, s50")
    A("s_cselect_b32 s47, s49, s51")
    A("s_mul_i32 s34, s31, 96")
    A(f"s_sub_u32 s35, {640*3072}, s34")
    srd(A, 12, 46, off_sgpr=34, size_sgpr=35)
    A("s_mul_i32 s34, s31, 786432")
    srd(A, 16, 40, off_sgpr=34, size=786432)
    srd(A, 20, 42, off_sgpr=34, size=786432)
    A("v_lshrrev_b32 v30, 4, v0")
    A("v_bfe_u32 v31, v0, 2, 2")
    A("v_and_b32 v32, 3, v0")
    A("v_and_b32 v33, 15, v0")
    XO, WD, GD, BQ, BG, CQ, CG = 14, 18, 21, 24, 26, 27, 29
    A("v_mul_u32_u24 v34, 1280, v33")
    A("v_lshl_add_u32 v34, v30, 4, v34")
    for qt in range(4):
        A(f"v_add_u32 v{XO+qt}, {qt*16*1280}, v34")
    for n in range(3):
        A(f"v_add_u32 v34, {64*n}, v0")
        A("v_mul_u32_u24 v35, 2731, v34")
        A("v_lshrrev_b32 v35, 16, v35")
        A("v_mul_u32_u24 v36, 24, v35")
        A("v_sub_u32 v36, v34, v36")
        A("v_and_b32 v37, 2, v35")
        A("v_lshlrev_b32 v37, 1, v37")
        A("v_xor_b32 v36, v36, v37")
        A("s_lshl_b32 s34, s28, 4")
        A("v_add_u32 v37, s34, v35")
        A("v_mul_u32_u24 v37, 12288, v37")
        A("v_lshl_add_u32 v37, v36, 4, v37")
        A(f"v_subrev_u32 v{WD+n}, {1024*n}, v37")
        A("s_lshl_b32 s34, s28, 3")
        A("v_add_u32 v37, s34, v35")
        A("v_bfe_u32 v38, v37, 1, 3")
        A("v_xor_b32 v38, v38, v0")
        A("v_lshlrev_b32 v38, 4, v38")
        A("v_add_u32 v38, s29, v38")
        A(f"v_add_u32 v{DK+n}, 12288, v38")
        A("v_and_b32 v38, 6, v37")
        A("v_xor_b32 v38, v38, v0")
        A("v_lshlrev_b32 v38, 4, v38")
        A(f"v_add_u32 v{DV+n}, s29, v38")
        A("v_mul_u32_u24 v35, 10923, v34")
        A("v_lshrrev_b32 v35, 16, v35")
        A("v_mul_u32_u24 v36, 6, v35")
        A("v_sub_u32 v36, v34, v36")
        A("s_and_b32 s34, s28, 1")
        A("s_lshl_b32 s34, s34, 5")
        A("v_add_u32 v35, s34, v35")
        A("v_mul_u32_u24 v35, 3072, v35")
        A("v_lshl_add_u32 v35, v36, 4, v35")
        A(f"v_subrev_u32 v{GD+n}, {1024*n}, v35")
    A("v_lshl_add_u32 v34, v30, 3, v31")
    A("v_mul_u32_u24 v35, 384, v34")
    A("v_lshl_add_u32 v35, v32, 4, v35")
    A("v_lshrrev_b32 v36, 1, v31")
    A(f"v_lshl_add_u32 v{BQ}, v36, 6, v35")
    A("v_xor_b32 v36, 1, v36")
    A(f"v_lshl_add_u32 v{BQ+1}, v36, 6, v35")
    A("v_mul_u32_u24 v35, 96, v34")
    A(f"v_lshl_add_u32 v{BG}, v32, 3, v35")
    A("v_mul_u32_u24 v35, 384, v33")
    A("v_bfe_u32 v36, v33, 1, 3")
    A("v_xor_b32 v37, v36, v30")
    A(f"v_lshl_add_u32 v{VK}, v37, 4, v35")
    A("v_xor_b32 v37, 4, v37")
    A(f"v_lshl_add_u32 v{VK+1}, v37, 4, v35")
    A("v_lshrrev_b32 v34, 2, v0")
    A("v_mul_u32_u24 v35, 384, v34")
    A(f"v_add_u32 v35, {VREG}, v35")
    A("v_and_b32 v36, 1, v32")
    A("v_lshl_add_u32 v35, v36, 3, v35")
    A("v_and_b32 v36, 6, v34")
    A("v_lshrrev_b32 v37, 1, v32")
    A("v_xor_b32 v36, v36, v37")
    for j in range(4):
        A(f"v_xor_b32 v37, {2*j}, v36")
        A(f"v_lshl_add_u32 v{VV+j}, v37, 4, v35")

    XF = 192
    WF = 40
    GA = 64
    SLOT = 36864

    def x_loads(st):
        return [f"buffer_load_dwordx4 {ar(XF+st*32+(k2*4+qt)*4, 4)}, v{XO+qt}, s[4:7], s36 offen offset:{64*k2}"
                for k2 in range(2) for qt in range(4)]

    def w_dma():
        L = []
        L.append(("s", "s_lshl_b32 s34, s29, 1"))
        L.append(("s", "s_add_u32 m0, s39, s34"))
        for n in range(3):
            L.append(("d", f"buffer_load_dwordx4 v{WD+n}, s[8:11], s37 offen offset:{1024*n} lds"))
        L.append(("s", "s_add_u32 m0, m0, 3072"))
        L.append(("s", f"s_add_u32 s35, s37, {8*12288}"))
        for n in range(3):
            L.append(("d", f"buffer_load_dwordx4 v{WD+n}, s[8:11], s35 offen offset:{1024*n} lds"))
        L.append(("s", "s_add_u32 s34, s29, 24576"))
        L.append(("s", "s_add_u32 m0, s39, s34"))
        for n in range(3):
            L.append(("d", f"buffer_load_dwordx4 v{GD+n}, s[12:15], s38 offen offset:{1024*n} lds"))
        L.append(("s", f"s_add_u32 s37, s37, {64*12288}"))
        L.append(("s", f"s_add_u32 s38, s38, {64*3072}"))
        L.append(("s", f"s_add_u32 s39, s39, {SLOT}"))
        L.append(("s", f"s_cmp_eq_u32 s39, {3*SLOT}"))
        L.append(("s", "s_cselect_b32 s39, 0, s39"))
        return L

    def emit_dma_plain(L):
        prev = None
        for k, s in L:
            if k == "d" and prev == "s":
                A("s_nop 0")
            A(s)
            prev = k

    def w_reads(t):
        L = []
        for k2 in range(2):
            for rd in range(2):
                d = vr(WF + (t % 3)*8 + k2*4 + 2*rd, 2)
                if t < 12:
                    u, par = t >> 1, t & 1
                    L.append(f"ds_read_b64_tr_b16 {d}, v{CQ+(u&1)} offset:{k2*32*384+rd*4*384+128*(u>>1)+8*par}")
                else:
                    tt = t - 12
                    L.append(f"ds_read_b64_tr_b16 {d}, v{CG} offset:{24576+(tt//3)*6144+k2*32*96+rd*4*96+32*(tt%3)}")
        return L

    def set_cur():
        return [f"v_add_u32 v{CQ}, s33, v{BQ}", f"v_add_u32 v{CQ+1}, s33, v{BQ+1}", f"v_add_u32 v{CG}, s33, v{BG}"]

    A("s_mov_b32 s36, 0")
    A("s_mov_b32 s37, 0")
    A("s_mov_b32 s38, 0")
    A("s_mov_b32 s39, 0")
    A("s_mov_b32 s33, 0")
    for s in x_loads(0):
        A(s)
    A("s_mov_b32 s36, 128")
    emit_dma_plain(w_dma())
    emit_dma_plain(w_dma())
    for i in range(192):
        A(f"v_accvgpr_write_b32 a{i}, 0")
    for i in range(96):
        A(f"v_mov_b32 v{GA+i}, 0")
    for s in set_cur():
        A(s)
    A("s_waitcnt vmcnt(9)")
    A("s_barrier")
    for s in w_reads(0) + w_reads(1):
        A(s)
    A("s_mov_b32 s54, 5")
    A.raw(".p2align 5")
    A.label("K1_GEMM")
    for st in range(2):
        gaps = [[] for _ in range(144)]
        xl = x_loads(st ^ 1)
        for k, s in enumerate(xl):
            gaps[4 + 2*(k % 2) + 8*(k // 2)].append(s)
        gaps[34].append("s_add_u32 s36, s36, 128")
        g = 36
        for k, s in w_dma():
            while g % 8 < 4:
                g += 1
            gaps[g].append(s)
            g += 1
        assert g < 120
        for t in range(18):
            if t + 2 == 18:
                gaps[8*t-1] += ["s_waitcnt vmcnt(9) lgkmcnt(0)", "s_barrier"]
                gaps[8*t-3] += [f"s_add_u32 s33, s33, {SLOT}", f"s_cmp_eq_u32 s33, {3*SLOT}"]
                gaps[8*t-2] += ["s_cselect_b32 s33, 0, s33"]
                gaps[8*t-1] += set_cur()
            rl = w_reads((t + 2) % 18)
            for k, s in enumerate(rl):
                gaps[8*t + k].insert(0, s)
        for t in range(18):
            A("s_waitcnt lgkmcnt(4)")
            k = 0
            for qt in range(4):
                acc = ar((t*4+qt)*4, 4) if t < 12 else vr(GA + ((t-12)*4+qt)*4, 4)
                for k2 in range(2):
                    A(mfma(acc, vr(WF+(t % 3)*8+k2*4, 4), ar(XF+st*32+(k2*4+qt)*4, 4), acc))
                    for s in gaps[8*t + k]:
                        A(s)
                    k += 1
    A("s_sub_u32 s54, s54, 1")
    A("s_cmp_lg_u32 s54, 0")
    A("s_cbranch_scc1 K1_GEMM")
    A("s_mov_b32 s55, 0")
    A("s_waitcnt vmcnt(0) lgkmcnt(0)")

    def kv_start():
        A("s_barrier")
        order = [("K", 0), ("K", 1), ("V", 0), ("K", 2), ("V", 1), ("K", 3), ("V", 2)]
        for kind, i in order:
            A(f"s_add_u32 m0, s29, {(KREG if kind == 'K' else VREG) + i*12288}")
            if kind == "K":
                if i == 0:
                    for n in range(3):
                        A(f"v_subrev_u32 v{34+n}, 12288, v{DK+n}")
                    for n in range(3):
                        A(f"buffer_load_dwordx4 v{34+n}, s[16:19], 0 offen offset:{1024*n} lds")
                else:
                    A(f"s_mov_b32 s30, {(i-1)*12288}")
                    for n in range(3):
                        A(f"buffer_load_dwordx4 v{DK+n}, s[16:19], s30 offen offset:{1024*n} lds")
            else:
                A(f"s_mov_b32 s30, {i*12288}")
                for n in range(3):
                    A(f"buffer_load_dwordx4 v{DV+n}, s[20:23], s30 offen offset:{1024*n} lds")
        A(f"s_mov_b32 s30, {3*12288}")
    kv_start()
    A(f"s_mov_b32 s34, {hex(f2u(-LOG2E))}")
    A("v_lshlrev_b32 v30, 4, v0")
    for qt in range(1, 4):
        A(f"v_add_u32 v{30+qt}, {qt*RT_STRIDE}, v30")
    for t in range(3):
        A("s_mul_i32 s35, s31, 3")
        A(f"s_add_u32 s35, s35, {t}")
        A("s_and_b32 s36, s35, 1")
        A("s_lshl_b32 s36, s36, 3")
        A("s_lshr_b32 s35, s35, 1")
        A("s_add_u32 s35, s35, 192")
        A("s_lshl_b32 s35, s35, 10")
        A(f"s_add_u32 s{56+t}, s35, s36")
    for t in range(3):
        for qt in range(4):
            G = GA + (t*4+qt)*4
            U = GA + ((t+3)*4+qt)*4
            T0 = 40
            for p in range(2):
                A(f"v_cvt_pk_bf16_f32 v{T0+p}, v{G+2*p}, v{G+2*p+1}")
                A(f"v_cvt_pk_bf16_f32 v{T0+2+p}, v{U+2*p}, v{U+2*p+1}")
            for p in range(2):
                A(f"v_lshlrev_b32 v{G+2*p}, 16, v{T0+p}")
                A(f"v_and_b32 v{G+2*p+1}, 0xffff0000, v{T0+p}")
                A(f"v_lshlrev_b32 v{U+2*p}, 16, v{T0+2+p}")
                A(f"v_and_b32 v{U+2*p+1}, 0xffff0000, v{T0+2+p}")
            for r in range(4):
                A(f"v_mul_f32 v{T0+r}, s34, v{G+r}")
            for r in range(4):
                A(f"v_exp_f32 v{T0+r}, v{T0+r}")
            for r in range(4):
                A(f"v_add_f32 v{T0+r}, 1.0, v{T0+r}")
            for r in range(4):
                A(f"v_rcp_f32 v{T0+r}, v{T0+r}")
            for r in range(4):
                A(f"v_mul_f32 v{G+r}, v{G+r}, v{T0+r}")
            for p in range(2):
                A(f"v_cvt_pk_bf16_f32 v{T0+p}, v{G+2*p}, v{G+2*p+1}")
            for p in range(2):
                A(f"v_lshlrev_b32 v{G+2*p}, 16, v{T0+p}")
                A(f"v_and_b32 v{G+2*p+1}, 0xffff0000, v{T0+p}")
            for r in range(4):
                A(f"v_mul_f32 v{G+r}, v{G+r}, v{U+r}")
            for p in range(2):
                A(f"v_cvt_pk_bf16_f32 v{G+p}, v{G+2*p}, v{G+2*p+1}")
            A(f"buffer_store_dwordx2 v[{G}:{G+1}], v{30+qt}, s[24:27], s{56+t} offen")
    A(f"s_mov_b32 s34, {hex(f2u(LOG2E * 192 ** -0.5))}")
    for qt in range(4):
        for u in range(6):
            T0 = 40
            for e in range(8):
                t = 2*u + (e >> 2)
                A(f"v_accvgpr_read_b32 v{T0+e}, a{(t*4+qt)*4+(e&3)}")
            for e in range(8):
                A(f"v_mul_f32 v{T0+e}, s34, v{T0+e}")
            for p in range(4):
                A(f"v_cvt_pk_bf16_f32 v{QF+(qt*6+u)*4+p}, v{T0+2*p}, v{T0+2*p+1}")
    for i in range(16):
        A(f"v_mov_b32 v{NM+i}, 0")
    A("s_waitcnt vmcnt(30)")
    A.label("K1_ATT")
    for i in range(192):
        A(f"v_accvgpr_write_b32 a{i}, 0")
    for i in range(8):
        A(f"v_mov_b32 v{LS+i}, 0")
    A("s_barrier")
    for kt in range(2):
        for u in range(6):
            A(k_read(0, kt, u))
    A("s_waitcnt lgkmcnt(0)")
    for kt in range(2):
        for qt in range(4):
            d = vr(sreg(0, qt, kt), 4)
            for u in range(6):
                A(mfma(d, ar(KF+kt*24+u*4, 4), qf(qt, u), vr(NM+qt*4, 4) if u == 0 else d))
    A("s_waitcnt vmcnt(12)")
    A("s_barrier")
    for u in range(6):
        A(k_read(1, 0, u))
    A("s_cmp_lg_u32 s55, 0")
    A("s_cbranch_scc1 K1_SKIPMAX")
    for qt in range(4):
        b = sreg(0, qt, 0)
        A(f"v_max3_f32 v{30+qt}, v{b}, v{b+1}, v{b+2}")
        A(f"v_max3_f32 v{30+qt}, v{30+qt}, v{b+3}, v{b+4}")
        A(f"v_max3_f32 v{30+qt}, v{30+qt}, v{b+5}, v{b+6}")
        A(f"v_max_f32 v{30+qt}, v{30+qt}, v{b+7}")
    xlane_reduce(A, "v_max_f32", [30, 31, 32, 33], 34)
    for qt in range(4):
        b = sreg(0, qt, 0)
        for r in range(4):
            A(f"v_sub_f32 v{NM+qt*4+r}, 0, v{30+qt}")
        for e in range(8):
            A(f"v_sub_f32 v{b+e}, v{b+e}, v{30+qt}")
    A.label("K1_SKIPMAX")
    E, S = softmax_ops(0, (0, 1))
    for e in E:
        A(e)
    A("s_nop 0")
    for _, s in S:
        A(s)
    A("s_mov_b32 s54, 16")
    A("s_waitcnt lgkmcnt(0)")
    A.raw(".p2align 6")
    A.label("K1_LOOP")
    gen_stage(A, 0, extra=[(90, "s_sub_u32 s54, s54, 1")])
    gen_stage(A, 1)
    gen_stage(A, 2, extra=[(93, "s_cmp_eq_u32 s54, 0")])
    A("s_cbranch_scc1 K1_TAIL")
    gen_stage(A, 3)
    A("s_branch K1_LOOP")
    A.label("K1_TAIL")
    gen_tail(A, 3)
    for qt in range(4):
        A(f"v_add_f32 v{30+qt}, v{LS+2*qt}, v{LS+2*qt+1}")
    xlane_reduce(A, "v_add_f32", [30, 31, 32, 33], 34)
    A("s_cmp_lg_u32 s55, 0")
    A("s_cbranch_scc1 K1_EPI")
    A(f"v_mov_b32 v34, {hex(f2u(2.0**30))}")
    A("v_cmp_nlt_f32 vcc, v30, v34")
    A("s_mov_b64 s[56:57], vcc")
    for qt in range(1, 4):
        A(f"v_cmp_nlt_f32 vcc, v{30+qt}, v34")
        A("s_or_b64 s[56:57], s[56:57], vcc")
    A("s_cmp_lg_u64 s[56:57], 0")
    A("s_cselect_b32 s34, 1, 0")
    A("v_mov_b32 v34, s34")
    A("v_mov_b32 v35, s28")
    A("v_lshlrev_b32 v35, 2, v35")
    A("v_add_u32 v35, 98304, v35")
    A("ds_write_b32 v35, v34")
    A("v_mov_b32 v35, 98304")
    A("s_waitcnt vmcnt(0) lgkmcnt(0)")
    A("s_barrier")
    A("ds_read_b128 v[36:39], v35")
    A("s_waitcnt lgkmcnt(0)")
    A("v_or_b32 v36, v36, v37")
    A("v_or_b32 v38, v38, v39")
    A("v_or_b32 v36, v36, v38")
    A("s_nop 0")
    A("v_readfirstlane_b32 s34, v36")
    A("s_cmp_eq_u32 s34, 0")
    A("s_cbranch_scc1 K1_EPI")
    A("s_mov_b32 s55, 1")
    A("v_and_b32 v34, 15, v0")
    A("v_mul_u32_u24 v34, 384, v34")
    A("v_lshrrev_b32 v35, 4, v0")
    A("v_lshl_add_u32 v34, v35, 4, v34")
    for qt in range(4):
        A(f"v_mov_b32 v{30+qt}, 0xff800000")
    A("s_mov_b32 s34, 0")
    A.label("K1_MAXLOOP")
    for u in range(6):
        A(f"buffer_load_dwordx4 {ar(KF+u*4, 4)}, v34, s[16:19], s34 offen offset:{64*u}")
    A("s_waitcnt vmcnt(0)")
    for qt in range(4):
        d = vr(sreg(0, qt, 0), 4)
        for u in range(6):
            A(mfma(d, ar(KF+u*4, 4), qf(qt, u), "0" if u == 0 else d))
    A("s_nop 15")
    for qt in range(4):
        b = sreg(0, qt, 0)
        A(f"v_max3_f32 v{30+qt}, v{30+qt}, v{b}, v{b+1}")
        A(f"v_max3_f32 v{30+qt}, v{30+qt}, v{b+2}, v{b+3}")
    A("s_add_u32 s34, s34, 6144")
    A("s_cmp_lt_u32 s34, 786432")
    A("s_cbranch_scc1 K1_MAXLOOP")
    xlane_reduce(A, "v_max_f32", [30, 31, 32, 33], 34)
    for qt in range(4):
        for r in range(4):
            A(f"v_sub_f32 v{NM+qt*4+r}, 0, v{30+qt}")
    kv_start()
    A("s_waitcnt vmcnt(18)")
    A("s_branch K1_ATT")
    A.label("K1_EPI")
    for qt in range(4):
        A(f"v_rcp_f32 v{30+qt}, v{30+qt}")
    A("v_lshlrev_b32 v34, 4, v0")
    for qt in range(1, 4):
        A(f"v_add_u32 v{34+qt}, {qt*RT_STRIDE}, v34")
    A("s_mul_i32 s34, s31, 6144")
    A("s_add_u32 s35, s34, 4096")
    cnt = 0
    for qt in range(4):
        for u in range(6):
            T0 = 48 + (cnt % 4)*8
            P0 = 96 + (cnt % 8)*4
            cnt += 1
            for e in range(8):
                A(f"v_accvgpr_read_b32 v{T0+e}, a{oacc(2*u+(e>>2), qt)+(e&3)}")
            for e in range(8):
                A(f"v_mul_f32 v{T0+e}, v{30+qt}, v{T0+e}")
            for p in range(4):
                A(f"v_cvt_pk_bf16_f32 v{P0+p}, v{T0+2*p}, v{T0+2*p+1}")
            so, im = (34, 1024*u) if u < 4 else (35, 1024*(u-4))
            A(f"buffer_store_dwordx4 v[{P0}:{P0+3}], v{34+qt}, s[24:27], s{so} offen offset:{im}")
    A.label("K1_END")
    A("s_endpgm")
    kernel_desc(A, name, 512, 64, 256)


HEADER = """; Kernarg layout for this problem (96 bytes, ptrs only, base s[0:1]):
;   offset  72: d_out     shape=(1, 2048, 640) dtype=bfloat16
"""


def generate(cfg):
    A = Asm()
    A.raw(HEADER.rstrip())
    A.raw("; @launch kernel=k0_kernel grid=(368,1,1) block=(256,1,1) lds=41984")
    A.raw("; @launch kernel=k1_kernel grid=(256,1,1) block=(256,1,1) lds=110592")
    A.raw("; @launch kernel=k2_kernel grid=(256,1,1) block=(256,1,1) lds=122880")
    A.raw('.amdgcn_target "amdgcn-amd-amdhsa--gfx950"')
    gen_k0(A)
    gen_k1(A, cfg)
    gen_k2(A, cfg)
    return A.text()


if __name__ == "__main__":
    for x in range(192):
        assert (x * 2731) >> 16 == x // 24 and (x * 10923) >> 16 == x // 6
    cfg = {}
    out = f"cdna_kernels/{NAME}.s"
    for a in sys.argv[1:]:
        if "=" in a:
            k, v = a.split("=")
            if k == "out":
                out = v
            else:
                cfg[k] = int(v)
    open(out, "w").write(generate(cfg))
    print("wrote", out)
```

```python
import sys, math, struct

NAME = "recurrent_scan__mha_block_cached__swiglu_ffn__prompt"
XN_OFF = 0
WP_OFF = 0x400000
OF_OFF = 0x1000000
RT_STRIDE = 240 * 1024
LOG2E = 1.4426950408889634


def f2u(x):
    return struct.unpack("<I", struct.pack("<f", x))[0]


class Asm:
    def __init__(self):
        self.L = []

    def __call__(self, s):
        self.L.append("    " + s)

    def label(self, s):
        self.L.append(s + ":")

    def raw(self, s):
        self.L.append(s)

    def text(self):
        return "\n".join(self.L) + "\n"


def vr(b, n=1):
    return f"v{b}" if n == 1 else f"v[{b}:{b+n-1}]"


def ar(b, n=1):
    return f"a{b}" if n == 1 else f"a[{b}:{b+n-1}]"


def sr(b, n=1):
    return f"s{b}" if n == 1 else f"s[{b}:{b+n-1}]"


def kernel_begin(A, name):
    A.raw(".text")
    A.raw(f".globl {name}")
    A.raw(".p2align 8")
    A.raw(f".type {name},@function")
    A.label(name)


def kernel_desc(A, name, nv, ns, ao):
    A.raw('.section .rodata,"a"')
    A.raw(".p2align 6")
    A.raw(f".amdhsa_kernel {name}")
    A.raw(f"  .amdhsa_next_free_vgpr {nv}")
    A.raw(f"  .amdhsa_next_free_sgpr {ns}")
    A.raw(f"  .amdhsa_accum_offset {ao}")
    A.raw("  .amdhsa_group_segment_fixed_size 0")
    A.raw("  .amdhsa_kernarg_size 96")
    A.raw("  .amdhsa_user_sgpr_count 2")
    A.raw("  .amdhsa_user_sgpr_kernarg_segment_ptr 1")
    A.raw("  .amdhsa_system_sgpr_workgroup_id_x 1")
    A.raw(".end_amdhsa_kernel")


def srd(A, d, ptr, off_sgpr=None, off_imm=0, size=None, size_sgpr=None):
    if off_sgpr is not None:
        A(f"s_add_u32 s{d}, s{ptr}, s{off_sgpr}")
        A(f"s_addc_u32 s{d+1}, s{ptr+1}, 0")
        if off_imm:
            A(f"s_add_u32 s{d}, s{d}, {off_imm}")
            A(f"s_addc_u32 s{d+1}, s{d+1}, 0")
    elif off_imm:
        A(f"s_add_u32 s{d}, s{ptr}, {off_imm}")
        A(f"s_addc_u32 s{d+1}, s{ptr+1}, 0")
    else:
        A(f"s_mov_b32 s{d}, s{ptr}")
        A(f"s_mov_b32 s{d+1}, s{ptr+1}")
    if size_sgpr is not None:
        A(f"s_mov_b32 s{d+2}, s{size_sgpr}")
    else:
        A(f"s_mov_b32 s{d+2}, {size}")
    A(f"s_mov_b32 s{d+3}, 0x00020000")


STAMP_OFF = 0x8000000


class Stamps:
    def __init__(self, A, on, kid):
        self.A, self.on, self.n, self.kid = A, on, 0, kid

    def __call__(self):
        if not self.on:
            return
        A = self.A
        b = 64 + 4*self.n
        A(f"s_memtime s[{b}:{b+1}]")
        A(f"s_memrealtime s[{b+2}:{b+3}]")
        A("s_waitcnt lgkmcnt(0)")
        self.n += 1

    def dump(self, wave_sgpr):
        if not self.on:
            return
        A = self.A
        A("s_load_dwordx2 s[60:61], s[0:1], 88")
        A("s_waitcnt lgkmcnt(0) vmcnt(0)")
        self()
        A("s_lshl_b32 s62, s2, 2")
        A(f"s_add_u32 s62, s62, s{wave_sgpr}")
        A("s_lshl_b32 s62, s62, 6")
        A(f"s_add_u32 s62, s62, {STAMP_OFF + self.kid*0x100000}")
        A("s_add_u32 s60, s60, s62")
        A("s_addc_u32 s61, s61, 0")
        A("v_mov_b32 v1, 0")
        for i in range(self.n):
            A(f"v_mov_b32 v2, s{64+4*i}")
            A(f"v_mov_b32 v3, s{66+4*i}")
            A(f"global_store_dwordx2 v1, v[2:3], s[60:61] offset:{8*i}")
        A("s_waitcnt vmcnt(0)")


def mfma(d, a, b, c):
    return f"v_mfma_f32_16x16x32_bf16 {d}, {a}, {b}, {c}"


def gen_k2(A, cfg):
    name = "k2_kernel"
    D = 6
    kernel_begin(A, name)
    A("s_cmp_ge_u32 s2, 256")
    A("s_cbranch_scc1 K2_END")
    ST = Stamps(A, cfg.get("stamp", 0), 2)
    ST()
    A("s_load_dwordx2 s[4:5], s[0:1], 0")
    A("s_load_dwordx2 s[6:7], s[0:1], 72")
    A("s_load_dwordx2 s[8:9], s[0:1], 88")
    A("v_lshrrev_b32 v1, 6, v0")
    A("v_and_b32 v2, 63, v0")
    A("v_readfirstlane_b32 s28, v1")
    A("s_and_b32 s29, s2, 7")
    A("s_lshr_b32 s30, s2, 3")
    if cfg.get("k2map", 0) == 0:
        A("s_lshr_b32 s31, s29, 1")
        A("s_lshl_b32 s31, s31, 3")
        A("s_lshr_b32 s32, s30, 2")
        A("s_add_u32 s31, s31, s32")
        A("s_and_b32 s32, s29, 1")
        A("s_lshl_b32 s32, s32, 2")
        A("s_and_b32 s33, s30, 3")
        A("s_add_u32 s32, s32, s33")
    elif cfg.get("k2map", 0) == 2:
        A("s_mov_b32 s31, 0")
        A("s_mov_b32 s32, 0")
    elif cfg.get("k2map", 0) == 3:
        A("s_lshr_b32 s31, s29, 2")
        A("s_lshl_b32 s31, s31, 4")
        A("s_lshr_b32 s32, s30, 1")
        A("s_add_u32 s31, s31, s32")
        A("s_and_b32 s32, s29, 3")
        A("s_lshl_b32 s32, s32, 1")
        A("s_and_b32 s33, s30, 1")
        A("s_add_u32 s32, s32, s33")
    else:
        A("s_lshl_b32 s31, s29, 2")
        A("s_lshr_b32 s32, s30, 3")
        A("s_add_u32 s31, s31, s32")
        A("s_and_b32 s32, s30, 7")
    A("s_waitcnt lgkmcnt(0)")
    A(f"s_mul_i32 s33, s31, {4*RT_STRIDE}")
    srd(A, 12, 8, off_sgpr=33, off_imm=OF_OFF, size=4*RT_STRIDE)
    A("s_mul_i32 s33, s32, 5120")
    A(f"s_sub_u32 s34, {240*40960}, s33")
    srd(A, 16, 8, off_sgpr=33, off_imm=WP_OFF, size_sgpr=34)
    srd(A, 20, 4, size=2621440)
    srd(A, 24, 6, size=2621440)
    A("v_lshlrev_b32 v8, 4, v2")
    A("v_add_u32 v9, 4096, v8")
    for t in range(4):
        A(f"s_add_u32 s33, s28, {t}")
        A("s_and_b32 s33, s33, 3")
        A(f"s_mul_i32 s33, s33, {RT_STRIDE}")
        A(f"v_add_u32 v{4+t}, s33, v8")
    A("s_lshl_b32 s33, s31, 6")
    A("s_lshl_b32 s34, s28, 4")
    A("s_add_u32 s33, s33, s34")
    A("v_and_b32 v3, 15, v2")
    A("v_add_u32 v3, s33, v3")
    A("v_mul_u32_u24 v3, 1280, v3")
    A("v_lshrrev_b32 v10, 4, v2")
    A("v_lshl_add_u32 v3, v10, 3, v3")
    A("s_mul_i32 s33, s32, 160")
    A("v_add_u32 v3, s33, v3")
    XR = 232
    for c in range(5):
        A(f"buffer_load_dwordx2 v[{XR+2*c}:{XR+2*c+1}], v3, s[20:23], 0 offen offset:{32*c}")
    A("s_and_b32 s40, s31, 7")
    A("s_mul_i32 s40, s40, 3")
    A("s_lshr_b32 s40, s40, 1")
    A("s_and_b32 s41, s32, 3")
    A("s_mul_i32 s41, s41, 3")
    A("s_add_u32 s40, s40, s41")
    A("s_cmp_ge_u32 s40, 12")
    A("s_cselect_b32 s41, 12, 0")
    A("s_sub_u32 s40, s40, s41")
    if not cfg.get("k2rot", 0):
        A("s_mov_b32 s40, 0")
    A("s_mul_i32 s38, s28, 12")
    A("s_add_u32 s38, s38, 192")
    A("s_mul_i32 s39, s28, 48")
    NS = 60
    BUF = 16

    def loads(n):
        out = []
        b = BUF + 36 * (n % D)
        pre = []
        if n == 12:
            pre += ["s_mov_b32 s38, s39"]
        elif n > 0 and n % 12 == 0:
            pre += ["s_add_u32 s38, s38, 12"]
        if n > 0:
            pre += ["s_add_u32 s40, s40, 1", "s_cmp_eq_u32 s40, 12", "s_cselect_b32 s40, 0, s40"]
        pre += ["s_add_u32 s36, s38, s40", "s_mul_i32 s37, s36, 40960", "s_lshl_b32 s36, s36, 10"]
        for t in range(4):
            out.append(f"buffer_load_dwordx4 v[{b+4*t}:{b+4*t+3}], v{4+t}, s[12:15], s36 offen")
        for c in range(5):
            vo, im = (8, 1024*c) if c < 4 else (9, 0)
            out.append(f"buffer_load_dwordx4 v[{b+16+4*c}:{b+16+4*c+3}], v{vo}, s[16:19], s37 offen offset:{im}")
        return pre, out
    for n in range(D - 1):
        pre, ld = loads(n)
        for s in pre + ld:
            A(s)
    for n in range(NS):
        rem = min(NS - 1, n + D - 2) - n
        A(f"s_waitcnt vmcnt({9*rem})")
        if n in (0, 12, 36):
            ST()
        if n + D - 1 < NS:
            pre, ld = loads(n + D - 1)
        else:
            pre, ld = [], []
        for s in pre:
            A(s)
        b = BUF + 36 * (n % D)
        base = 80 if n < 12 else 0
        first = n == 0 or n == 12
        k = 0
        for c in range(5):
            for t in range(4):
                acc = ar(base + 16*c + 4*t, 4)
                if not cfg.get("k2nomfma", 0) or first:
                    A(mfma(acc, vr(b+16+4*c, 4), vr(b+4*t, 4), "0" if first else acc))
                if k % 2 == 1 and ld:
                    A(ld.pop(0))
                k += 1
        assert not ld
    ST()
    for t in range(1, 4):
        A(f"s_add_u32 s33, s28, {t}")
        A("s_and_b32 s33, s33, 3")
        A("s_mul_i32 s33, s33, 30720")
        A(f"s_add_u32 s33, s33, {(t-1)*10240}")
        A(f"v_add_u32 v{11+t}, s33, v8")
    A("s_mul_i32 s33, s28, 30720")
    A("v_add_u32 v11, s33, v8")
    A("s_nop 7")
    for t in range(1, 4):
        for st in range(2):
            for c in range(5):
                A(f"ds_write_b128 v{11+t}, {ar(80*st+16*c+4*t, 4)} offset:{(st*5+c)*1024}")
    R = 16
    for st in range(2):
        for c in range(5):
            for r in range(4):
                A(f"v_accvgpr_read_b32 v{R+st*20+c*4+r}, a{80*st+16*c+r}")
    A("s_waitcnt lgkmcnt(0)")
    A("s_barrier")
    T = 64
    for si in range(3):
        for q in range(10):
            A(f"ds_read_b128 v[{T+40*si+4*q}:{T+40*si+4*q+3}], v11 offset:{(si*10+q)*1024}")
        if si > 0:
            A("s_waitcnt lgkmcnt(10)")
            for q in range(40):
                A(f"v_add_f32 v{R+q}, v{R+q}, v{T+40*(si-1)+q}")
    A("s_waitcnt lgkmcnt(0)")
    for q in range(40):
        A(f"v_add_f32 v{R+q}, v{R+q}, v{T+80+q}")
    A(f"s_mov_b32 s33, {hex(f2u(-LOG2E))}")
    for p in range(10):
        s0, s1, f0, f1 = R+2*p, R+2*p+1, R+20+2*p, R+21+2*p
        t0, t1 = T, T+1
        A(f"v_cvt_pk_bf16_f32 v{t0}, v{s0}, v{s1}")
        A(f"v_cvt_pk_bf16_f32 v{t1}, v{f0}, v{f1}")
        A(f"v_lshlrev_b32 v{s0}, 16, v{t0}")
        A(f"v_and_b32 v{s1}, 0xffff0000, v{t0}")
        A(f"v_lshlrev_b32 v{f0}, 16, v{t1}")
        A(f"v_and_b32 v{f1}, 0xffff0000, v{t1}")
        A(f"v_mul_f32 v{t0}, s33, v{f0}")
        A(f"v_mul_f32 v{t1}, s33, v{f1}")
        A(f"v_exp_f32 v{t0}, v{t0}")
        A(f"v_exp_f32 v{t1}, v{t1}")
        A("s_nop 0")
        A(f"v_add_f32 v{t0}, 1.0, v{t0}")
        A(f"v_add_f32 v{t1}, 1.0, v{t1}")
        A(f"v_rcp_f32 v{t0}, v{t0}")
        A(f"v_rcp_f32 v{t1}, v{t1}")
        A("s_nop 0")
        A(f"v_mul_f32 v{f0}, v{f0}, v{t0}")
        A(f"v_mul_f32 v{f1}, v{f1}, v{t1}")
        A(f"v_cvt_pk_bf16_f32 v{t0}, v{f0}, v{f1}")
        A(f"v_lshlrev_b32 v{f0}, 16, v{t0}")
        A(f"v_and_b32 v{f1}, 0xffff0000, v{t0}")
        A(f"v_mul_f32 v{s0}, v{s0}, v{f0}")
        A(f"v_mul_f32 v{s1}, v{s1}, v{f1}")
        A(f"v_cvt_pk_bf16_f32 v{t0}, v{s0}, v{s1}")
        A(f"v_lshlrev_b32 v{s0}, 16, v{t0}")
        A(f"v_and_b32 v{s1}, 0xffff0000, v{t0}")
        A(f"v_lshlrev_b32 v{f0}, 16, v{XR+p}")
        A(f"v_and_b32 v{f1}, 0xffff0000, v{XR+p}")
        A(f"v_add_f32 v{s0}, v{s0}, v{f0}")
        A(f"v_add_f32 v{s1}, v{s1}, v{f1}")
        A(f"v_cvt_pk_bf16_f32 v{XR+p}, v{s0}, v{s1}")
    for c in range(5):
        A(f"buffer_store_dwordx2 v[{XR+2*c}:{XR+2*c+1}], v3, s[24:27], 0 offen offset:{32*c}")
    ST()
    ST.dump(28)
    A.label("K2_END")
    A("s_endpgm")
    kernel_desc(A, name, 256 + 160, 100 if ST.on else 48, 256)


QF = 160
SB = 96
NM = 80
VF = 48
LS = 40
VK, VV, DK, DV = 2, 4, 8, 11
KF = 192
KREG, VREG = 0, 49152


def qf(qt, u):
    return vr(QF + (u*4+qt)*4, 4)


def sreg(buf, qt, kt):
    return SB + buf*32 + qt*8 + kt*4


def oacc(dt, qt):
    return (dt*4 + qt) * 4


def k_read(slot, kt, u):
    return f"ds_read_b128 {ar(KF+kt*24+u*4, 4)}, v{VK+(u&1)} offset:{slot*12288+kt*6144+128*(u>>1)}"


def v_read(slot, dt, rd):
    b = VF + (dt % 8)*4 + 2*rd
    return f"ds_read_b64_tr_b16 {vr(b, 2)}, v{VV+(dt&3)} offset:{slot*12288+rd*6144+128*(dt>>2)}"


def softmax_ops(buf, qts):
    E, S = [], []
    for qt in qts:
        b = sreg(buf, qt, 0)
        for p in range(4):
            e0 = len(E)
            E.append(f"v_exp_f32 v{b+2*p}, v{b+2*p}")
            E.append(f"v_exp_f32 v{b+2*p+1}, v{b+2*p+1}")
            S.append((e0, f"v_add_f32 v{LS+2*qt}, v{LS+2*qt}, v{b+2*p}"))
            S.append((e0+1, f"v_add_f32 v{LS+2*qt+1}, v{LS+2*qt+1}, v{b+2*p+1}"))
            S.append((e0+1, f"v_cvt_pk_bf16_f32 v{b+p}, v{b+2*p}, v{b+2*p+1}"))
    return E, S


def fill_valu(gaps, lo, hi, E, S):
    ei, si = 0, 0
    epos = {}
    n_empty = sum(1 for g in range(lo, hi) if not gaps[g][0] and not gaps[g][2])
    assert n_empty >= len(E), (n_empty, len(E))
    for g in range(lo, hi):
        used = len(gaps[g][0]) + len(gaps[g][2])
        avail = [k for k in range(si, len(S)) if S[k][0] in epos and epos[S[k][0]] < g]
        navail = 0
        for k in range(si, len(S)):
            if S[k][0] in epos and epos[S[k][0]] < g:
                navail += 1
            else:
                break
        if used == 0:
            empty_left = sum(1 for q in range(g, hi) if not gaps[q][0] and not gaps[q][2])
            must_exp = empty_left <= len(E) - ei
            if ei < len(E) and (must_exp or navail < 4):
                gaps[g][1].append(E[ei])
                epos[ei] = g
                ei += 1
                continue
        free = 2 - used
        while free > 0 and navail > 0:
            gaps[g][1].append(S[si][1])
            si += 1
            navail -= 1
            free -= 1
    assert ei == len(E) and si == len(S), (ei, len(E), si, len(S))


def gen_stage(A, sg, extra=None, first=False):
    nb, cb = (sg + 1) & 1, sg & 1
    M = []
    for kt in range(2):
        for qt in range(4):
            d = vr(sreg(nb, qt, kt), 4)
            for u in range(6):
                M.append(mfma(d, ar(KF+kt*24+u*4, 4), qf(qt, u), vr(NM+qt*4, 4) if u == 0 else d))
    for dt in range(12):
        for qt in range(4):
            o = ar(oacc(dt, qt), 4)
            M.append(mfma(o, vr(VF+(dt % 8)*4, 4), vr(sreg(cb, qt, 0), 4), "0" if first else o))
    gaps = [[[], [], []] for _ in range(96)]
    for u in range(6):
        gaps[1+3*u][0].append(k_read((sg+1) % 4, 1, u))
    gaps[23][2].append("s_waitcnt lgkmcnt(0)")
    for j in range(24):
        gaps[26+2*j][0].append(v_read(sg, j // 2, j & 1))
    for g in (47, 59, 71):
        gaps[g][2].append("s_waitcnt lgkmcnt(5)")
    gaps[79][2].append("s_waitcnt vmcnt(12) lgkmcnt(0)")
    gaps[79][2].append("s_barrier")
    for u in range(6):
        gaps[81+u][0].append(k_read((sg+2) % 4, 0, u))
    gaps[95][2].append("s_waitcnt lgkmcnt(0)")
    dpos = CFG.get("dpos", 1)
    P = [3, 9, 15, 21, 27, 33] if dpos == 1 else [3, 6, 9, 12, 15, 18]
    gaps[1][2].append(f"s_add_u32 m0, s29, {KREG + sg*12288}")
    for n in range(3):
        gaps[P[n]][0].append(f"buffer_load_dwordx4 v{DK+n}, s[16:19], s30 offen offset:{1024*n} lds")
    gaps[16 if dpos == 1 else 10][2].append(f"s_add_u32 m0, s29, {VREG + ((sg+3) % 4)*12288}")
    for n in range(3):
        gaps[P[3+n]][0].append(f"buffer_load_dwordx4 v{DV+n}, s[20:23], s30 offen offset:{1024*n} lds")
    gaps[36][2].append("s_add_u32 s30, s30, 12288")
    if extra:
        for g, s in extra:
            gaps[g][2].append(s)
    E, S = softmax_ops(cb, (2, 3))
    fill_valu(gaps, 0, 47, E, S)
    E, S = softmax_ops(nb, (0, 1))
    fill_valu(gaps, 48, 96, E, S)
    abl = CFG.get("abl", 0)
    for g in range(96):
        A(M[g])
        for s in gaps[g][0] + gaps[g][1] + gaps[g][2]:
            if abl & 1 and s.startswith("ds_read_b128"):
                continue
            if abl & 2 and s.startswith("ds_read_b64"):
                continue
            if abl & 4 and s.startswith("v_exp"):
                continue
            if abl & 8 and s.startswith("v_add"):
                continue
            if abl & 16 and s.startswith("v_cvt"):
                continue
            if abl & 32 and s.startswith("buffer_load"):
                continue
            if abl & 64 and s.startswith("s_barrier"):
                continue
            A(s)


def gen_tail(A, sg):
    cb = sg & 1
    for j in range(16):
        A(v_read(sg, j // 2, j & 1))
        if j == 11:
            A("s_waitcnt lgkmcnt(4)")
    E, S = softmax_ops(cb, (2, 3))
    for e in E:
        A(e)
    A("s_nop 0")
    for _, s in S:
        A(s)
    A("s_waitcnt lgkmcnt(0)")
    A("s_nop 1")
    for dt in range(12):
        if dt == 8:
            A("s_waitcnt lgkmcnt(0)")
        for qt in range(4):
            o = ar(oacc(dt, qt), 4)
            A(mfma(o, vr(VF+(dt % 8)*4, 4), vr(sreg(cb, qt, 0), 4), o))
            if 1 <= dt <= 4 and qt < 2:
                A(v_read(sg, dt + 7, qt))


def xlane_reduce(A, op, regs, tmp):
    for swap in ("v_permlane32_swap_b32", "v_permlane16_swap_b32"):
        for i, r in enumerate(regs):
            A(f"v_mov_b32 v{tmp+i}, v{r}")
        A("s_nop 1")
        for i, r in enumerate(regs):
            A(f"{swap} v{tmp+i}, v{r}")
        A("s_nop 1")
        for i, r in enumerate(regs):
            A(f"{op} v{r}, v{r}, v{tmp+i}")


class Track:
    def __init__(self, name, init=()):
        self.name, self.q, self.done = name, list(init), 0

    def issue(self, tag):
        self.q.append(tag)

    def need(self, tags):
        idx = max((len(self.q) - 1 - self.q[::-1].index(t)) for t in tags)
        if idx < self.done:
            return None
        self.done = idx + 1
        return len(self.q) - 1 - idx

    def drain(self):
        self.done = len(self.q)


XREG = 110592
CREG = 143360
PREG = 98304
FREG = 147456
K1_LDS = 147456 + 64


def gen_k1(A, cfg):
    name = "k1_kernel"
    kernel_begin(A, name)
    A("s_cmp_ge_u32 s2, 256")
    A("s_cbranch_scc1 K1_END")
    ST = Stamps(A, cfg.get("stamp", 0), 1)
    ST()
    A("s_load_dwordx2 s[34:35], s[0:1], 0")
    A("s_load_dwordx4 s[44:47], s[0:1], 24")
    A("s_load_dwordx4 s[48:51], s[0:1], 48")
    A("s_load_dwordx4 s[40:43], s[0:1], 8")
    A("s_load_dwordx2 s[58:59], s[0:1], 64")
    A("s_load_dwordx2 s[52:53], s[0:1], 88")
    A("v_lshrrev_b32 v1, 6, v0")
    A("v_and_b32 v0, 63, v0")
    A("v_readfirstlane_b32 s28, v1")
    A("s_and_b32 s31, s2, 7")
    A("s_lshr_b32 s32, s2, 3")
    A("s_lshl_b32 s31, s31, 2")
    A("s_and_b32 s33, s32, 3")
    A("s_add_u32 s31, s31, s33")
    A("s_lshr_b32 s32, s32, 2")
    A("s_mul_i32 s29, s28, 3072")
    XD, XR, WD, GD, CQ, CG, CC = 14, 16, 18, 21, 24, 26, 27
    A("v_lshrrev_b32 v36, 3, v0")
    A("v_mul_u32_u24 v37, 1280, v36")
    A("v_lshrrev_b32 v38, 4, v0")
    A("v_and_b32 v39, 7, v0")
    A("v_xor_b32 v39, v39, v38")
    A(f"v_lshl_add_u32 v{XD}, v39, 4, v37")
    A("v_xor_b32 v39, 4, v39")
    A(f"v_lshl_add_u32 v{XD+1}, v39, 4, v37")
    for n in range(3):
        A(f"v_add_u32 v40, {64*n}, v0")
        A(f"v_mul_u32_u24 v{44+n}, 2731, v40")
        A(f"v_lshrrev_b32 v{44+n}, 16, v{44+n}")
        A(f"v_mul_u32_u24 v41, 24, v{44+n}")
        A("v_sub_u32 v41, v40, v41")
        A(f"v_and_b32 v42, 2, v{44+n}")
        A("v_lshlrev_b32 v42, 1, v42")
        A("v_xor_b32 v41, v41, v42")
        A("s_lshl_b32 s33, s28, 4")
        A(f"v_add_u32 v42, s33, v{44+n}")
        A("v_mul_u32_u24 v42, 12288, v42")
        A("v_lshl_add_u32 v42, v41, 4, v42")
        A(f"v_subrev_u32 v{WD+n}, {1024*n}, v42")
        A("v_mul_u32_u24 v41, 10923, v40")
        A("v_lshrrev_b32 v41, 16, v41")
        A("v_mul_u32_u24 v42, 6, v41")
        A("v_sub_u32 v42, v40, v42")
        A("s_and_b32 s33, s28, 1")
        A("s_lshl_b32 s33, s33, 5")
        A("v_add_u32 v41, s33, v41")
        A("v_mul_u32_u24 v41, 3072, v41")
        A("v_lshl_add_u32 v41, v42, 4, v41")
        A(f"v_subrev_u32 v{GD+n}, {1024*n}, v41")
    rot = cfg.get("k1rot", 0)
    if rot == 0:
        A("s_mov_b32 s56, 0")
    elif rot == 1:
        A("s_add_u32 s56, s31, s32")
        A("s_and_b32 s56, s56, 1")
        A("s_mul_i32 s56, s56, 5")
    else:
        A("s_and_b32 s56, s31, 3")
        A("s_mul_i32 s56, s56, 5")
        A("s_lshr_b32 s56, s56, 1")
        A("s_add_u32 s56, s56, s32")
        A("s_cmp_ge_u32 s56, 10")
        A("s_cselect_b32 s57, 10, 0")
        A("s_sub_u32 s56, s56, s57")
    A("s_lshl_b32 s36, s56, 7")
    A(f"s_mul_i32 s38, s56, {64*3072}")
    A("s_lshl_b32 s37, s38, 2")
    A("s_mov_b32 s39, 0")
    A("s_lshl_b32 s57, s28, 13")
    A(f"s_add_u32 s57, s57, {XREG}")
    A("s_lshl_b32 s33, s32, 2")
    A("s_add_u32 s33, s33, s28")
    A(f"s_mul_i32 s56, s33, {64*1280}")
    A("s_waitcnt lgkmcnt(0)")
    srd(A, 4, 34, off_sgpr=56, size=64*1280)
    A("s_mul_i32 s34, s31, 384")
    A(f"s_sub_u32 s35, {640*12288}, s34")
    srd(A, 8, 44, off_sgpr=34, size_sgpr=35)
    A("s_cmp_lt_u32 s28, 2")
    A("s_cselect_b32 s44, s48, s50")
    A("s_cselect_b32 s45, s49, s51")
    A("s_mul_i32 s34, s31, 96")
    A(f"s_sub_u32 s35, {640*3072}, s34")
    srd(A, 12, 44, off_sgpr=34, size_sgpr=35)

    GA, SUM, GRM, CAC, ONE, WF, CF, XF = 0, 96, 112, 128, 148, 152, 176, 192
    QA = 64
    SLOT = 36864

    def qacc(t, qt):
        return QA + ((t >> 1)*4 + qt)*8 + (t & 1)*4

    def x_dma(n):
        return [("s", f"s_add_u32 m0, s57, {1024*n}"), ("s", f"s_add_u32 s35, s36, {10240*n}"),
                ("d", f"buffer_load_dwordx4 v{XD+(n&1)}, s[4:7], s35 offen lds")]
    xadv = [("s", "s_add_u32 s36, s36, 128"), ("s2", "s_cmp_eq_u32 s36, 1280", "s_cselect_b32 s36, 0, s36")]

    def x_read(st, k2, qt):
        return f"ds_read_b128 {ar(XF+st*32+(k2*4+qt)*4, 4)}, v{XR+k2} offset:{qt*2048}"

    def w_dma():
        L = []
        L.append(("s", "s_lshl_b32 s34, s29, 1"))
        L.append(("s", "s_add_u32 m0, s39, s34"))
        for n in range(3):
            L.append(("d", f"buffer_load_dwordx4 v{WD+n}, s[8:11], s37 offen offset:{1024*n} lds"))
        L.append(("s", "s_add_u32 m0, m0, 3072"))
        L.append(("s", f"s_add_u32 s35, s37, {8*12288}"))
        for n in range(3):
            L.append(("d", f"buffer_load_dwordx4 v{WD+n}, s[8:11], s35 offen offset:{1024*n} lds"))
        L.append(("s", "s_add_u32 s34, s29, 24576"))
        L.append(("s", "s_add_u32 m0, s39, s34"))
        for n in range(3):
            L.append(("d", f"buffer_load_dwordx4 v{GD+n}, s[12:15], s38 offen offset:{1024*n} lds"))
        L.append(("s", f"s_add_u32 s38, s38, {64*3072}"))
        if rot:
            L.append(("s2", f"s_cmp_eq_u32 s38, {640*3072}", "s_cselect_b32 s38, 0, s38"))
        L.append(("s", "s_lshl_b32 s37, s38, 2"))
        L.append(("s", f"s_add_u32 s39, s39, {SLOT}"))
        L.append(("s2", f"s_cmp_eq_u32 s39, {3*SLOT}", "s_cselect_b32 s39, 0, s39"))
        return L

    def emit_plain(L):
        prev = None
        for e in L:
            if e[0] == "d" and prev is not None and "m0" in prev:
                A("s_nop 0")
            for s in e[1:]:
                A(s)
            prev = e[-1]

    def w_reads(t):
        L = []
        for k2 in range(2):
            for rd in range(2):
                d = ar(WF + (t % 3)*8 + k2*4 + 2*rd, 2)
                if t < 12:
                    u, par = t >> 1, t & 1
                    L.append(f"ds_read_b64_tr_b16 {d}, v{CQ+(u&1)} offset:{k2*32*384+rd*4*384+128*(u>>1)+8*par}")
                else:
                    tt = t - 12
                    L.append(f"ds_read_b64_tr_b16 {d}, v{CG} offset:{24576+(tt//3)*6144+k2*32*96+rd*4*96+32*(tt%3)}")
        return L

    def c_reads(p):
        L = []
        for k2 in range(2):
            for rd in range(2):
                d = ar(CF + k2*4 + 2*rd, 2)
                if p < 3:
                    L.append(f"ds_read_b64_tr_b16 {d}, v{CC} offset:{k2*32*384+rd*4*384+128*p}")
                else:
                    L.append(f"ds_read_b64_tr_b16 {d}, v{CC+p-2} offset:{24576+k2*32*96+rd*4*96}")
        return L

    for n in range(8):
        emit_plain(x_dma(n))
    emit_plain(xadv)
    emit_plain(w_dma())
    emit_plain(w_dma())
    A(f"s_mul_i32 s34, s33, {4*RT_STRIDE}")
    srd(A, 24, 52, off_sgpr=34, off_imm=OF_OFF, size=4*RT_STRIDE)
    A("s_mul_i32 s34, s31, 786432")
    srd(A, 16, 40, off_sgpr=34, size=786432)
    srd(A, 20, 42, off_sgpr=34, size=786432)
    A("s_cmp_ge_u32 s2, 192")
    A("s_cselect_b32 s44, s58, s46")
    A("s_cselect_b32 s45, s59, s47")
    A("s_cselect_b32 s34, 192, 0")
    A("s_sub_u32 s34, s2, s34")
    A("s_min_u32 s34, s34, 191")
    A("s_mul_i32 s34, s34, 40960")
    A("s_cmp_lt_u32 s2, 240")
    A("s_cselect_b32 s35, 40960, 0")
    srd(A, 40, 44, off_sgpr=34, size_sgpr=35)
    A("s_mul_i32 s34, s2, 40960")
    srd(A, 48, 52, off_sgpr=34, off_imm=WP_OFF, size_sgpr=35)
    A("v_bfe_u32 v39, v0, 2, 2")
    A("v_and_b32 v40, 3, v0")
    A("v_and_b32 v41, 15, v0")
    for n in range(3):
        A("s_lshl_b32 s34, s28, 3")
        A(f"v_add_u32 v42, s34, v{44+n}")
        A("v_bfe_u32 v43, v42, 1, 3")
        A("v_xor_b32 v43, v43, v0")
        A("v_lshlrev_b32 v43, 4, v43")
        A("v_add_u32 v43, s29, v43")
        A(f"v_add_u32 v{DK+n}, 12288, v43")
        A("v_and_b32 v43, 6, v42")
        A("v_xor_b32 v43, v43, v0")
        A("v_lshlrev_b32 v43, 4, v43")
        A(f"v_add_u32 v{DV+n}, s29, v43")
    A("v_lshl_add_u32 v42, v38, 3, v39")
    A("v_mul_u32_u24 v43, 384, v42")
    A("v_lshl_add_u32 v43, v40, 4, v43")
    A("v_lshrrev_b32 v44, 1, v39")
    A(f"v_lshl_add_u32 v{CQ}, v44, 6, v43")
    A("v_xor_b32 v45, 1, v44")
    A(f"v_lshl_add_u32 v{CQ+1}, v45, 6, v43")
    A("s_lshr_b32 s34, s28, 1")
    A("v_xor_b32 v45, s34, v44")
    A(f"v_lshl_add_u32 v{CC}, v45, 6, v43")
    A("s_and_b32 s35, s28, 1")
    A("s_lshl_b32 s34, s35, 3")
    A(f"v_add_u32 v{CC}, s34, v{CC}")
    A("v_mul_u32_u24 v43, 96, v42")
    A(f"v_lshl_add_u32 v{CG}, v40, 3, v43")
    A("s_lshl_b32 s34, s28, 5")
    A("s_cmp_eq_u32 s28, 3")
    A("s_cselect_b32 s34, 6144, s34")
    A(f"v_add_u32 v{CC+1}, s34, v{CG}")
    A("s_lshl_b32 s34, s35, 5")
    A(f"s_add_u32 s34, s34, {6144+32}")
    A(f"v_add_u32 v{CC+2}, s34, v{CG}")
    A("v_bfe_u32 v44, v41, 1, 3")
    A("v_xor_b32 v44, v44, v38")
    A("v_xor_b32 v45, 4, v44")
    A("v_lshlrev_b32 v43, 7, v41")
    A("v_add_u32 v43, s57, v43")
    A(f"v_lshl_add_u32 v{XR}, v44, 4, v43")
    A(f"v_lshl_add_u32 v{XR+1}, v45, 4, v43")
    A("v_mul_u32_u24 v43, 384, v41")
    A(f"v_lshl_add_u32 v{VK}, v44, 4, v43")
    A(f"v_lshl_add_u32 v{VK+1}, v45, 4, v43")
    A("v_lshrrev_b32 v42, 2, v0")
    A("v_mul_u32_u24 v43, 384, v42")
    A(f"v_add_u32 v43, {VREG}, v43")
    A("v_and_b32 v44, 1, v40")
    A("v_lshl_add_u32 v43, v44, 3, v43")
    A("v_and_b32 v44, 6, v42")
    A("v_lshrrev_b32 v45, 1, v40")
    A("v_xor_b32 v44, v44, v45")
    for j in range(4):
        A(f"v_xor_b32 v45, {2*j}, v44")
        A(f"v_lshl_add_u32 v{VV+j}, v45, 4, v43")
    PD = 30
    A("s_mul_i32 s34, s28, 320")
    for n in range(5):
        A(f"v_add_u32 v43, {64*n}, v0")
        A("v_mul_u32_u24 v44, 3277, v43")
        A("v_lshrrev_b32 v44, 16, v44")
        A("v_mul_u32_u24 v45, 20, v44")
        A("v_sub_u32 v45, v43, v45")
        A("v_mul_u32_u24 v44, 1280, v44")
        A("v_lshl_add_u32 v44, v45, 4, v44")
        A(f"v_add_u32 v{PD+n}, s34, v44")
    PR = 35
    A("v_mul_u32_u24 v43, 320, v42")
    A("v_lshl_add_u32 v43, v40, 3, v43")
    A("s_mul_i32 s34, s28, 10240")
    A(f"s_add_u32 s58, s34, {PREG}")
    A(f"v_add_u32 v{PR}, s58, v43")
    for i in range(ONE):
        A(f"v_accvgpr_write_b32 a{i}, 0")
    A("v_mov_b32 v43, 0x3f803f80")
    for i in range(4):
        A(f"v_accvgpr_write_b32 a{ONE+i}, v43")
    for i in range(192):
        A(f"v_mov_b32 v{QA+i}, 0")
    A("s_waitcnt vmcnt(18)")
    for k2 in range(2):
        for qt in range(4):
            A(x_read(0, k2, qt))
    A("s_waitcnt lgkmcnt(0)")
    for n in range(8):
        emit_plain(x_dma(n))
    emit_plain(xadv)
    A("s_waitcnt vmcnt(17)")
    A("s_barrier")
    ST()
    for s in w_reads(0) + w_reads(1):
        A(s)
    A("s_mov_b32 s54, 5")
    A("s_mov_b32 s33, 0")
    A(f"s_mov_b32 s55, {SLOT}")
    A(f"s_mov_b32 s56, {-2*SLOT & 0xffffffff}")
    A.raw(".p2align 5")
    A.label("K1_GEMM")
    for st in range(2):
        M = []
        blk = []
        xf = lambda k2, qt: ar(XF+st*32+(k2*4+qt)*4, 4)
        stat_blocks = [0, 1, 3, 4, 6, 7, 9, 10]
        for t in range(18):
            blk.append(len(M))
            for qt in range(4):
                acc = vr(qacc(t, qt), 4) if t < 12 else ar(GA + ((t-12)*4+qt)*4, 4)
                for k2 in range(2):
                    M.append((mfma(acc, ar(WF+(t % 3)*8+k2*4, 4), xf(k2, qt), acc), [f"w{t}"]))
            if t % 3 == 2 and t < 15:
                p = t // 3
                for k2 in range(2):
                    M.append((mfma(ar(CAC+4*p, 4), ar(CF+k2*4, 4), ar(ONE, 4), ar(CAC+4*p, 4)), [f"c{p}"]))
            if t in stat_blocks:
                i = stat_blocks.index(t)
                k2, qt = i >> 2, i & 3
                M.append((mfma(ar(SUM+4*qt, 4), ar(ONE, 4), xf(k2, qt), ar(SUM+4*qt, 4)), []))
                M.append((mfma(ar(GRM+4*qt, 4), xf(k2, qt), xf(k2, qt), ar(GRM+4*qt, 4)), []))
        NG = len(M)
        blk.append(NG)
        front = [None]*NG
        back = [[] for _ in range(NG)]
        resv = set(b - 1 for b in blk[1:])

        def room(g):
            return 2 - (front[g] is not None) - len(back[g]) - (g in resv)

        def put_front(g, e):
            while front[g] is not None or room(g) < 1:
                g += 1
            front[g] = e
            return g

        def put_back(g, ss):
            while room(g) < len(ss):
                g += 1
            back[g] += ss
            return g
        for t in range(18):
            for k, s_ in enumerate(w_reads((t+2) % 18)):
                front[blk[t]+k] = ("l", s_, f"w{(t+2) % 18}" + ("n" if t >= 16 else ""), None)
        for p in range(5):
            for k, s_ in enumerate(c_reads(p)):
                front[blk[3*p]+4+k] = ("l", s_, f"c{p}", None)
        xr_gap = []
        for qt in range(4):
            g = blk[5+2*qt] + 4
            for k2 in range(2):
                g = put_front(g, ("l", x_read(st ^ 1, k2, qt), f"x{qt}", ("vm", f"X{qt}")))
            xr_gap.append(g)
        g = 0
        last_d = -10
        nd = 0
        for e in w_dma():
            if e[0] == "d":
                g = put_front(max(g + 1, last_d + 7), ("d", e[1], f"W{nd}", None))
                last_d = g
                nd += 1
            else:
                g = put_back(g, list(e[1:]))
        assert g < blk[9], (g, blk)
        for n in range(8):
            g = max(g, blk[8 + 2*(n >> 1)])
            for e in x_dma(n):
                if e[0] == "d":
                    g = put_front(max(g + 1, last_d + 5), ("d", e[1], f"X{n>>1}", ("lg", f"x{n>>1}")))
                    print("xdma", n, g, blk, file=sys.stderr) if cfg.get("v") else None
                    last_d = g
                else:
                    g = put_back(g, list(e[1:]))
        for e in xadv:
            g = put_back(g, list(e[1:]))
        gb = blk[16] - 1
        g = put_back(blk[12] + 1, [f"s_add_u32 s33, s33, {SLOT}"])
        g = put_back(g + 1, [f"s_cmp_eq_u32 s33, {3*SLOT}", "s_cselect_b32 s59, s56, s55"])
        g = put_back(g + 1, [f"s_cmp_eq_u32 s33, {3*SLOT}", "s_cselect_b32 s33, 0, s33"])
        assert g < gb
        LG = Track("lgkm", ["w0"]*4 + ["w1"]*4)
        VM = Track("vm", [f"W{i}" for i in range(9)] + [f"X{i>>1}" for i in range(8)])
        prevW8 = 8
        for g in range(NG):
            txt, needs = M[g]
            if needs:
                n_ = LG.need(needs)
                if n_ is not None:
                    A(f"s_waitcnt lgkmcnt({n_})")
            A(txt)
            if front[g] is not None:
                kind, s_, tag, nd_ = front[g]
                if nd_:
                    n_ = (VM if nd_[0] == "vm" else LG).need([nd_[1]])
                    if n_ is not None:
                        A(f"s_waitcnt {'vmcnt' if nd_[0] == 'vm' else 'lgkmcnt'}({n_})")
                ga = cfg.get("gabl", 0)
                if not ((ga & 2 and kind == "d") or (ga & 4 and kind == "l")):
                    A(s_)
                (LG if kind == "l" else VM).issue(tag)
            for s_ in back[g]:
                A(s_)
            if g == gb:
                assert VM.done > prevW8
                A("s_waitcnt lgkmcnt(0)")
                LG.drain()
                A("s_barrier")
                for r_ in (CQ, CQ+1, CG, CC, CC+1, CC+2):
                    A(f"v_add_u32 v{r_}, s59, v{r_}")
        assert [t for t in VM.q[17:]] == [f"W{i}" for i in range(9)] + [f"X{i>>1}" for i in range(8)], VM.q
        assert LG.q[LG.done:] == ["w0n"]*4 + ["w1n"]*4 or LG.q[-8:] == ["w0n"]*4 + ["w1n"]*4
    A("s_sub_u32 s54, s54, 1")
    A("s_cmp_lg_u32 s54, 0")
    A("s_cbranch_scc1 K1_GEMM")
    ST()
    A("s_mov_b32 s55, 0")
    A("v_lshrrev_b32 v36, 4, v0")
    A("v_lshlrev_b32 v36, 4, v36")
    A(f"v_add_u32 v36, {CREG}, v36")
    A("s_lshl_b32 s34, s28, 6")
    A("v_add_u32 v37, s34, v36")
    A("s_and_b32 s34, s34, 64")
    A("v_add_u32 v38, s34, v36")
    for p in range(4):
        A(f"ds_write_b128 v37, {ar(CAC+4*p, 4)} offset:{256*p}")
    A(f"ds_write_b128 v38, {ar(CAC+16, 4)} offset:1024")
    A("s_waitcnt vmcnt(0) lgkmcnt(0)")

    def kv_start():
        A("s_barrier")
        order = [("K", 0), ("K", 1), ("V", 0), ("K", 2), ("V", 1), ("K", 3), ("V", 2)]
        for kind, i in order:
            A(f"s_add_u32 m0, s29, {(KREG if kind == 'K' else VREG) + i*12288}")
            if kind == "K":
                if i == 0:
                    for n in range(3):
                        A(f"v_subrev_u32 v{37+n}, 12288, v{DK+n}")
                    for n in range(3):
                        A(f"buffer_load_dwordx4 v{37+n}, s[16:19], 0 offen offset:{1024*n} lds")
                else:
                    A(f"s_mov_b32 s30, {(i-1)*12288}")
                    for n in range(3):
                        A(f"buffer_load_dwordx4 v{DK+n}, s[16:19], s30 offen offset:{1024*n} lds")
            else:
                A(f"s_mov_b32 s30, {i*12288}")
                for n in range(3):
                    A(f"buffer_load_dwordx4 v{DV+n}, s[20:23], s30 offen offset:{1024*n} lds")
        A(f"s_mov_b32 s30, {3*12288}")
    kv_start()
    A(f"s_mov_b32 s34, {16*1280}")
    for n in range(10):
        A(f"s_add_u32 m0, s58, {1024*n}")
        A("s_nop 0")
        A(f"buffer_load_dwordx4 v{PD+n%5}, s[40:43], {'0' if n < 5 else 's34'} offen lds")
    CT = 48
    for i in range(4):
        A(f"ds_read_b128 v[{CT+4*i}:{CT+4*i+3}], v36 offset:{64*(11-(i^1))}")
    PA, PB = 14, 22
    G0 = 40
    TT = 44
    for qt in range(4):
        A(f"v_accvgpr_read_b32 v{G0+qt}, a{GRM+4*qt}")
    A("v_and_b32 v37, 3, v0")
    for r in range(1, 4):
        A(f"v_cmp_eq_u32 vcc, {r}, v37")
        for qt in range(4):
            A(f"v_accvgpr_read_b32 v{TT+qt}, a{GRM+4*qt+r}")
        for qt in range(4):
            A(f"v_cndmask_b32 v{G0+qt}, v{G0+qt}, v{TT+qt}, vcc")
    A("v_bfe_u32 v37, v0, 2, 2")
    A("v_lshrrev_b32 v38, 4, v0")
    A("v_cmp_eq_u32 vcc, v37, v38")
    A("s_nop 1")
    for qt in range(4):
        A(f"v_cndmask_b32 v{G0+qt}, 0, v{G0+qt}, vcc")
    xlane_reduce(A, "v_add_f32", [G0+q for q in range(4)], TT)
    A(f"s_mov_b32 s34, {hex(f2u(1.0/640))}")
    for qt in range(4):
        A(f"v_accvgpr_read_b32 v{TT+qt}, a{SUM+4*qt}")
    for qt in range(4):
        A(f"v_mul_f32 v{TT+qt}, s34, v{TT+qt}")
        A(f"v_mul_f32 v{G0+qt}, s34, v{G0+qt}")
    for qt in range(4):
        A(f"v_fma_f32 v{G0+qt}, -v{TT+qt}, v{TT+qt}, v{G0+qt}")
    for qt in range(4):
        A(f"v_max_f32 v{G0+qt}, 0, v{G0+qt}")
    for qt in range(4):
        A(f"v_cvt_pk_bf16_f32 v{G0+qt}, v{TT+qt}, v{G0+qt}")
    for qt in range(4):
        A(f"v_lshlrev_b32 v{TT+qt}, 16, v{G0+qt}")
        A(f"v_and_b32 v{G0+qt}, 0xffff0000, v{G0+qt}")
    for qt in range(4):
        A(f"v_sub_f32 v{PA+2*qt}, 0, v{TT+qt}")
        A(f"v_add_f32 v{G0+qt}, {hex(f2u(1e-5))}, v{G0+qt}")
    for qt in range(4):
        A(f"v_cvt_pk_bf16_f32 v{G0+qt}, v{G0+qt}, v{G0+qt}")
    for qt in range(4):
        A(f"v_lshlrev_b32 v{G0+qt}, 16, v{G0+qt}")
    for qt in range(4):
        A(f"v_sqrt_f32 v{G0+qt}, v{G0+qt}")
    for qt in range(4):
        A(f"v_cvt_pk_bf16_f32 v{G0+qt}, v{G0+qt}, v{G0+qt}")
    for qt in range(4):
        A(f"v_lshlrev_b32 v{G0+qt}, 16, v{G0+qt}")
    for qt in range(4):
        A(f"v_rcp_f32 v{TT+qt}, v{G0+qt}")
    for qt in range(4):
        A(f"v_mul_f32 v{PB+2*qt+1}, v{G0+qt}, v{G0+qt}")
    for qt in range(4):
        A(f"v_mul_f32 v{PA+2*qt+1}, {hex(f2u(LOG2E * 192 ** -0.5))}, v{TT+qt}")
        A(f"v_mul_f32 v{PB+2*qt}, {hex(f2u(-LOG2E))}, v{TT+qt}")
    for u in range(5, -1, -1):
        cb_ = CT + 8*((5-u) & 1)
        A("s_waitcnt lgkmcnt(2)" if u > 0 else "s_waitcnt lgkmcnt(0)")
        for qt in range(3, -1, -1):
            B = QA + (u*4+qt)*8
            pa = vr(PA+2*qt, 2)
            for p in range(4):
                A(f"v_pk_fma_f32 {vr(B+2*p, 2)}, {pa}, {vr(cb_+2*p, 2)}, {vr(B+2*p, 2)} op_sel_hi:[0,1,1]")
            for p in range(4):
                A(f"v_pk_mul_f32 {vr(B+2*p, 2)}, {pa}, {vr(B+2*p, 2)} op_sel:[1,0]")
            for p in range(3, -1, -1):
                A(f"v_cvt_pk_bf16_f32 v{QF+(u*4+qt)*4+p}, v{B+2*p}, v{B+2*p+1}")
        if u >= 2:
            for i in range(2):
                A(f"ds_read_b128 v[{cb_+4*i}:{cb_+4*i+3}], v36 offset:{64*(2*(u-2)+i)}")
    HC = 64
    for t in range(6):
        A(f"ds_read_b128 v[{HC+4*t}:{HC+4*t+3}], v36 offset:{64*(12+t)}")
    A("v_lshlrev_b32 v40, 4, v0")
    for qt in range(1, 4):
        A(f"v_add_u32 v{40+qt}, {qt*RT_STRIDE}, v40")
    for t in range(3):
        A("s_mul_i32 s35, s31, 3")
        A(f"s_add_u32 s35, s35, {t}")
        A("s_and_b32 s36, s35, 1")
        A("s_lshl_b32 s36, s36, 3")
        A("s_lshr_b32 s35, s35, 1")
        A("s_add_u32 s35, s35, 192")
        A("s_lshl_b32 s35, s35, 10")
        A(f"s_add_u32 s{37+t}, s35, s36")
    A("s_waitcnt lgkmcnt(0)")
    cnt = 0
    stf = cfg.get("stflag", "")
    for t in range(3):
        for qt in range(4):
            G = 96 + (cnt % 4)*12
            U, T0 = G + 4, G + 8
            cnt += 1
            pa, pb = vr(PA+2*qt, 2), vr(PB+2*qt, 2)
            for r in range(4):
                A(f"v_accvgpr_read_b32 v{G+r}, a{GA+(t*4+qt)*4+r}")
            for r in range(4):
                A(f"v_accvgpr_read_b32 v{U+r}, a{GA+((t+3)*4+qt)*4+r}")
            for p in range(2):
                A(f"v_pk_fma_f32 {vr(G+2*p, 2)}, {pa}, {vr(HC+4*t+2*p, 2)}, {vr(G+2*p, 2)} op_sel_hi:[0,1,1]")
            for p in range(2):
                A(f"v_pk_fma_f32 {vr(U+2*p, 2)}, {pa}, {vr(HC+4*(t+3)+2*p, 2)}, {vr(U+2*p, 2)} op_sel_hi:[0,1,1]")
            for p in range(2):
                A(f"v_pk_mul_f32 {vr(T0+2*p, 2)}, {pb}, {vr(G+2*p, 2)} op_sel_hi:[0,1]")
            for r in range(4):
                A(f"v_exp_f32 v{T0+r}, v{T0+r}")
            for p in range(2):
                A(f"v_pk_mul_f32 {vr(G+2*p, 2)}, {vr(G+2*p, 2)}, {vr(U+2*p, 2)}")
            for p in range(2):
                A(f"v_pk_fma_f32 {vr(T0+2*p, 2)}, {vr(T0+2*p, 2)}, {pb}, {pb} op_sel:[0,1,1]")
            for r in range(4):
                A(f"v_rcp_f32 v{T0+r}, v{T0+r}")
            A("s_nop 0")
            for p in range(2):
                A(f"v_pk_mul_f32 {vr(G+2*p, 2)}, {vr(G+2*p, 2)}, {vr(T0+2*p, 2)}")
            for p in range(2):
                A(f"v_cvt_pk_bf16_f32 v{G+p}, v{G+2*p}, v{G+2*p+1}")
            A(f"buffer_store_dwordx2 v[{G}:{G+1}], v{40+qt}, s[24:27], s{37+t} offen{STF()}")
    A("s_waitcnt vmcnt(12)")
    for ct in range(10):
        b = 96 + 4*ct if ct >= 4 else 48 + 4*ct
        if ct == 4:
            A("s_nop 1")
        A(f"ds_read_b64_tr_b16 v[{b}:{b+1}], v{PR} offset:{32*ct}")
        A(f"ds_read_b64_tr_b16 v[{b+2}:{b+3}], v{PR} offset:{32*ct+16*320}")
        if ct == 5:
            A("s_waitcnt lgkmcnt(4)")
    A("s_mul_i32 s34, s28, 10240")
    A("s_add_u32 s35, s34, 4096")
    A("s_add_u32 s36, s34, 8192")
    A("s_waitcnt lgkmcnt(0)")
    for ct in range(10):
        b = 96 + 4*ct if ct >= 4 else 48 + 4*ct
        A(f"buffer_store_dwordx4 v[{b}:{b+3}], v40, s[48:51], s{34+ct//4} offen offset:{1024*(ct%4)}{STF()}")
    for i in range(16):
        A(f"v_mov_b32 v{NM+i}, 0")
    A.label("K1_ATT")
    for i in range(8):
        A(f"v_mov_b32 v{LS+i}, 0")
    A("s_barrier")
    for kt in range(2):
        for u in range(6):
            A(k_read(0, kt, u))
    A("s_waitcnt lgkmcnt(6)")
    for kt in range(2):
        if kt == 1:
            A("s_waitcnt lgkmcnt(0)")
        for qt in range(4):
            d = vr(sreg(0, qt, kt), 4)
            for u in range(6):
                A(mfma(d, ar(KF+kt*24+u*4, 4), qf(qt, u), vr(NM+qt*4, 4) if u == 0 else d))
    A("s_barrier")
    for u in range(6):
        A(k_read(1, 0, u))
    A("s_nop 0")
    A("s_cmp_lg_u32 s55, 0")
    A("s_cbranch_scc1 K1_SKIPMAX")
    for qt in range(4):
        b = sreg(0, qt, 0)
        A(f"v_max3_f32 v{30+qt}, v{b}, v{b+1}, v{b+2}")
        A(f"v_max3_f32 v{30+qt}, v{30+qt}, v{b+3}, v{b+4}")
        A(f"v_max3_f32 v{30+qt}, v{30+qt}, v{b+5}, v{b+6}")
        A(f"v_max_f32 v{30+qt}, v{30+qt}, v{b+7}")
    xlane_reduce(A, "v_max_f32", [30, 31, 32, 33], 34)
    for qt in range(4):
        b = sreg(0, qt, 0)
        for r in range(4):
            A(f"v_sub_f32 v{NM+qt*4+r}, 0, v{30+qt}")
        for e in range(8):
            A(f"v_sub_f32 v{b+e}, v{b+e}, v{30+qt}")
    A.label("K1_SKIPMAX")
    E, S = softmax_ops(0, (0, 1))
    for e in E:
        A(e)
    A("s_nop 0")
    for _, s in S:
        A(s)
    ST()
    A("s_mov_b32 s54, 15")
    A("s_waitcnt lgkmcnt(0)")
    gen_stage(A, 0, first=True)
    A("s_branch K1_LOOP1")
    A.raw(".p2align 6")
    A.label("K1_LOOP")
    gen_stage(A, 0, extra=[(90, "s_sub_u32 s54, s54, 1")])
    A.label("K1_LOOP1")
    gen_stage(A, 1)
    gen_stage(A, 2, extra=[(93, "s_cmp_eq_u32 s54, 0")])
    A("s_cbranch_scc1 K1_TAIL")
    gen_stage(A, 3)
    A("s_branch K1_LOOP")
    A.label("K1_TAIL")
    gen_tail(A, 3)
    ST()
    for qt in range(4):
        A(f"v_add_f32 v{30+2*qt}, v{LS+2*qt}, v{LS+2*qt+1}")
    xlane_reduce(A, "v_add_f32", [30, 32, 34, 36], 14)
    A("s_cmp_lg_u32 s55, 0")
    A("s_cbranch_scc1 K1_EPI")
    A(f"v_mov_b32 v14, {hex(f2u(2.0**30))}")
    A("v_cmp_nlt_f32 vcc, v30, v14")
    A("s_mov_b64 s[56:57], vcc")
    for qt in range(1, 4):
        A(f"v_cmp_nlt_f32 vcc, v{30+2*qt}, v14")
        A("s_or_b64 s[56:57], s[56:57], vcc")
    A("s_cmp_lg_u64 s[56:57], 0")
    A("s_cselect_b32 s34, 1, 0")
    A("v_mov_b32 v14, s34")
    A("v_mov_b32 v15, s28")
    A("v_lshlrev_b32 v15, 2, v15")
    A(f"v_add_u32 v15, {FREG}, v15")
    A("ds_write_b32 v15, v14")
    A(f"v_mov_b32 v15, {FREG}")
    A("s_waitcnt lgkmcnt(0)")
    A("s_barrier")
    A("ds_read_b128 v[16:19], v15")
    A("s_waitcnt lgkmcnt(0)")
    A("v_or_b32 v16, v16, v17")
    A("v_or_b32 v18, v18, v19")
    A("v_or_b32 v16, v16, v18")
    A("s_nop 0")
    A("v_readfirstlane_b32 s34, v16")
    A("s_cmp_eq_u32 s34, 0" if not cfg.get("abl", 0) else "s_cmp_eq_u32 s34, s34")
    A("s_cbranch_scc1 K1_EPI")
    A("s_mov_b32 s55, 1")
    A("v_and_b32 v34, 15, v0")
    A("v_mul_u32_u24 v34, 384, v34")
    A("v_lshrrev_b32 v35, 4, v0")
    A("v_lshl_add_u32 v34, v35, 4, v34")
    for qt in range(4):
        A(f"v_mov_b32 v{30+qt}, 0xff800000")
    A("s_mov_b32 s34, 0")
    A.label("K1_MAXLOOP")
    for u in range(6):
        A(f"buffer_load_dwordx4 {ar(KF+u*4, 4)}, v34, s[16:19], s34 offen offset:{64*u}")
    A("s_waitcnt vmcnt(0)")
    for qt in range(4):
        d = vr(sreg(0, qt, 0), 4)
        for u in range(6):
            A(mfma(d, ar(KF+u*4, 4), qf(qt, u), "0" if u == 0 else d))
    A("s_nop 15")
    for qt in range(4):
        b = sreg(0, qt, 0)
        A(f"v_max3_f32 v{30+qt}, v{30+qt}, v{b}, v{b+1}")
        A(f"v_max3_f32 v{30+qt}, v{30+qt}, v{b+2}, v{b+3}")
    A("s_add_u32 s34, s34, 6144")
    A("s_cmp_lt_u32 s34, 786432")
    A("s_cbranch_scc1 K1_MAXLOOP")
    xlane_reduce(A, "v_max_f32", [30, 31, 32, 33], 34)
    for qt in range(4):
        for r in range(4):
            A(f"v_sub_f32 v{NM+qt*4+r}, 0, v{30+qt}")
    kv_start()
    A("s_waitcnt vmcnt(12)")
    A("s_branch K1_ATT")
    A.label("K1_EPI")
    for qt in range(4):
        A(f"v_rcp_f32 v{30+2*qt}, v{30+2*qt}")
    A("v_lshlrev_b32 v14, 4, v0")
    for qt in range(1, 4):
        A(f"v_add_u32 v{14+qt}, {qt*RT_STRIDE}, v14")
    A("s_mul_i32 s34, s31, 6144")
    A("s_add_u32 s35, s34, 4096")
    cnt = 0
    for qt in range(4):
        for u in range(6):
            T0 = 48 + (cnt % 4)*8
            P0 = 96 + (cnt % 8)*4
            cnt += 1
            for e in range(8):
                A(f"v_accvgpr_read_b32 v{T0+e}, a{oacc(2*u+(e>>2), qt)+(e&3)}")
            for p in range(4):
                A(f"v_pk_mul_f32 {vr(T0+2*p, 2)}, {vr(30+2*qt, 2)}, {vr(T0+2*p, 2)} op_sel_hi:[0,1]")
            for p in range(4):
                A(f"v_cvt_pk_bf16_f32 v{P0+p}, v{T0+2*p}, v{T0+2*p+1}")
            so, im = (34, 1024*u) if u < 4 else (35, 1024*(u-4))
            A(f"buffer_store_dwordx4 v[{P0}:{P0+3}], v{14+qt}, s[24:27], s{so} offen offset:{im}{STF()}")
    ST()
    ST.dump(28)
    A.label("K1_END")
    A("s_endpgm")
    kernel_desc(A, name, 512, 100 if ST.on else 64, 256)


def STF():
    return {0: "", 1: " sc1", 2: " sc0 sc1", 3: " nt"}[CFG.get("stf", 0)]


HEADER = """; Kernarg layout for this problem (96 bytes, ptrs only, base s[0:1]):
;   offset  72: d_out     shape=(1, 2048, 640) dtype=bfloat16
"""


CFG = {}


def generate(cfg):
    CFG.clear()
    CFG.update(cfg)
    A = Asm()
    A.raw(HEADER.rstrip())
    A.raw(f"; @launch kernel=k1_kernel grid=(256,1,1) block=(256,1,1) lds={K1_LDS}")
    A.raw("; @launch kernel=k2_kernel grid=(256,1,1) block=(256,1,1) lds=122880")
    A.raw('.amdgcn_target "amdgcn-amd-amdhsa--gfx950"')
    gen_k1(A, cfg)
    gen_k2(A, cfg)
    return A.text()


if __name__ == "__main__":
    for x in range(192):
        assert (x * 2731) >> 16 == x // 24 and (x * 10923) >> 16 == x // 6
    for x in range(320):
        assert (x * 3277) >> 16 == x // 20
    cfg = {}
    out = f"cdna_kernels/{NAME}.s"
    for a in sys.argv[1:]:
        if "=" in a:
            k, v = a.split("=")
            if k == "out":
                out = v
            else:
                cfg[k] = int(v)
    open(out, "w").write(generate(cfg))
    print("wrote", out)
```

```python
import sys, math, struct

NAME = "recurrent_scan__mha_block_cached__swiglu_ffn__prompt"
XN_OFF = 0
WP_OFF = 0x400000
OF_OFF = 0x1000000
RT_STRIDE = 240 * 1024
LOG2E = 1.4426950408889634


def f2u(x):
    return struct.unpack("<I", struct.pack("<f", x))[0]


class Asm:
    def __init__(self):
        self.L = []

    def __call__(self, s):
        self.L.append("    " + s)

    def label(self, s):
        self.L.append(s + ":")

    def raw(self, s):
        self.L.append(s)

    def text(self):
        return "\n".join(self.L) + "\n"


def vr(b, n=1):
    return f"v{b}" if n == 1 else f"v[{b}:{b+n-1}]"


def ar(b, n=1):
    return f"a{b}" if n == 1 else f"a[{b}:{b+n-1}]"


def sr(b, n=1):
    return f"s{b}" if n == 1 else f"s[{b}:{b+n-1}]"


def kernel_begin(A, name):
    A.raw(".text")
    A.raw(f".globl {name}")
    A.raw(".p2align 8")
    A.raw(f".type {name},@function")
    A.label(name)


def kernel_desc(A, name, nv, ns, ao):
    A.raw('.section .rodata,"a"')
    A.raw(".p2align 6")
    A.raw(f".amdhsa_kernel {name}")
    A.raw(f"  .amdhsa_next_free_vgpr {nv}")
    A.raw(f"  .amdhsa_next_free_sgpr {ns}")
    A.raw(f"  .amdhsa_accum_offset {ao}")
    A.raw("  .amdhsa_group_segment_fixed_size 0")
    A.raw("  .amdhsa_kernarg_size 96")
    A.raw("  .amdhsa_user_sgpr_count 2")
    A.raw("  .amdhsa_user_sgpr_kernarg_segment_ptr 1")
    A.raw("  .amdhsa_system_sgpr_workgroup_id_x 1")
    A.raw(".end_amdhsa_kernel")


def srd(A, d, ptr, off_sgpr=None, off_imm=0, size=None, size_sgpr=None):
    if off_sgpr is not None:
        A(f"s_add_u32 s{d}, s{ptr}, s{off_sgpr}")
        A(f"s_addc_u32 s{d+1}, s{ptr+1}, 0")
        if off_imm:
            A(f"s_add_u32 s{d}, s{d}, {off_imm}")
            A(f"s_addc_u32 s{d+1}, s{d+1}, 0")
    elif off_imm:
        A(f"s_add_u32 s{d}, s{ptr}, {off_imm}")
        A(f"s_addc_u32 s{d+1}, s{ptr+1}, 0")
    else:
        A(f"s_mov_b32 s{d}, s{ptr}")
        A(f"s_mov_b32 s{d+1}, s{ptr+1}")
    if size_sgpr is not None:
        A(f"s_mov_b32 s{d+2}, s{size_sgpr}")
    else:
        A(f"s_mov_b32 s{d+2}, {size}")
    A(f"s_mov_b32 s{d+3}, 0x00020000")


STAMP_OFF = 0x8000000


class Stamps:
    def __init__(self, A, on, kid):
        self.A, self.on, self.n, self.kid = A, on, 0, kid

    def __call__(self):
        if not self.on:
            return
        A = self.A
        b = 64 + 4*self.n
        A(f"s_memtime s[{b}:{b+1}]")
        A(f"s_memrealtime s[{b+2}:{b+3}]")
        A("s_waitcnt lgkmcnt(0)")
        self.n += 1

    def dump(self, wave_sgpr):
        if not self.on:
            return
        A = self.A
        if self.on == 2:
            A("s_load_dwordx2 s[60:61], s[0:1], 80")
            A("s_waitcnt lgkmcnt(0) vmcnt(0)")
            self()
            A(f"s_or_b32 s62, s2, s{wave_sgpr}")
            A("s_cmp_lg_u32 s62, 0")
            A(f"s_cbranch_scc1 STD{self.kid}")
            A(f"s_add_u32 s60, s60, {512 if self.kid == 1 else 32}")
            A("s_addc_u32 s61, s61, 0")
            A("v_mov_b32 v1, 0")
            for i in range(self.n):
                A(f"v_mov_b32 v2, s{66+4*i}")
                A(f"v_and_b32 v2, 0xfffff, v2")
                A(f"global_store_dword v1, v2, s[60:61] offset:{4*i}")
            A("s_waitcnt vmcnt(0)")
            A.label(f"STD{self.kid}")
            return
        A("s_load_dwordx2 s[60:61], s[0:1], 88")
        A("s_waitcnt lgkmcnt(0) vmcnt(0)")
        self()
        A("s_lshl_b32 s62, s2, 2")
        A(f"s_add_u32 s62, s62, s{wave_sgpr}")
        A("s_lshl_b32 s62, s62, 6")
        A(f"s_add_u32 s62, s62, {STAMP_OFF + self.kid*0x100000}")
        A("s_add_u32 s60, s60, s62")
        A("s_addc_u32 s61, s61, 0")
        A("v_mov_b32 v1, 0")
        for i in range(self.n):
            A(f"v_mov_b32 v2, s{64+4*i}")
            A(f"v_mov_b32 v3, s{66+4*i}")
            A(f"global_store_dwordx2 v1, v[2:3], s[60:61] offset:{8*i}")
        A("s_waitcnt vmcnt(0)")


def mfma(d, a, b, c):
    return f"v_mfma_f32_16x16x32_bf16 {d}, {a}, {b}, {c}"


def gen_k2(A, cfg):
    name = "k2_kernel"
    D = 6
    kernel_begin(A, name)
    A("s_cmp_ge_u32 s2, 256")
    A("s_cbranch_scc1 K2_END")
    ST = Stamps(A, cfg.get("stamp", 0), 2)
    ST()
    A("s_load_dwordx2 s[4:5], s[0:1], 0")
    A("s_load_dwordx2 s[6:7], s[0:1], 72")
    A("s_load_dwordx2 s[8:9], s[0:1], 88")
    A("v_lshrrev_b32 v1, 6, v0")
    A("v_and_b32 v2, 63, v0")
    A("v_readfirstlane_b32 s28, v1")
    A("s_and_b32 s29, s2, 7")
    A("s_lshr_b32 s30, s2, 3")
    if cfg.get("k2map", 0) == 0:
        A("s_lshr_b32 s31, s29, 1")
        A("s_lshl_b32 s31, s31, 3")
        A("s_lshr_b32 s32, s30, 2")
        A("s_add_u32 s31, s31, s32")
        A("s_and_b32 s32, s29, 1")
        A("s_lshl_b32 s32, s32, 2")
        A("s_and_b32 s33, s30, 3")
        A("s_add_u32 s32, s32, s33")
    elif cfg.get("k2map", 0) == 2:
        A("s_mov_b32 s31, 0")
        A("s_mov_b32 s32, 0")
    elif cfg.get("k2map", 0) == 3:
        A("s_lshr_b32 s31, s29, 2")
        A("s_lshl_b32 s31, s31, 4")
        A("s_lshr_b32 s32, s30, 1")
        A("s_add_u32 s31, s31, s32")
        A("s_and_b32 s32, s29, 3")
        A("s_lshl_b32 s32, s32, 1")
        A("s_and_b32 s33, s30, 1")
        A("s_add_u32 s32, s32, s33")
    else:
        A("s_lshl_b32 s31, s29, 2")
        A("s_lshr_b32 s32, s30, 3")
        A("s_add_u32 s31, s31, s32")
        A("s_and_b32 s32, s30, 7")
    A("s_waitcnt lgkmcnt(0)")
    A(f"s_mul_i32 s33, s31, {4*RT_STRIDE}")
    srd(A, 12, 8, off_sgpr=33, off_imm=OF_OFF, size=4*RT_STRIDE)
    A("s_mul_i32 s33, s32, 5120")
    A(f"s_sub_u32 s34, {240*40960}, s33")
    srd(A, 16, 8, off_sgpr=33, off_imm=WP_OFF, size_sgpr=34)
    srd(A, 20, 4, size=2621440)
    srd(A, 24, 6, size=2621440)
    A("v_lshlrev_b32 v8, 4, v2")
    A("v_add_u32 v9, 4096, v8")
    for t in range(4):
        A(f"s_add_u32 s33, s28, {t}")
        A("s_and_b32 s33, s33, 3")
        A(f"s_mul_i32 s33, s33, {RT_STRIDE}")
        A(f"v_add_u32 v{4+t}, s33, v8")
    A("s_lshl_b32 s33, s31, 6")
    A("s_lshl_b32 s34, s28, 4")
    A("s_add_u32 s33, s33, s34")
    A("v_and_b32 v3, 15, v2")
    A("v_add_u32 v3, s33, v3")
    A("v_mul_u32_u24 v3, 1280, v3")
    A("v_lshrrev_b32 v10, 4, v2")
    A("v_lshl_add_u32 v3, v10, 3, v3")
    A("s_mul_i32 s33, s32, 160")
    A("v_add_u32 v3, s33, v3")
    XR = 232
    for c in range(5):
        A(f"buffer_load_dwordx2 v[{XR+2*c}:{XR+2*c+1}], v3, s[20:23], 0 offen offset:{32*c}")
    A("s_and_b32 s40, s31, 7")
    A("s_mul_i32 s40, s40, 3")
    A("s_lshr_b32 s40, s40, 1")
    A("s_and_b32 s41, s32, 3")
    A("s_mul_i32 s41, s41, 3")
    A("s_add_u32 s40, s40, s41")
    A("s_cmp_ge_u32 s40, 12")
    A("s_cselect_b32 s41, 12, 0")
    A("s_sub_u32 s40, s40, s41")
    if not cfg.get("k2rot", 0):
        A("s_mov_b32 s40, 0")
    A("s_mul_i32 s38, s28, 12")
    A("s_add_u32 s38, s38, 192")
    A("s_mul_i32 s39, s28, 48")
    NS = 60
    BUF = 16

    def loads(n):
        out = []
        b = BUF + 36 * (n % D)
        pre = []
        if n == 12:
            pre += ["s_mov_b32 s38, s39"]
        elif n > 0 and n % 12 == 0:
            pre += ["s_add_u32 s38, s38, 12"]
        if n > 0:
            pre += ["s_add_u32 s40, s40, 1", "s_cmp_eq_u32 s40, 12", "s_cselect_b32 s40, 0, s40"]
        pre += ["s_add_u32 s36, s38, s40", "s_mul_i32 s37, s36, 40960", "s_lshl_b32 s36, s36, 10"]
        for t in range(4):
            out.append(f"buffer_load_dwordx4 v[{b+4*t}:{b+4*t+3}], v{4+t}, s[12:15], s36 offen")
        for c in range(5):
            vo, im = (8, 1024*c) if c < 4 else (9, 0)
            out.append(f"buffer_load_dwordx4 v[{b+16+4*c}:{b+16+4*c+3}], v{vo}, s[16:19], s37 offen offset:{im}")
        return pre, out
    for n in range(D - 1):
        pre, ld = loads(n)
        for s in pre + ld:
            A(s)
    for n in range(NS):
        rem = min(NS - 1, n + D - 2) - n
        A(f"s_waitcnt vmcnt({9*rem})")
        if n in (0, 12, 36):
            ST()
        if n + D - 1 < NS:
            pre, ld = loads(n + D - 1)
        else:
            pre, ld = [], []
        for s in pre:
            A(s)
        b = BUF + 36 * (n % D)
        base = 80 if n < 12 else 0
        first = n == 0 or n == 12
        k = 0
        for c in range(5):
            for t in range(4):
                acc = ar(base + 16*c + 4*t, 4)
                if not cfg.get("k2nomfma", 0) or first:
                    A(mfma(acc, vr(b+16+4*c, 4), vr(b+4*t, 4), "0" if first else acc))
                if k % 2 == 1 and ld:
                    A(ld.pop(0))
                k += 1
        assert not ld
    ST()
    for t in range(1, 4):
        A(f"s_add_u32 s33, s28, {t}")
        A("s_and_b32 s33, s33, 3")
        A("s_mul_i32 s33, s33, 30720")
        A(f"s_add_u32 s33, s33, {(t-1)*10240}")
        A(f"v_add_u32 v{11+t}, s33, v8")
    A("s_mul_i32 s33, s28, 30720")
    A("v_add_u32 v11, s33, v8")
    A("s_nop 7")
    for t in range(1, 4):
        for st in range(2):
            for c in range(5):
                A(f"ds_write_b128 v{11+t}, {ar(80*st+16*c+4*t, 4)} offset:{(st*5+c)*1024}")
    R = 16
    for st in range(2):
        for c in range(5):
            for r in range(4):
                A(f"v_accvgpr_read_b32 v{R+st*20+c*4+r}, a{80*st+16*c+r}")
    A("s_waitcnt lgkmcnt(0)")
    A("s_barrier")
    T = 64
    for si in range(3):
        for q in range(10):
            A(f"ds_read_b128 v[{T+40*si+4*q}:{T+40*si+4*q+3}], v11 offset:{(si*10+q)*1024}")
        if si > 0:
            A("s_waitcnt lgkmcnt(10)")
            for q in range(40):
                A(f"v_add_f32 v{R+q}, v{R+q}, v{T+40*(si-1)+q}")
    A("s_waitcnt lgkmcnt(0)")
    for q in range(40):
        A(f"v_add_f32 v{R+q}, v{R+q}, v{T+80+q}")
    A(f"s_mov_b32 s33, {hex(f2u(-LOG2E))}")
    for p in range(10):
        s0, s1, f0, f1 = R+2*p, R+2*p+1, R+20+2*p, R+21+2*p
        t0, t1 = T, T+1
        A(f"v_cvt_pk_bf16_f32 v{t0}, v{s0}, v{s1}")
        A(f"v_cvt_pk_bf16_f32 v{t1}, v{f0}, v{f1}")
        A(f"v_lshlrev_b32 v{s0}, 16, v{t0}")
        A(f"v_and_b32 v{s1}, 0xffff0000, v{t0}")
        A(f"v_lshlrev_b32 v{f0}, 16, v{t1}")
        A(f"v_and_b32 v{f1}, 0xffff0000, v{t1}")
        A(f"v_mul_f32 v{t0}, s33, v{f0}")
        A(f"v_mul_f32 v{t1}, s33, v{f1}")
        A(f"v_exp_f32 v{t0}, v{t0}")
        A(f"v_exp_f32 v{t1}, v{t1}")
        A("s_nop 0")
        A(f"v_add_f32 v{t0}, 1.0, v{t0}")
        A(f"v_add_f32 v{t1}, 1.0, v{t1}")
        A(f"v_rcp_f32 v{t0}, v{t0}")
        A(f"v_rcp_f32 v{t1}, v{t1}")
        A("s_nop 0")
        A(f"v_mul_f32 v{f0}, v{f0}, v{t0}")
        A(f"v_mul_f32 v{f1}, v{f1}, v{t1}")
        A(f"v_cvt_pk_bf16_f32 v{t0}, v{f0}, v{f1}")
        A(f"v_lshlrev_b32 v{f0}, 16, v{t0}")
        A(f"v_and_b32 v{f1}, 0xffff0000, v{t0}")
        A(f"v_mul_f32 v{s0}, v{s0}, v{f0}")
        A(f"v_mul_f32 v{s1}, v{s1}, v{f1}")
        A(f"v_cvt_pk_bf16_f32 v{t0}, v{s0}, v{s1}")
        A(f"v_lshlrev_b32 v{s0}, 16, v{t0}")
        A(f"v_and_b32 v{s1}, 0xffff0000, v{t0}")
        A(f"v_lshlrev_b32 v{f0}, 16, v{XR+p}")
        A(f"v_and_b32 v{f1}, 0xffff0000, v{XR+p}")
        A(f"v_add_f32 v{s0}, v{s0}, v{f0}")
        A(f"v_add_f32 v{s1}, v{s1}, v{f1}")
        A(f"v_cvt_pk_bf16_f32 v{XR+p}, v{s0}, v{s1}")
    for c in range(5):
        A(f"buffer_store_dwordx2 v[{XR+2*c}:{XR+2*c+1}], v3, s[24:27], 0 offen offset:{32*c}")
    ST()
    ST.dump(28)
    A.label("K2_END")
    A("s_endpgm")
    kernel_desc(A, name, 256 + 160, 100 if ST.on else 48, 256)


XCH_OFF = 0x4000000
K2_LDS = 4 * 36864


def final_combine(A, S, F, XR, T):
    A(f"s_mov_b32 s33, {hex(f2u(-LOG2E))}")
    for p in range(10):
        A(f"v_cvt_pk_bf16_f32 v{T+p}, v{S+2*p}, v{S+2*p+1}")
    for p in range(10):
        A(f"v_lshlrev_b32 v{S+2*p}, 16, v{T+p}")
        A(f"v_and_b32 v{S+2*p+1}, 0xffff0000, v{T+p}")
    for q in range(20):
        A(f"v_mul_f32 v{T+q}, s33, v{F+q}")
    for q in range(20):
        A(f"v_exp_f32 v{T+q}, v{T+q}")
    for q in range(20):
        A(f"v_add_f32 v{T+q}, 1.0, v{T+q}")
    for q in range(20):
        A(f"v_rcp_f32 v{T+q}, v{T+q}")
    for p in range(10):
        A(f"v_pk_mul_f32 {vr(F+2*p, 2)}, {vr(F+2*p, 2)}, {vr(T+2*p, 2)}")
    for p in range(10):
        A(f"v_cvt_pk_bf16_f32 v{T+p}, v{F+2*p}, v{F+2*p+1}")
    for p in range(10):
        A(f"v_lshlrev_b32 v{F+2*p}, 16, v{T+p}")
        A(f"v_and_b32 v{F+2*p+1}, 0xffff0000, v{T+p}")
    for p in range(10):
        A(f"v_pk_mul_f32 {vr(S+2*p, 2)}, {vr(S+2*p, 2)}, {vr(F+2*p, 2)}")
    for p in range(10):
        A(f"v_cvt_pk_bf16_f32 v{T+p}, v{S+2*p}, v{S+2*p+1}")
    for p in range(10):
        A(f"v_lshlrev_b32 v{S+2*p}, 16, v{T+p}")
        A(f"v_and_b32 v{S+2*p+1}, 0xffff0000, v{T+p}")
        A(f"v_lshlrev_b32 v{F+2*p}, 16, v{XR+p}")
        A(f"v_and_b32 v{F+2*p+1}, 0xffff0000, v{XR+p}")
    for p in range(10):
        A(f"v_pk_add_f32 {vr(S+2*p, 2)}, {vr(S+2*p, 2)}, {vr(F+2*p, 2)}")
    for p in range(10):
        A(f"v_cvt_pk_bf16_f32 v{XR+p}, v{S+2*p}, v{S+2*p+1}")


def gen_k2b(A, cfg):
    name = "k2_kernel"
    kernel_begin(A, name)
    A("s_cmp_ge_u32 s2, 256")
    A("s_cbranch_scc1 K2_END")
    ST = Stamps(A, cfg.get("stamp", 0), 2)
    ST()
    A("s_load_dwordx2 s[4:5], s[0:1], 0")
    A("s_load_dwordx4 s[44:47], s[0:1], 72")
    A("s_load_dwordx2 s[8:9], s[0:1], 88")
    A("v_lshrrev_b32 v1, 6, v0")
    A("v_and_b32 v0, 63, v0")
    A("v_readfirstlane_b32 s28, v1")
    A("s_and_b32 s29, s2, 7")
    A("s_lshr_b32 s30, s2, 3")
    A("s_and_b32 s31, s29, 1")
    A("s_lshl_b32 s31, s31, 3")
    A("s_lshr_b32 s32, s30, 2")
    A("s_add_u32 s31, s31, s32")
    A("s_and_b32 s32, s30, 3")
    A("s_lshr_b32 s29, s29, 1")
    A("v_lshlrev_b32 v2, 4, v0")
    A(f"s_mul_i32 s33, s28, {2*RT_STRIDE}")
    A("v_add_u32 v9, s33, v2")
    A(f"v_add_u32 v10, {RT_STRIDE-2048}, v9")
    A("s_lshr_b32 s33, s28, 1")
    A("s_mul_i32 s33, s33, 40960")
    A("s_and_b32 s34, s28, 1")
    A("s_mul_i32 s34, s34, 5120")
    A("s_add_u32 s33, s33, s34")
    A("v_add_u32 v11, s33, v2")
    A("v_add_u32 v12, 4096, v11")
    A("s_mul_i32 s36, s29, 60")
    A("s_cmp_eq_u32 s29, 3")
    A("s_cselect_b32 s36, 192, s36")
    A("s_cselect_b32 s40, -58, 2")
    A("s_lshl_b32 s41, s28, 12")
    A("s_mul_i32 s42, s28, 5120")
    A("s_add_u32 s42, s42, 16384")
    A("s_mov_b32 s39, 0")
    A("s_mov_b32 s43, 0")
    A("s_waitcnt lgkmcnt(0)")
    A(f"s_mul_i32 s33, s31, {8*RT_STRIDE}")
    srd(A, 12, 8, off_sgpr=33, off_imm=OF_OFF, size=8*RT_STRIDE)
    A("s_mul_i32 s33, s32, 10240")
    A(f"s_sub_u32 s34, {240*40960}, s33")
    srd(A, 16, 8, off_sgpr=33, off_imm=WP_OFF, size_sgpr=34)
    SLOT = 36864

    def dma():
        L = [("s", "s_lshl_b32 s37, s36, 10"), ("s", "s_add_u32 m0, s39, s41")]
        for i in range(4):
            L.append(("d", f"buffer_load_dwordx4 v{9+(i>>1)}, s[12:15], s37 offen offset:{1024*i} lds"))
        L += [("s", "s_mul_i32 s38, s36, 40960"), ("s", "s_add_u32 m0, s39, s42")]
        for i in range(4):
            L.append(("d", f"buffer_load_dwordx4 v11, s[16:19], s38 offen offset:{1024*i} lds"))
        L.append(("s", "s_add_u32 m0, m0, 4096"))
        L.append(("d", "buffer_load_dwordx4 v12, s[16:19], s38 offen lds"))
        return L

    def dma_adv():
        L = [("s", "s_add_u32 s43, s43, 1")]
        L.append(("s", "s_cmp_eq_u32 s43, 24", "s_cselect_b32 s33, s40, 2"))
        L.append(("s", "s_add_u32 s36, s36, s33"))
        L.append(("s", f"s_add_u32 s39, s39, {SLOT}"))
        L.append(("s", f"s_cmp_eq_u32 s39, {4*SLOT}", "s_cselect_b32 s39, 0, s39"))
        return L

    def emit_plain(L):
        prev = None
        for e in L:
            if e[0] == "d" and prev is not None and "m0" in prev:
                A("s_nop 0")
            for s_ in e[1:]:
                A(s_)
            prev = e[-1]
    for i in range(4):
        emit_plain(dma() + dma_adv())
    A("s_lshr_b32 s33, s28, 1")
    A("s_lshl_b32 s33, s33, 2")
    for t in range(4):
        A(f"s_add_u32 s34, s29, {t}")
        A("s_and_b32 s34, s34, 3")
        A("s_add_u32 s34, s34, s33")
        A("s_lshl_b32 s34, s34, 11")
        A(f"v_add_u32 v{4+t}, s34, v2")
    A("s_and_b32 s34, s28, 1")
    A("s_mul_i32 s34, s34, 5120")
    A("s_add_u32 s34, s34, 16384")
    A("v_add_u32 v8, s34, v2")
    srd(A, 20, 4, size=2621440)
    srd(A, 24, 44, size=2621440)
    A("s_lshl_b32 s34, s31, 3")
    A("s_add_u32 s34, s34, s33")
    A("s_add_u32 s34, s34, s29")
    A("s_lshl_b32 s34, s34, 4")
    A("v_and_b32 v3, 15, v0")
    A("v_add_u32 v3, s34, v3")
    A("v_mul_u32_u24 v3, 1280, v3")
    A("v_lshrrev_b32 v13, 4, v0")
    A("v_lshl_add_u32 v3, v13, 3, v3")
    A("s_lshl_b32 s34, s32, 1")
    A("s_and_b32 s35, s28, 1")
    A("s_add_u32 s34, s34, s35")
    A("s_mul_i32 s34, s34, 160")
    A("v_add_u32 v3, s34, v3")
    A("s_lshl_b32 s51, s31, 2")
    A("s_add_u32 s51, s51, s32")
    A("s_mul_i32 s34, s51, 163840")
    srd(A, 4, 8, off_sgpr=34, off_imm=XCH_OFF, size=163840)
    FR, AX, AY = 16, 96, 176

    def accr(base, c, t):
        return base + 20*t + 4*c

    def reads(k2):
        L = []
        order = [("A", 0), ("B", 0), ("B", 1), ("B", 2), ("B", 3), ("A", 1), ("A", 2), ("A", 3), ("A", 4)]
        for kind, i in order:
            if kind == "B":
                L.append(f"ds_read_b128 {vr(FR+36*k2+4*i, 4)}, v{4+i} offset:{1024*k2}")
            else:
                L.append(f"ds_read_b128 {vr(FR+36*k2+16+4*i, 4)}, v8 offset:{10240*k2+1024*i}")
        return L

    def half(k2, acc0, gaps, zero=False):
        for g in range(20):
            c, t = divmod(g, 4)
            acc = vr(accr(acc0, c, t), 4)
            A(mfma(acc, vr(FR+36*k2+16+4*c, 4), vr(FR+36*k2+4*t, 4), "0" if zero else acc))
            for s_ in gaps[g]:
                A(s_)

    def slot_adv(gaps, g0):
        gaps[g0] += [f"s_add_u32 s35, s35, {SLOT}"]
        gaps[g0+1] += [f"s_cmp_eq_u32 s35, {4*SLOT}", "s_cselect_b32 s50, s49, s48", "s_cselect_b32 s35, 0, s35"]
        for i in range(5):
            gaps[g0+2+i].append(f"v_add_u32 v{4+i}, s50, v{4+i}")

    RP = [0, 1, 3, 4, 5, 7, 8, 9, 11]
    DP = [2, 6, 10, 14, 18, 22, 26, 30, 34]

    def body(acc_a, acc_b, zero_b=False, loop=None, kill=False):
        gaps = [[] for _ in range(40)]
        for k, s_ in enumerate(reads(0)):
            gaps[RP[k]].append(s_)
        for k, s_ in enumerate(reads(1)):
            gaps[20+RP[k]].append(s_)
        g, nd = 0, 0
        for e in dma():
            if e[0] == "d":
                g = DP[nd]
                nd += 1
                gaps[g].append(e[1])
            else:
                gaps[g] += list(e[1:])
                g += 1
        g = 15
        for e in dma_adv():
            g += 1
            if g == 18:
                g = 20
            pass
        adv = dma_adv()
        gaps[23] += list(adv[0][1:])
        gaps[32] += list(adv[1][1:])
        gaps[34] += list(adv[2][1:])
        gaps[35] += list(adv[3][1:])
        gaps[36] += list(adv[4][1:])
        if kill:
            gaps[37] += ["s_cmp_ge_u32 s43, 30", "s_cselect_b32 s14, 0, s14", "s_cselect_b32 s18, 0, s18"]
        gaps[19] += ["s_waitcnt lgkmcnt(0)"]
        slot_adv(gaps, 32)
        if loop:
            gaps[12] += ["s_sub_u32 s54, s54, 1"]
            gaps[39] += ["s_cmp_lg_u32 s54, 0"]
            A(f"s_mov_b32 s54, {loop[1]}")
            A.label(loop[0])
        A("s_waitcnt vmcnt(18) lgkmcnt(0)")
        A("s_barrier")
        half(1, acc_a, gaps[:20])
        half(0, acc_b, gaps[20:], zero=zero_b)
        if loop:
            A(f"s_cbranch_scc1 {loop[0]}")

    A("s_mov_b32 s35, 0")
    A(f"s_mov_b32 s48, {SLOT}")
    A(f"s_mov_b32 s49, {-3*SLOT & 0xffffffff}")
    A("s_waitcnt vmcnt(27)")
    A("s_barrier")
    ST()
    for s_ in reads(0):
        A(s_)
    A("s_waitcnt lgkmcnt(0)")
    gaps = [[] for _ in range(20)]
    for k, s_ in enumerate(reads(1)):
        gaps[RP[k]].append(s_)
    slot_adv(gaps, 12)
    half(0, AX, gaps, zero=True)
    body(AX, AX, loop=("K2_L1", 23))
    body(AX, AY, zero_b=True)
    body(AY, AY, loop=("K2_L2", 5), kill=True)
    A("s_waitcnt lgkmcnt(0)")
    half(1, AY, [[] for _ in range(20)])
    ST()
    XR = 16
    for c in range(5):
        A(f"buffer_load_dwordx2 v[{XR+2*c}:{XR+2*c+1}], v3, s[20:23], 0 offen offset:{32*c}")
    A("v_lshlrev_b32 v5, 3, v0")
    A("s_mul_i32 s34, s28, 2560")
    for t in range(4):
        A(f"s_add_u32 s33, s29, {t}")
        A("s_and_b32 s33, s33, 3")
        A("s_mul_i32 s33, s33, 40960")
        A(f"s_add_u32 s{36+t}, s33, s34")
    stf = " sc1" if not cfg.get("xsc0", 0) else " sc0 sc1"

    def send(base, t, src, P):
        for p in range(10):
            A(f"v_cvt_pk_bf16_f32 v{P+p}, v{base+20*t+2*p}, v{base+20*t+2*p+1}")
        A(f"s_add_u32 s33, s{36+t}, {src*10240}")
        A(f"buffer_store_dwordx4 {vr(P, 4)}, v2, s[4:7], s33 offen{stf}")
        A(f"buffer_store_dwordx4 {vr(P+4, 4)}, v2, s[4:7], s33 offen offset:1024{stf}")
        A(f"buffer_store_dwordx2 {vr(P+8, 2)}, v5, s[4:7], s33 offen offset:2048{stf}")
    A("s_cmp_eq_u32 s29, 3")
    A("s_cbranch_scc1 K2_SPLIT3")
    for t in (1, 2, 3, 0):
        for p in range(10):
            A(f"v_pk_add_f32 {vr(AY+20*t+2*p, 2)}, {vr(AY+20*t+2*p, 2)}, {vr(AX+20*t+2*p, 2)}")
        if t:
            send(AY, t, t-1, 28 + 12*t)
    A("s_branch K2_SENT")
    A.label("K2_SPLIT3")
    for t in range(4):
        send(AX, t, 3, 28 + 12*t)
    A("s_nop 1")
    for t in range(1, 4):
        send(AY, t, t-1, AX + 12*t)
    A.label("K2_SENT")
    A("s_waitcnt vmcnt(0)")
    A("s_barrier")
    ST()
    A("s_cmp_lg_u32 s28, 0")
    A("s_cbranch_scc1 K2_WAIT")
    A("s_lshl_b32 s33, s51, 2")
    A("v_mov_b32 v6, s33")
    A("v_mov_b32 v7, 1")
    A("s_mov_b64 exec, 1")
    A("global_atomic_add v6, v7, s[46:47] sc1")
    A.label("K2_POLL")
    A("global_load_dword v7, v6, s[46:47] sc1")
    A("s_waitcnt vmcnt(0)")
    A("v_readfirstlane_b32 s33, v7")
    A("s_cmp_ge_u32 s33, 4")
    A("s_cbranch_scc1 K2_POLLED")
    A("s_sleep 2")
    A("s_branch K2_POLL")
    A.label("K2_POLLED")
    A("s_mov_b64 exec, -1")
    A.label("K2_WAIT")
    A("s_barrier")
    ST()
    RX = 28
    for src in range(4):
        P = RX + 12*src
        A(f"s_add_u32 s33, s36, {src*10240}")
        A(f"buffer_load_dwordx4 {vr(P, 4)}, v2, s[4:7], s33 offen sc1")
        A(f"buffer_load_dwordx4 {vr(P+4, 4)}, v2, s[4:7], s33 offen offset:1024 sc1")
        A(f"buffer_load_dwordx2 {vr(P+8, 2)}, v5, s[4:7], s33 offen offset:2048 sc1")
    T = AX + 20
    for src in range(4):
        P = RX + 12*src
        A(f"s_waitcnt vmcnt({3*(3-src)})")
        D = T if src < 3 else AX
        for p in range(10):
            A(f"v_lshlrev_b32 v{D+2*p}, 16, v{P+p}")
            A(f"v_and_b32 v{D+2*p+1}, 0xffff0000, v{P+p}")
        if src < 3:
            for p in range(10):
                A(f"v_pk_add_f32 {vr(AY+2*p, 2)}, {vr(AY+2*p, 2)}, {vr(T+2*p, 2)}")
    final_combine(A, AY, AX, XR, T)
    for c in range(5):
        A(f"buffer_store_dwordx2 v[{XR+2*c}:{XR+2*c+1}], v3, s[24:27], 0 offen offset:{32*c}")
    ST()
    ST.dump(28)
    A.label("K2_END")
    A("s_endpgm")
    kernel_desc(A, name, 256, 100 if ST.on else 64, 256)


QF = 160
SB = 96
NM = 80
VF = 48
LS = 40
VK, VV, DK, DV = 2, 4, 8, 11
KF = 192
KREG, VREG = 0, 49152


def qf(qt, u):
    return vr(QF + (u*4+qt)*4, 4)


def sreg(buf, qt, kt):
    return SB + buf*32 + qt*8 + kt*4


def oacc(dt, qt):
    return (dt*4 + qt) * 4


def k_read(slot, kt, u):
    return f"ds_read_b128 {ar(KF+kt*24+u*4, 4)}, v{VK+(u&1)} offset:{slot*12288+kt*6144+128*(u>>1)}"


def v_read(slot, dt, rd):
    b = VF + (dt % 8)*4 + 2*rd
    return f"ds_read_b64_tr_b16 {vr(b, 2)}, v{VV+(dt&3)} offset:{slot*12288+rd*6144+128*(dt>>2)}"


def softmax_ops(buf, qts):
    E, S = [], []
    for qt in qts:
        b = sreg(buf, qt, 0)
        for p in range(4):
            e0 = len(E)
            E.append(f"v_exp_f32 v{b+2*p}, v{b+2*p}")
            E.append(f"v_exp_f32 v{b+2*p+1}, v{b+2*p+1}")
            S.append((e0, f"v_add_f32 v{LS+2*qt}, v{LS+2*qt}, v{b+2*p}"))
            S.append((e0+1, f"v_add_f32 v{LS+2*qt+1}, v{LS+2*qt+1}, v{b+2*p+1}"))
            S.append((e0+1, f"v_cvt_pk_bf16_f32 v{b+p}, v{b+2*p}, v{b+2*p+1}"))
    return E, S


def fill_valu(gaps, lo, hi, E, S):
    ei, si = 0, 0
    epos = {}
    n_empty = sum(1 for g in range(lo, hi) if not gaps[g][0] and not gaps[g][2])
    assert n_empty >= len(E), (n_empty, len(E))
    for g in range(lo, hi):
        used = len(gaps[g][0]) + len(gaps[g][2])
        avail = [k for k in range(si, len(S)) if S[k][0] in epos and epos[S[k][0]] < g]
        navail = 0
        for k in range(si, len(S)):
            if S[k][0] in epos and epos[S[k][0]] < g:
                navail += 1
            else:
                break
        if used == 0:
            empty_left = sum(1 for q in range(g, hi) if not gaps[q][0] and not gaps[q][2])
            must_exp = empty_left <= len(E) - ei
            if ei < len(E) and (must_exp or navail < 4):
                gaps[g][1].append(E[ei])
                epos[ei] = g
                ei += 1
                continue
        free = 2 - used
        while free > 0 and navail > 0:
            gaps[g][1].append(S[si][1])
            si += 1
            navail -= 1
            free -= 1
    assert ei == len(E) and si == len(S), (ei, len(E), si, len(S))


def gen_stage(A, sg, extra=None, first=False):
    nb, cb = (sg + 1) & 1, sg & 1
    M = []
    for kt in range(2):
        for qt in range(4):
            d = vr(sreg(nb, qt, kt), 4)
            for u in range(6):
                M.append(mfma(d, ar(KF+kt*24+u*4, 4), qf(qt, u), vr(NM+qt*4, 4) if u == 0 else d))
    for dt in range(12):
        for qt in range(4):
            o = ar(oacc(dt, qt), 4)
            M.append(mfma(o, vr(VF+(dt % 8)*4, 4), vr(sreg(cb, qt, 0), 4), "0" if first else o))
    gaps = [[[], [], []] for _ in range(96)]
    for u in range(6):
        gaps[1+3*u][0].append(k_read((sg+1) % 4, 1, u))
    gaps[23][2].append("s_waitcnt lgkmcnt(0)")
    for j in range(24):
        gaps[26+2*j][0].append(v_read(sg, j // 2, j & 1))
    for g in (47, 59, 71):
        gaps[g][2].append("s_waitcnt lgkmcnt(5)")
    gaps[79][2].append("s_waitcnt vmcnt(12) lgkmcnt(0)")
    gaps[79][2].append("s_barrier")
    for u in range(6):
        gaps[81+u][0].append(k_read((sg+2) % 4, 0, u))
    gaps[95][2].append("s_waitcnt lgkmcnt(0)")
    dpos = CFG.get("dpos", 1)
    P = [3, 9, 15, 21, 27, 33] if dpos == 1 else [3, 6, 9, 12, 15, 18]
    gaps[1][2].append(f"s_add_u32 m0, s29, {KREG + sg*12288}")
    for n in range(3):
        gaps[P[n]][0].append(f"buffer_load_dwordx4 v{DK+n}, s[16:19], s30 offen offset:{1024*n} lds")
    gaps[16 if dpos == 1 else 10][2].append(f"s_add_u32 m0, s29, {VREG + ((sg+3) % 4)*12288}")
    for n in range(3):
        gaps[P[3+n]][0].append(f"buffer_load_dwordx4 v{DV+n}, s[20:23], s30 offen offset:{1024*n} lds")
    gaps[36][2].append("s_add_u32 s30, s30, 12288")
    if extra:
        for g, s in extra:
            gaps[g][2].append(s)
    E, S = softmax_ops(cb, (2, 3))
    fill_valu(gaps, 0, 47, E, S)
    E, S = softmax_ops(nb, (0, 1))
    fill_valu(gaps, 48, 96, E, S)
    abl = CFG.get("abl", 0) if not first else 0
    for g in range(96):
        A(M[g])
        for s in gaps[g][0] + gaps[g][1] + gaps[g][2]:
            if abl & 1 and s.startswith("ds_read_b128"):
                continue
            if abl & 2 and s.startswith("ds_read_b64"):
                continue
            if abl & 4 and s.startswith("v_exp"):
                continue
            if abl & 8 and s.startswith("v_add"):
                continue
            if abl & 16 and s.startswith("v_cvt"):
                continue
            if abl & 32 and s.startswith("buffer_load"):
                continue
            if abl & 64 and s.startswith("s_barrier"):
                continue
            A(s)


def gen_tail(A, sg):
    cb = sg & 1
    for j in range(16):
        A(v_read(sg, j // 2, j & 1))
        if j == 11:
            A("s_waitcnt lgkmcnt(4)")
    E, S = softmax_ops(cb, (2, 3))
    for e in E:
        A(e)
    A("s_nop 0")
    for _, s in S:
        A(s)
    A("s_waitcnt lgkmcnt(0)")
    A("s_nop 1")
    for dt in range(12):
        if dt == 8:
            A("s_waitcnt lgkmcnt(0)")
        for qt in range(4):
            o = ar(oacc(dt, qt), 4)
            A(mfma(o, vr(VF+(dt % 8)*4, 4), vr(sreg(cb, qt, 0), 4), o))
            if 1 <= dt <= 4 and qt < 2:
                A(v_read(sg, dt + 7, qt))


def xlane_reduce(A, op, regs, tmp):
    for swap in ("v_permlane32_swap_b32", "v_permlane16_swap_b32"):
        for i, r in enumerate(regs):
            A(f"v_mov_b32 v{tmp+i}, v{r}")
        A("s_nop 1")
        for i, r in enumerate(regs):
            A(f"{swap} v{tmp+i}, v{r}")
        A("s_nop 1")
        for i, r in enumerate(regs):
            A(f"{op} v{r}, v{r}, v{tmp+i}")


class Track:
    def __init__(self, name, init=()):
        self.name, self.q, self.done = name, list(init), 0

    def issue(self, tag):
        self.q.append(tag)

    def need(self, tags):
        idx = max((len(self.q) - 1 - self.q[::-1].index(t)) for t in tags)
        if idx < self.done:
            return None
        self.done = idx + 1
        return len(self.q) - 1 - idx

    def drain(self):
        self.done = len(self.q)


XREG = 110592
CREG = 143360
PREG = 98304
FREG = 147456
K1_LDS = 147456 + 64


def gen_k1(A, cfg):
    name = "k1_kernel"
    kernel_begin(A, name)
    A("s_cmp_ge_u32 s2, 256")
    A("s_cbranch_scc1 K1_END")
    ST = Stamps(A, cfg.get("stamp", 0), 1)
    ST()
    A("s_load_dwordx2 s[34:35], s[0:1], 0")
    A("s_load_dwordx4 s[44:47], s[0:1], 24")
    A("s_load_dwordx4 s[48:51], s[0:1], 48")
    A("s_load_dwordx4 s[40:43], s[0:1], 8")
    A("s_load_dwordx2 s[58:59], s[0:1], 64")
    A("s_load_dwordx2 s[52:53], s[0:1], 88")
    A("v_lshrrev_b32 v1, 6, v0")
    A("v_and_b32 v0, 63, v0")
    A("v_readfirstlane_b32 s28, v1")
    A("s_and_b32 s31, s2, 7")
    A("s_lshr_b32 s32, s2, 3")
    A("s_lshl_b32 s31, s31, 2")
    A("s_and_b32 s33, s32, 3")
    A("s_add_u32 s31, s31, s33")
    A("s_lshr_b32 s32, s32, 2")
    A("s_mul_i32 s29, s28, 3072")
    XD, XR, WD, GD, CQ, CG, CC = 14, 16, 18, 21, 24, 26, 27
    A("v_lshrrev_b32 v36, 3, v0")
    A("v_mul_u32_u24 v37, 1280, v36")
    A("v_lshrrev_b32 v38, 4, v0")
    A("v_and_b32 v39, 7, v0")
    A("v_xor_b32 v39, v39, v38")
    A(f"v_lshl_add_u32 v{XD}, v39, 4, v37")
    A("v_xor_b32 v39, 4, v39")
    A(f"v_lshl_add_u32 v{XD+1}, v39, 4, v37")
    for n in range(3):
        A(f"v_add_u32 v40, {64*n}, v0")
        A(f"v_mul_u32_u24 v{44+n}, 2731, v40")
        A(f"v_lshrrev_b32 v{44+n}, 16, v{44+n}")
        A(f"v_mul_u32_u24 v41, 24, v{44+n}")
        A("v_sub_u32 v41, v40, v41")
        A(f"v_and_b32 v42, 2, v{44+n}")
        A("v_lshlrev_b32 v42, 1, v42")
        A("v_xor_b32 v41, v41, v42")
        A("s_lshl_b32 s33, s28, 4")
        A(f"v_add_u32 v42, s33, v{44+n}")
        A("v_mul_u32_u24 v42, 12288, v42")
        A("v_lshl_add_u32 v42, v41, 4, v42")
        A(f"v_subrev_u32 v{WD+n}, {1024*n}, v42")
        A("v_mul_u32_u24 v41, 10923, v40")
        A("v_lshrrev_b32 v41, 16, v41")
        A("v_mul_u32_u24 v42, 6, v41")
        A("v_sub_u32 v42, v40, v42")
        A("s_and_b32 s33, s28, 1")
        A("s_lshl_b32 s33, s33, 5")
        A("v_add_u32 v41, s33, v41")
        A("v_mul_u32_u24 v41, 3072, v41")
        A("v_lshl_add_u32 v41, v42, 4, v41")
        A(f"v_subrev_u32 v{GD+n}, {1024*n}, v41")
    rot = cfg.get("k1rot", 0)
    if rot == 0:
        A("s_mov_b32 s56, 0")
    elif rot == 1:
        A("s_add_u32 s56, s31, s32")
        A("s_and_b32 s56, s56, 1")
        A("s_mul_i32 s56, s56, 5")
    else:
        A("s_and_b32 s56, s31, 3")
        A("s_mul_i32 s56, s56, 5")
        A("s_lshr_b32 s56, s56, 1")
        A("s_add_u32 s56, s56, s32")
        A("s_cmp_ge_u32 s56, 10")
        A("s_cselect_b32 s57, 10, 0")
        A("s_sub_u32 s56, s56, s57")
    A("s_lshl_b32 s36, s56, 7")
    A(f"s_mul_i32 s38, s56, {64*3072}")
    A("s_lshl_b32 s37, s38, 2")
    A("s_mov_b32 s39, 0")
    A("s_lshl_b32 s57, s28, 13")
    A(f"s_add_u32 s57, s57, {XREG}")
    A("s_lshl_b32 s33, s32, 2")
    A("s_add_u32 s33, s33, s28")
    A(f"s_mul_i32 s56, s33, {64*1280}")
    A("s_waitcnt lgkmcnt(0)")
    srd(A, 4, 34, off_sgpr=56, size=64*1280)
    A("s_mul_i32 s34, s31, 384")
    A(f"s_sub_u32 s35, {640*12288}, s34")
    srd(A, 8, 44, off_sgpr=34, size_sgpr=35)
    A("s_cmp_lt_u32 s28, 2")
    A("s_cselect_b32 s44, s48, s50")
    A("s_cselect_b32 s45, s49, s51")
    A("s_mul_i32 s34, s31, 96")
    A(f"s_sub_u32 s35, {640*3072}, s34")
    srd(A, 12, 44, off_sgpr=34, size_sgpr=35)

    GA, SUM, GRM, CAC, ONE, WF, CF, XF = 0, 96, 112, 128, 148, 152, 176, 192
    QA = 64
    SLOT = 36864

    def qacc(t, qt):
        return QA + ((t >> 1)*4 + qt)*8 + (t & 1)*4

    def x_dma(n):
        return [("s", f"s_add_u32 m0, s57, {1024*n}"), ("s", f"s_add_u32 s35, s36, {10240*n}"),
                ("d", f"buffer_load_dwordx4 v{XD+(n&1)}, s[4:7], s35 offen lds")]
    xadv = [("s", "s_add_u32 s36, s36, 128"), ("s2", "s_cmp_eq_u32 s36, 1280", "s_cselect_b32 s36, 0, s36")]

    def x_read(st, k2, qt):
        return f"ds_read_b128 {ar(XF+st*32+(k2*4+qt)*4, 4)}, v{XR+k2} offset:{qt*2048}"

    def w_dma():
        L = []
        L.append(("s", "s_lshl_b32 s34, s29, 1"))
        L.append(("s", "s_add_u32 m0, s39, s34"))
        for n in range(3):
            L.append(("d", f"buffer_load_dwordx4 v{WD+n}, s[8:11], s37 offen offset:{1024*n} lds"))
        L.append(("s", "s_add_u32 m0, m0, 3072"))
        L.append(("s", f"s_add_u32 s35, s37, {8*12288}"))
        for n in range(3):
            L.append(("d", f"buffer_load_dwordx4 v{WD+n}, s[8:11], s35 offen offset:{1024*n} lds"))
        L.append(("s", "s_add_u32 s34, s29, 24576"))
        L.append(("s", "s_add_u32 m0, s39, s34"))
        for n in range(3):
            L.append(("d", f"buffer_load_dwordx4 v{GD+n}, s[12:15], s38 offen offset:{1024*n} lds"))
        L.append(("s", f"s_add_u32 s38, s38, {64*3072}"))
        if rot:
            L.append(("s2", f"s_cmp_eq_u32 s38, {640*3072}", "s_cselect_b32 s38, 0, s38"))
        L.append(("s", "s_lshl_b32 s37, s38, 2"))
        L.append(("s", f"s_add_u32 s39, s39, {SLOT}"))
        L.append(("s2", f"s_cmp_eq_u32 s39, {3*SLOT}", "s_cselect_b32 s39, 0, s39"))
        return L

    def emit_plain(L):
        prev = None
        for e in L:
            if e[0] == "d" and prev is not None and "m0" in prev:
                A("s_nop 0")
            for s in e[1:]:
                A(s)
            prev = e[-1]

    def w_reads(t):
        L = []
        for k2 in range(2):
            for rd in range(2):
                d = ar(WF + (t % 3)*8 + k2*4 + 2*rd, 2)
                if t < 12:
                    u, par = t >> 1, t & 1
                    L.append(f"ds_read_b64_tr_b16 {d}, v{CQ+(u&1)} offset:{k2*32*384+rd*4*384+128*(u>>1)+8*par}")
                else:
                    tt = t - 12
                    L.append(f"ds_read_b64_tr_b16 {d}, v{CG} offset:{24576+(tt//3)*6144+k2*32*96+rd*4*96+32*(tt%3)}")
        return L

    def c_reads(p):
        L = []
        for k2 in range(2):
            for rd in range(2):
                d = ar(CF + k2*4 + 2*rd, 2)
                if p < 3:
                    L.append(f"ds_read_b64_tr_b16 {d}, v{CC} offset:{k2*32*384+rd*4*384+128*p}")
                else:
                    L.append(f"ds_read_b64_tr_b16 {d}, v{CC+p-2} offset:{24576+k2*32*96+rd*4*96}")
        return L

    for n in range(8):
        emit_plain(x_dma(n))
    emit_plain(xadv)
    emit_plain(w_dma())
    emit_plain(w_dma())
    A(f"s_mul_i32 s34, s33, {4*RT_STRIDE}")
    srd(A, 24, 52, off_sgpr=34, off_imm=OF_OFF, size=4*RT_STRIDE)
    A("s_mul_i32 s34, s31, 786432")
    srd(A, 16, 40, off_sgpr=34, size=786432)
    srd(A, 20, 42, off_sgpr=34, size=786432)
    A("s_cmp_ge_u32 s2, 192")
    A("s_cselect_b32 s44, s58, s46")
    A("s_cselect_b32 s45, s59, s47")
    A("s_cselect_b32 s34, 192, 0")
    A("s_sub_u32 s34, s2, s34")
    A("s_min_u32 s34, s34, 191")
    A("s_mul_i32 s34, s34, 40960")
    A("s_cmp_lt_u32 s2, 240")
    A("s_cselect_b32 s35, 40960, 0")
    srd(A, 40, 44, off_sgpr=34, size_sgpr=35)
    A("s_mul_i32 s34, s2, 40960")
    srd(A, 48, 52, off_sgpr=34, off_imm=WP_OFF, size_sgpr=35)
    A("v_bfe_u32 v39, v0, 2, 2")
    A("v_and_b32 v40, 3, v0")
    A("v_and_b32 v41, 15, v0")
    for n in range(3):
        A("s_lshl_b32 s34, s28, 3")
        A(f"v_add_u32 v42, s34, v{44+n}")
        A("v_bfe_u32 v43, v42, 1, 3")
        A("v_xor_b32 v43, v43, v0")
        A("v_lshlrev_b32 v43, 4, v43")
        A("v_add_u32 v43, s29, v43")
        A(f"v_add_u32 v{DK+n}, 12288, v43")
        A("v_and_b32 v43, 6, v42")
        A("v_xor_b32 v43, v43, v0")
        A("v_lshlrev_b32 v43, 4, v43")
        A(f"v_add_u32 v{DV+n}, s29, v43")
    A("v_lshl_add_u32 v42, v38, 3, v39")
    A("v_mul_u32_u24 v43, 384, v42")
    A("v_lshl_add_u32 v43, v40, 4, v43")
    A("v_lshrrev_b32 v44, 1, v39")
    A(f"v_lshl_add_u32 v{CQ}, v44, 6, v43")
    A("v_xor_b32 v45, 1, v44")
    A(f"v_lshl_add_u32 v{CQ+1}, v45, 6, v43")
    A("s_lshr_b32 s34, s28, 1")
    A("v_xor_b32 v45, s34, v44")
    A(f"v_lshl_add_u32 v{CC}, v45, 6, v43")
    A("s_and_b32 s35, s28, 1")
    A("s_lshl_b32 s34, s35, 3")
    A(f"v_add_u32 v{CC}, s34, v{CC}")
    A("v_mul_u32_u24 v43, 96, v42")
    A(f"v_lshl_add_u32 v{CG}, v40, 3, v43")
    A("s_lshl_b32 s34, s28, 5")
    A("s_cmp_eq_u32 s28, 3")
    A("s_cselect_b32 s34, 6144, s34")
    A(f"v_add_u32 v{CC+1}, s34, v{CG}")
    A("s_lshl_b32 s34, s35, 5")
    A(f"s_add_u32 s34, s34, {6144+32}")
    A(f"v_add_u32 v{CC+2}, s34, v{CG}")
    A("v_bfe_u32 v44, v41, 1, 3")
    A("v_xor_b32 v44, v44, v38")
    A("v_xor_b32 v45, 4, v44")
    A("v_lshlrev_b32 v43, 7, v41")
    A("v_add_u32 v43, s57, v43")
    A(f"v_lshl_add_u32 v{XR}, v44, 4, v43")
    A(f"v_lshl_add_u32 v{XR+1}, v45, 4, v43")
    A("v_mul_u32_u24 v43, 384, v41")
    A(f"v_lshl_add_u32 v{VK}, v44, 4, v43")
    A(f"v_lshl_add_u32 v{VK+1}, v45, 4, v43")
    A("v_lshrrev_b32 v42, 2, v0")
    A("v_mul_u32_u24 v43, 384, v42")
    A(f"v_add_u32 v43, {VREG}, v43")
    A("v_and_b32 v44, 1, v40")
    A("v_lshl_add_u32 v43, v44, 3, v43")
    A("v_and_b32 v44, 6, v42")
    A("v_lshrrev_b32 v45, 1, v40")
    A("v_xor_b32 v44, v44, v45")
    for j in range(4):
        A(f"v_xor_b32 v45, {2*j}, v44")
        A(f"v_lshl_add_u32 v{VV+j}, v45, 4, v43")
    PD = 30
    A("s_mul_i32 s34, s28, 320")
    for n in range(5):
        A(f"v_add_u32 v43, {64*n}, v0")
        A("v_mul_u32_u24 v44, 3277, v43")
        A("v_lshrrev_b32 v44, 16, v44")
        A("v_mul_u32_u24 v45, 20, v44")
        A("v_sub_u32 v45, v43, v45")
        A("v_mul_u32_u24 v44, 1280, v44")
        A("v_lshl_add_u32 v44, v45, 4, v44")
        A(f"v_add_u32 v{PD+n}, s34, v44")
    PR = 35
    A("v_mul_u32_u24 v43, 320, v42")
    A("v_lshl_add_u32 v43, v40, 3, v43")
    A("s_mul_i32 s34, s28, 10240")
    A(f"s_add_u32 s58, s34, {PREG}")
    A(f"v_add_u32 v{PR}, s58, v43")
    for i in range(ONE):
        A(f"v_accvgpr_write_b32 a{i}, 0")
    A("v_mov_b32 v43, 0x3f803f80")
    for i in range(4):
        A(f"v_accvgpr_write_b32 a{ONE+i}, v43")
    for i in range(192):
        A(f"v_mov_b32 v{QA+i}, 0")
    A("s_waitcnt vmcnt(18)")
    for k2 in range(2):
        for qt in range(4):
            A(x_read(0, k2, qt))
    A("s_waitcnt lgkmcnt(0)")
    for n in range(8):
        emit_plain(x_dma(n))
    emit_plain(xadv)
    A("s_waitcnt vmcnt(17)")
    A("s_barrier")
    ST()
    for s in w_reads(0) + w_reads(1):
        A(s)
    A("s_mov_b32 s54, 5")
    A("s_mov_b32 s33, 0")
    A(f"s_mov_b32 s55, {SLOT}")
    A(f"s_mov_b32 s56, {-2*SLOT & 0xffffffff}")
    A.raw(".p2align 5")
    A.label("K1_GEMM")
    for st in range(2):
        M = []
        blk = []
        xf = lambda k2, qt: ar(XF+st*32+(k2*4+qt)*4, 4)
        stat_blocks = [0, 1, 3, 4, 6, 7, 9, 10]
        for t in range(18):
            blk.append(len(M))
            for qt in range(4):
                acc = vr(qacc(t, qt), 4) if t < 12 else ar(GA + ((t-12)*4+qt)*4, 4)
                for k2 in range(2):
                    M.append((mfma(acc, ar(WF+(t % 3)*8+k2*4, 4), xf(k2, qt), acc), [f"w{t}"]))
            if t % 3 == 2 and t < 15:
                p = t // 3
                for k2 in range(2):
                    M.append((mfma(ar(CAC+4*p, 4), ar(CF+k2*4, 4), ar(ONE, 4), ar(CAC+4*p, 4)), [f"c{p}"]))
            if t in stat_blocks:
                i = stat_blocks.index(t)
                k2, qt = i >> 2, i & 3
                M.append((mfma(ar(SUM+4*qt, 4), ar(ONE, 4), xf(k2, qt), ar(SUM+4*qt, 4)), []))
                M.append((mfma(ar(GRM+4*qt, 4), xf(k2, qt), xf(k2, qt), ar(GRM+4*qt, 4)), []))
        NG = len(M)
        blk.append(NG)
        front = [None]*NG
        back = [[] for _ in range(NG)]
        resv = set(b - 1 for b in blk[1:])

        def room(g):
            return 2 - (front[g] is not None) - len(back[g]) - (g in resv)

        def put_front(g, e):
            while front[g] is not None or room(g) < 1:
                g += 1
            front[g] = e
            return g

        def put_back(g, ss):
            while room(g) < len(ss):
                g += 1
            back[g] += ss
            return g
        for t in range(18):
            for k, s_ in enumerate(w_reads((t+2) % 18)):
                front[blk[t]+k] = ("l", s_, f"w{(t+2) % 18}" + ("n" if t >= 16 else ""), None)
        for p in range(5):
            for k, s_ in enumerate(c_reads(p)):
                front[blk[3*p]+4+k] = ("l", s_, f"c{p}", None)
        xr_gap = []
        for qt in range(4):
            g = blk[5+2*qt] + 4
            for k2 in range(2):
                g = put_front(g, ("l", x_read(st ^ 1, k2, qt), f"x{qt}", ("vm", f"X{qt}")))
            xr_gap.append(g)
        g = 0
        last_d = -10
        nd = 0
        for e in w_dma():
            if e[0] == "d":
                g = put_front(max(g + 1, last_d + 7), ("d", e[1], f"W{nd}", None))
                last_d = g
                nd += 1
            else:
                g = put_back(g, list(e[1:]))
        assert g < blk[9], (g, blk)
        for n in range(8):
            g = max(g, blk[8 + 2*(n >> 1)])
            for e in x_dma(n):
                if e[0] == "d":
                    g = put_front(max(g + 1, last_d + 5), ("d", e[1], f"X{n>>1}", ("lg", f"x{n>>1}")))
                    print("xdma", n, g, blk, file=sys.stderr) if cfg.get("v") else None
                    last_d = g
                else:
                    g = put_back(g, list(e[1:]))
        for e in xadv:
            g = put_back(g, list(e[1:]))
        gb = blk[16] - 1
        g = put_back(blk[12] + 1, [f"s_add_u32 s33, s33, {SLOT}"])
        g = put_back(g + 1, [f"s_cmp_eq_u32 s33, {3*SLOT}", "s_cselect_b32 s59, s56, s55"])
        g = put_back(g + 1, [f"s_cmp_eq_u32 s33, {3*SLOT}", "s_cselect_b32 s33, 0, s33"])
        assert g < gb
        LG = Track("lgkm", ["w0"]*4 + ["w1"]*4)
        VM = Track("vm", [f"W{i}" for i in range(9)] + [f"X{i>>1}" for i in range(8)])
        prevW8 = 8
        for g in range(NG):
            txt, needs = M[g]
            if needs:
                n_ = LG.need(needs)
                if n_ is not None:
                    A(f"s_waitcnt lgkmcnt({n_})")
            A(txt)
            if front[g] is not None:
                kind, s_, tag, nd_ = front[g]
                if nd_:
                    n_ = (VM if nd_[0] == "vm" else LG).need([nd_[1]])
                    if n_ is not None:
                        A(f"s_waitcnt {'vmcnt' if nd_[0] == 'vm' else 'lgkmcnt'}({n_})")
                ga = cfg.get("gabl", 0)
                if not ((ga & 2 and kind == "d") or (ga & 4 and kind == "l")):
                    A(s_)
                (LG if kind == "l" else VM).issue(tag)
            for s_ in back[g]:
                A(s_)
            if g == gb:
                assert VM.done > prevW8
                A("s_waitcnt lgkmcnt(0)")
                LG.drain()
                A("s_barrier")
                for r_ in (CQ, CQ+1, CG, CC, CC+1, CC+2):
                    A(f"v_add_u32 v{r_}, s59, v{r_}")
        assert [t for t in VM.q[17:]] == [f"W{i}" for i in range(9)] + [f"X{i>>1}" for i in range(8)], VM.q
        assert LG.q[LG.done:] == ["w0n"]*4 + ["w1n"]*4 or LG.q[-8:] == ["w0n"]*4 + ["w1n"]*4
    A("s_sub_u32 s54, s54, 1")
    A("s_cmp_lg_u32 s54, 0")
    A("s_cbranch_scc1 K1_GEMM")
    ST()
    A("s_mov_b32 s55, 0")
    A("v_lshrrev_b32 v36, 4, v0")
    A("v_lshlrev_b32 v36, 4, v36")
    A(f"v_add_u32 v36, {CREG}, v36")
    A("s_lshl_b32 s34, s28, 6")
    A("v_add_u32 v37, s34, v36")
    A("s_and_b32 s34, s34, 64")
    A("v_add_u32 v38, s34, v36")
    for p in range(4):
        A(f"ds_write_b128 v37, {ar(CAC+4*p, 4)} offset:{256*p}")
    A(f"ds_write_b128 v38, {ar(CAC+16, 4)} offset:1024")
    A("s_waitcnt vmcnt(0) lgkmcnt(0)")

    def kv_start():
        A("s_barrier")
        order = [("K", 0), ("K", 1), ("V", 0), ("K", 2), ("V", 1), ("K", 3), ("V", 2)]
        for kind, i in order:
            A(f"s_add_u32 m0, s29, {(KREG if kind == 'K' else VREG) + i*12288}")
            if kind == "K":
                if i == 0:
                    for n in range(3):
                        A(f"v_subrev_u32 v{37+n}, 12288, v{DK+n}")
                    for n in range(3):
                        A(f"buffer_load_dwordx4 v{37+n}, s[16:19], 0 offen offset:{1024*n} lds")
                else:
                    A(f"s_mov_b32 s30, {(i-1)*12288}")
                    for n in range(3):
                        A(f"buffer_load_dwordx4 v{DK+n}, s[16:19], s30 offen offset:{1024*n} lds")
            else:
                A(f"s_mov_b32 s30, {i*12288}")
                for n in range(3):
                    A(f"buffer_load_dwordx4 v{DV+n}, s[20:23], s30 offen offset:{1024*n} lds")
        A(f"s_mov_b32 s30, {3*12288}")
    kv_start()
    A(f"s_mov_b32 s34, {16*1280}")
    for n in range(10):
        A(f"s_add_u32 m0, s58, {1024*n}")
        A("s_nop 0")
        A(f"buffer_load_dwordx4 v{PD+n%5}, s[40:43], {'0' if n < 5 else 's34'} offen lds")
    CT = 48
    for i in range(4):
        A(f"ds_read_b128 v[{CT+4*i}:{CT+4*i+3}], v36 offset:{64*(11-(i^1))}")
    PA, PB = 14, 22
    G0 = 40
    TT = 44
    for qt in range(4):
        A(f"v_accvgpr_read_b32 v{G0+qt}, a{GRM+4*qt}")
    A("v_and_b32 v37, 3, v0")
    for r in range(1, 4):
        A(f"v_cmp_eq_u32 vcc, {r}, v37")
        for qt in range(4):
            A(f"v_accvgpr_read_b32 v{TT+qt}, a{GRM+4*qt+r}")
        for qt in range(4):
            A(f"v_cndmask_b32 v{G0+qt}, v{G0+qt}, v{TT+qt}, vcc")
    A("v_bfe_u32 v37, v0, 2, 2")
    A("v_lshrrev_b32 v38, 4, v0")
    A("v_cmp_eq_u32 vcc, v37, v38")
    A("s_nop 1")
    for qt in range(4):
        A(f"v_cndmask_b32 v{G0+qt}, 0, v{G0+qt}, vcc")
    xlane_reduce(A, "v_add_f32", [G0+q for q in range(4)], TT)
    A(f"s_mov_b32 s34, {hex(f2u(1.0/640))}")
    for qt in range(4):
        A(f"v_accvgpr_read_b32 v{TT+qt}, a{SUM+4*qt}")
    for qt in range(4):
        A(f"v_mul_f32 v{TT+qt}, s34, v{TT+qt}")
        A(f"v_mul_f32 v{G0+qt}, s34, v{G0+qt}")
    for qt in range(4):
        A(f"v_fma_f32 v{G0+qt}, -v{TT+qt}, v{TT+qt}, v{G0+qt}")
    for qt in range(4):
        A(f"v_max_f32 v{G0+qt}, 0, v{G0+qt}")
    for qt in range(4):
        A(f"v_cvt_pk_bf16_f32 v{G0+qt}, v{TT+qt}, v{G0+qt}")
    for qt in range(4):
        A(f"v_lshlrev_b32 v{TT+qt}, 16, v{G0+qt}")
        A(f"v_and_b32 v{G0+qt}, 0xffff0000, v{G0+qt}")
    for qt in range(4):
        A(f"v_sub_f32 v{PA+2*qt}, 0, v{TT+qt}")
        A(f"v_add_f32 v{G0+qt}, {hex(f2u(1e-5))}, v{G0+qt}")
    for qt in range(4):
        A(f"v_cvt_pk_bf16_f32 v{G0+qt}, v{G0+qt}, v{G0+qt}")
    for qt in range(4):
        A(f"v_lshlrev_b32 v{G0+qt}, 16, v{G0+qt}")
    for qt in range(4):
        A(f"v_sqrt_f32 v{G0+qt}, v{G0+qt}")
    for qt in range(4):
        A(f"v_cvt_pk_bf16_f32 v{G0+qt}, v{G0+qt}, v{G0+qt}")
    for qt in range(4):
        A(f"v_lshlrev_b32 v{G0+qt}, 16, v{G0+qt}")
    for qt in range(4):
        A(f"v_rcp_f32 v{TT+qt}, v{G0+qt}")
    for qt in range(4):
        A(f"v_mul_f32 v{PB+2*qt+1}, v{G0+qt}, v{G0+qt}")
    for qt in range(4):
        A(f"v_mul_f32 v{PA+2*qt+1}, {hex(f2u(LOG2E * 192 ** -0.5))}, v{TT+qt}")
        A(f"v_mul_f32 v{PB+2*qt}, {hex(f2u(-LOG2E))}, v{TT+qt}")
    for u in range(5, -1, -1):
        cb_ = CT + 8*((5-u) & 1)
        A("s_waitcnt lgkmcnt(2)" if u > 0 else "s_waitcnt lgkmcnt(0)")
        for qt in range(3, -1, -1):
            B = QA + (u*4+qt)*8
            pa = vr(PA+2*qt, 2)
            for p in range(4):
                A(f"v_pk_fma_f32 {vr(B+2*p, 2)}, {pa}, {vr(cb_+2*p, 2)}, {vr(B+2*p, 2)} op_sel_hi:[0,1,1]")
            for p in range(4):
                A(f"v_pk_mul_f32 {vr(B+2*p, 2)}, {pa}, {vr(B+2*p, 2)} op_sel:[1,0]")
            for p in range(3, -1, -1):
                A(f"v_cvt_pk_bf16_f32 v{QF+(u*4+qt)*4+p}, v{B+2*p}, v{B+2*p+1}")
        if u >= 2:
            for i in range(2):
                A(f"ds_read_b128 v[{cb_+4*i}:{cb_+4*i+3}], v36 offset:{64*(2*(u-2)+i)}")
    HC = 64
    for t in range(6):
        A(f"ds_read_b128 v[{HC+4*t}:{HC+4*t+3}], v36 offset:{64*(12+t)}")
    A("v_lshlrev_b32 v40, 4, v0")
    for qt in range(1, 4):
        A(f"v_add_u32 v{40+qt}, {qt*RT_STRIDE}, v40")
    for t in range(3):
        A("s_mul_i32 s35, s31, 3")
        A(f"s_add_u32 s35, s35, {t}")
        A("s_and_b32 s36, s35, 1")
        A("s_lshl_b32 s36, s36, 3")
        A("s_lshr_b32 s35, s35, 1")
        A("s_add_u32 s35, s35, 192")
        A("s_lshl_b32 s35, s35, 10")
        A(f"s_add_u32 s{37+t}, s35, s36")
    A("s_waitcnt lgkmcnt(0)")
    cnt = 0
    stf = cfg.get("stflag", "")
    for t in range(3):
        for qt in range(4):
            G = 96 + (cnt % 4)*12
            U, T0 = G + 4, G + 8
            cnt += 1
            pa, pb = vr(PA+2*qt, 2), vr(PB+2*qt, 2)
            for r in range(4):
                A(f"v_accvgpr_read_b32 v{G+r}, a{GA+(t*4+qt)*4+r}")
            for r in range(4):
                A(f"v_accvgpr_read_b32 v{U+r}, a{GA+((t+3)*4+qt)*4+r}")
            for p in range(2):
                A(f"v_pk_fma_f32 {vr(G+2*p, 2)}, {pa}, {vr(HC+4*t+2*p, 2)}, {vr(G+2*p, 2)} op_sel_hi:[0,1,1]")
            for p in range(2):
                A(f"v_pk_fma_f32 {vr(U+2*p, 2)}, {pa}, {vr(HC+4*(t+3)+2*p, 2)}, {vr(U+2*p, 2)} op_sel_hi:[0,1,1]")
            for p in range(2):
                A(f"v_pk_mul_f32 {vr(T0+2*p, 2)}, {pb}, {vr(G+2*p, 2)} op_sel_hi:[0,1]")
            for r in range(4):
                A(f"v_exp_f32 v{T0+r}, v{T0+r}")
            for p in range(2):
                A(f"v_pk_mul_f32 {vr(G+2*p, 2)}, {vr(G+2*p, 2)}, {vr(U+2*p, 2)}")
            for p in range(2):
                A(f"v_pk_fma_f32 {vr(T0+2*p, 2)}, {vr(T0+2*p, 2)}, {pb}, {pb} op_sel:[0,1,1]")
            for r in range(4):
                A(f"v_rcp_f32 v{T0+r}, v{T0+r}")
            A("s_nop 0")
            for p in range(2):
                A(f"v_pk_mul_f32 {vr(G+2*p, 2)}, {vr(G+2*p, 2)}, {vr(T0+2*p, 2)}")
            for p in range(2):
                A(f"v_cvt_pk_bf16_f32 v{G+p}, v{G+2*p}, v{G+2*p+1}")
            A(f"buffer_store_dwordx2 v[{G}:{G+1}], v{40+qt}, s[24:27], s{37+t} offen{STF()}")
    A("s_waitcnt vmcnt(12)")
    for ct in range(10):
        b = 96 + 4*ct if ct >= 4 else 48 + 4*ct
        if ct == 4:
            A("s_nop 1")
        A(f"ds_read_b64_tr_b16 v[{b}:{b+1}], v{PR} offset:{32*ct}")
        A(f"ds_read_b64_tr_b16 v[{b+2}:{b+3}], v{PR} offset:{32*ct+16*320}")
        if ct == 5:
            A("s_waitcnt lgkmcnt(4)")
    A("s_mul_i32 s34, s28, 10240")
    A("s_add_u32 s35, s34, 4096")
    A("s_add_u32 s36, s34, 8192")
    A("s_waitcnt lgkmcnt(0)")
    for ct in range(10):
        b = 96 + 4*ct if ct >= 4 else 48 + 4*ct
        A(f"buffer_store_dwordx4 v[{b}:{b+3}], v40, s[48:51], s{34+ct//4} offen offset:{1024*(ct%4)}{STF()}")
    for i in range(16):
        A(f"v_mov_b32 v{NM+i}, 0")
    A.label("K1_ATT")
    for i in range(8):
        A(f"v_mov_b32 v{LS+i}, 0")
    A("s_barrier")
    for kt in range(2):
        for u in range(6):
            A(k_read(0, kt, u))
    A("s_waitcnt lgkmcnt(6)")
    for kt in range(2):
        if kt == 1:
            A("s_waitcnt lgkmcnt(0)")
        for qt in range(4):
            d = vr(sreg(0, qt, kt), 4)
            for u in range(6):
                A(mfma(d, ar(KF+kt*24+u*4, 4), qf(qt, u), vr(NM+qt*4, 4) if u == 0 else d))
    A("s_barrier")
    for u in range(6):
        A(k_read(1, 0, u))
    A("s_nop 0")
    A("s_cmp_lg_u32 s55, 0")
    A("s_cbranch_scc1 K1_SKIPMAX")
    for qt in range(4):
        b = sreg(0, qt, 0)
        A(f"v_max3_f32 v{30+qt}, v{b}, v{b+1}, v{b+2}")
        A(f"v_max3_f32 v{30+qt}, v{30+qt}, v{b+3}, v{b+4}")
        A(f"v_max3_f32 v{30+qt}, v{30+qt}, v{b+5}, v{b+6}")
        A(f"v_max_f32 v{30+qt}, v{30+qt}, v{b+7}")
    xlane_reduce(A, "v_max_f32", [30, 31, 32, 33], 34)
    for qt in range(4):
        b = sreg(0, qt, 0)
        for r in range(4):
            A(f"v_sub_f32 v{NM+qt*4+r}, 0, v{30+qt}")
        for e in range(8):
            A(f"v_sub_f32 v{b+e}, v{b+e}, v{30+qt}")
    A.label("K1_SKIPMAX")
    E, S = softmax_ops(0, (0, 1))
    for e in E:
        A(e)
    A("s_nop 0")
    for _, s in S:
        A(s)
    ST()
    A("s_mov_b32 s54, 15")
    A("s_waitcnt lgkmcnt(0)")
    gen_stage(A, 0, first=True)
    A("s_branch K1_LOOP1")
    A.raw(".p2align 6")
    A.label("K1_LOOP")
    gen_stage(A, 0, extra=[(90, "s_sub_u32 s54, s54, 1")])
    A.label("K1_LOOP1")
    gen_stage(A, 1)
    gen_stage(A, 2, extra=[(93, "s_cmp_eq_u32 s54, 0")])
    A("s_cbranch_scc1 K1_TAIL")
    gen_stage(A, 3)
    A("s_branch K1_LOOP")
    A.label("K1_TAIL")
    gen_tail(A, 3)
    ST()
    for qt in range(4):
        A(f"v_add_f32 v{30+2*qt}, v{LS+2*qt}, v{LS+2*qt+1}")
    xlane_reduce(A, "v_add_f32", [30, 32, 34, 36], 14)
    A("s_cmp_lg_u32 s55, 0")
    A("s_cbranch_scc1 K1_EPI")
    A(f"v_mov_b32 v14, {hex(f2u(2.0**30))}")
    A("v_cmp_nlt_f32 vcc, v30, v14")
    A("s_mov_b64 s[56:57], vcc")
    for qt in range(1, 4):
        A(f"v_cmp_nlt_f32 vcc, v{30+2*qt}, v14")
        A("s_or_b64 s[56:57], s[56:57], vcc")
    A("s_cmp_lg_u64 s[56:57], 0")
    A("s_cselect_b32 s34, 1, 0")
    A("v_mov_b32 v14, s34")
    A("v_mov_b32 v15, s28")
    A("v_lshlrev_b32 v15, 2, v15")
    A(f"v_add_u32 v15, {FREG}, v15")
    A("ds_write_b32 v15, v14")
    A(f"v_mov_b32 v15, {FREG}")
    A("s_waitcnt lgkmcnt(0)")
    A("s_barrier")
    A("ds_read_b128 v[16:19], v15")
    A("s_waitcnt lgkmcnt(0)")
    A("v_or_b32 v16, v16, v17")
    A("v_or_b32 v18, v18, v19")
    A("v_or_b32 v16, v16, v18")
    A("s_nop 0")
    A("v_readfirstlane_b32 s34, v16")
    A("s_cmp_eq_u32 s34, 0" if not cfg.get("abl", 0) else "s_cmp_eq_u32 s34, s34")
    A("s_cbranch_scc1 K1_EPI")
    A("s_mov_b32 s55, 1")
    A("v_and_b32 v34, 15, v0")
    A("v_mul_u32_u24 v34, 384, v34")
    A("v_lshrrev_b32 v35, 4, v0")
    A("v_lshl_add_u32 v34, v35, 4, v34")
    for qt in range(4):
        A(f"v_mov_b32 v{30+qt}, 0xff800000")
    A("s_mov_b32 s34, 0")
    A.label("K1_MAXLOOP")
    for u in range(6):
        A(f"buffer_load_dwordx4 {ar(KF+u*4, 4)}, v34, s[16:19], s34 offen offset:{64*u}")
    A("s_waitcnt vmcnt(0)")
    for qt in range(4):
        d = vr(sreg(0, qt, 0), 4)
        for u in range(6):
            A(mfma(d, ar(KF+u*4, 4), qf(qt, u), "0" if u == 0 else d))
    A("s_nop 15")
    for qt in range(4):
        b = sreg(0, qt, 0)
        A(f"v_max3_f32 v{30+qt}, v{30+qt}, v{b}, v{b+1}")
        A(f"v_max3_f32 v{30+qt}, v{30+qt}, v{b+2}, v{b+3}")
    A("s_add_u32 s34, s34, 6144")
    A("s_cmp_lt_u32 s34, 786432")
    A("s_cbranch_scc1 K1_MAXLOOP")
    xlane_reduce(A, "v_max_f32", [30, 31, 32, 33], 34)
    for qt in range(4):
        for r in range(4):
            A(f"v_sub_f32 v{NM+qt*4+r}, 0, v{30+qt}")
    kv_start()
    A("s_waitcnt vmcnt(12)")
    A("s_branch K1_ATT")
    A.label("K1_EPI")
    for qt in range(4):
        A(f"v_rcp_f32 v{30+2*qt}, v{30+2*qt}")
    A("v_lshlrev_b32 v14, 4, v0")
    for qt in range(1, 4):
        A(f"v_add_u32 v{14+qt}, {qt*RT_STRIDE}, v14")
    A("s_mul_i32 s34, s31, 6144")
    A("s_add_u32 s35, s34, 4096")
    cnt = 0
    for qt in range(4):
        for u in range(6):
            T0 = 48 + (cnt % 4)*8
            P0 = 96 + (cnt % 8)*4
            cnt += 1
            for e in range(8):
                A(f"v_accvgpr_read_b32 v{T0+e}, a{oacc(2*u+(e>>2), qt)+(e&3)}")
            for p in range(4):
                A(f"v_pk_mul_f32 {vr(T0+2*p, 2)}, {vr(30+2*qt, 2)}, {vr(T0+2*p, 2)} op_sel_hi:[0,1]")
            for p in range(4):
                A(f"v_cvt_pk_bf16_f32 v{P0+p}, v{T0+2*p}, v{T0+2*p+1}")
            so, im = (34, 1024*u) if u < 4 else (35, 1024*(u-4))
            A(f"buffer_store_dwordx4 v[{P0}:{P0+3}], v{14+qt}, s[24:27], s{so} offen offset:{im}{STF()}")
    ST()
    ST.dump(28)
    A.label("K1_END")
    A("s_endpgm")
    kernel_desc(A, name, 512, 100 if ST.on else 64, 256)


def STF():
    return {0: "", 1: " sc1", 2: " sc0 sc1", 3: " nt"}[CFG.get("stf", 0)]


HEADER = """; Kernarg layout for this problem (96 bytes, ptrs only, base s[0:1]):
;   offset  72: d_out     shape=(1, 2048, 640) dtype=bfloat16
"""


CFG = {}


def generate(cfg):
    t = generate0(cfg)
    fl = {0: "", 1: " sc1", 2: " sc0 sc1", 3: " nt", 4: " sc0"}[cfg.get("ldf", 0)]
    return t.replace(" lds\n", fl + " lds\n")


def generate0(cfg):
    CFG.clear()
    CFG.update(cfg)
    A = Asm()
    A.raw(HEADER.rstrip())
    A.raw(f"; @launch kernel=k1_kernel grid=(256,1,1) block=(256,1,1) lds={K1_LDS}")
    A.raw(f"; @launch kernel=k2_kernel grid=(256,1,1) block=(256,1,1) lds={K2_LDS if cfg.get('k2', 1) else 122880}")
    A.raw('.amdgcn_target "amdgcn-amd-amdhsa--gfx950"')
    gen_k1(A, cfg)
    (gen_k2b if cfg.get('k2', 1) else gen_k2)(A, cfg)
    return A.text()


if __name__ == "__main__":
    for x in range(192):
        assert (x * 2731) >> 16 == x // 24 and (x * 10923) >> 16 == x // 6
    for x in range(320):
        assert (x * 3277) >> 16 == x // 20
    cfg = {}
    out = f"cdna_kernels/{NAME}.s"
    for a in sys.argv[1:]:
        if "=" in a:
            k, v = a.split("=")
            if k == "out":
                out = v
            else:
                cfg[k] = int(v)
    open(out, "w").write(generate(cfg))
    print("wrote", out)
```

```python
import sys, math, struct

NAME = "recurrent_scan__mha_block_cached__swiglu_ffn__prompt"
XN_OFF = 0
WP_OFF = 0x400000
OF_OFF = 0x1000000
RT_STRIDE = 240 * 1024
LOG2E = 1.4426950408889634


def f2u(x):
    return struct.unpack("<I", struct.pack("<f", x))[0]


class Asm:
    def __init__(self):
        self.L = []

    def __call__(self, s):
        self.L.append("    " + s)

    def label(self, s):
        self.L.append(s + ":")

    def raw(self, s):
        self.L.append(s)

    def text(self):
        return "\n".join(self.L) + "\n"


def vr(b, n=1):
    return f"v{b}" if n == 1 else f"v[{b}:{b+n-1}]"


def ar(b, n=1):
    return f"a{b}" if n == 1 else f"a[{b}:{b+n-1}]"


def sr(b, n=1):
    return f"s{b}" if n == 1 else f"s[{b}:{b+n-1}]"


def kernel_begin(A, name):
    A.raw(".text")
    A.raw(f".globl {name}")
    A.raw(".p2align 8")
    A.raw(f".type {name},@function")
    A.label(name)


def kernel_desc(A, name, nv, ns, ao):
    A.raw('.section .rodata,"a"')
    A.raw(".p2align 6")
    A.raw(f".amdhsa_kernel {name}")
    A.raw(f"  .amdhsa_next_free_vgpr {nv}")
    A.raw(f"  .amdhsa_next_free_sgpr {ns}")
    A.raw(f"  .amdhsa_accum_offset {ao}")
    A.raw("  .amdhsa_group_segment_fixed_size 0")
    A.raw("  .amdhsa_kernarg_size 96")
    A.raw("  .amdhsa_user_sgpr_count 2")
    A.raw("  .amdhsa_user_sgpr_kernarg_segment_ptr 1")
    A.raw("  .amdhsa_system_sgpr_workgroup_id_x 1")
    A.raw(".end_amdhsa_kernel")


def srd(A, d, ptr, off_sgpr=None, off_imm=0, size=None, size_sgpr=None):
    if off_sgpr is not None:
        A(f"s_add_u32 s{d}, s{ptr}, s{off_sgpr}")
        A(f"s_addc_u32 s{d+1}, s{ptr+1}, 0")
        if off_imm:
            A(f"s_add_u32 s{d}, s{d}, {off_imm}")
            A(f"s_addc_u32 s{d+1}, s{d+1}, 0")
    elif off_imm:
        A(f"s_add_u32 s{d}, s{ptr}, {off_imm}")
        A(f"s_addc_u32 s{d+1}, s{ptr+1}, 0")
    else:
        A(f"s_mov_b32 s{d}, s{ptr}")
        A(f"s_mov_b32 s{d+1}, s{ptr+1}")
    if size_sgpr is not None:
        A(f"s_mov_b32 s{d+2}, s{size_sgpr}")
    else:
        A(f"s_mov_b32 s{d+2}, {size}")
    A(f"s_mov_b32 s{d+3}, 0x00020000")


STAMP_OFF = 0x8000000


class Stamps:
    def __init__(self, A, on):
        self.A, self.on, self.n = A, on, 0

    def __call__(self):
        if not self.on:
            return
        A = self.A
        A("s_memtime s[66:67]")
        A("s_memrealtime s[68:69]")
        A("s_waitcnt lgkmcnt(0)")
        A(f"s_mov_b32 s{70+2*self.n}, s66")
        A(f"s_mov_b32 s{71+2*self.n}, s68")
        self.n += 1
        assert self.n <= 16

    def dump(self, wave_sgpr):
        if not self.on:
            return
        A = self.A
        A("s_waitcnt vmcnt(0)")
        self()
        A("s_lshl_b32 s33, s2, 2")
        A(f"s_add_u32 s33, s33, s{wave_sgpr}")
        A("s_lshl_b32 s33, s33, 7")
        A(f"s_add_u32 s33, s33, {STAMP_OFF}")
        A("s_add_u32 s34, s52, s33")
        A("s_addc_u32 s35, s53, 0")
        A("v_mov_b32 v1, 0")
        for i in range(self.n):
            A(f"v_mov_b32 v2, s{70+2*i}")
            A(f"v_mov_b32 v3, s{71+2*i}")
            A(f"global_store_dwordx2 v1, v[2:3], s[34:35] offset:{8*i}")
        A("s_waitcnt vmcnt(0)")


def mfma(d, a, b, c):
    return f"v_mfma_f32_16x16x32_bf16 {d}, {a}, {b}, {c}"


XCH_OFF = 0x4000000
K2_LDS = 4 * 36864


def final_combine(A, S, F, XR, T):
    A(f"s_mov_b32 s33, {hex(f2u(-LOG2E))}")
    for p in range(10):
        A(f"v_cvt_pk_bf16_f32 v{T+p}, v{S+2*p}, v{S+2*p+1}")
    for p in range(10):
        A(f"v_lshlrev_b32 v{S+2*p}, 16, v{T+p}")
        A(f"v_and_b32 v{S+2*p+1}, 0xffff0000, v{T+p}")
    for q in range(20):
        A(f"v_mul_f32 v{T+q}, s33, v{F+q}")
    for q in range(20):
        A(f"v_exp_f32 v{T+q}, v{T+q}")
    for q in range(20):
        A(f"v_add_f32 v{T+q}, 1.0, v{T+q}")
    for q in range(20):
        A(f"v_rcp_f32 v{T+q}, v{T+q}")
    for p in range(10):
        A(f"v_pk_mul_f32 {vr(F+2*p, 2)}, {vr(F+2*p, 2)}, {vr(T+2*p, 2)}")
    for p in range(10):
        A(f"v_cvt_pk_bf16_f32 v{T+p}, v{F+2*p}, v{F+2*p+1}")
    for p in range(10):
        A(f"v_lshlrev_b32 v{F+2*p}, 16, v{T+p}")
        A(f"v_and_b32 v{F+2*p+1}, 0xffff0000, v{T+p}")
    for p in range(10):
        A(f"v_pk_mul_f32 {vr(S+2*p, 2)}, {vr(S+2*p, 2)}, {vr(F+2*p, 2)}")
    for p in range(10):
        A(f"v_cvt_pk_bf16_f32 v{T+p}, v{S+2*p}, v{S+2*p+1}")
    for p in range(10):
        A(f"v_lshlrev_b32 v{S+2*p}, 16, v{T+p}")
        A(f"v_and_b32 v{S+2*p+1}, 0xffff0000, v{T+p}")
        A(f"v_lshlrev_b32 v{F+2*p}, 16, v{XR+p}")
        A(f"v_and_b32 v{F+2*p+1}, 0xffff0000, v{XR+p}")
    for p in range(10):
        A(f"v_pk_add_f32 {vr(S+2*p, 2)}, {vr(S+2*p, 2)}, {vr(F+2*p, 2)}")
    for p in range(10):
        A(f"v_cvt_pk_bf16_f32 v{XR+p}, v{S+2*p}, v{S+2*p+1}")


QF = 160
SB = 96
NM = 80
VF = 48
LS = 40
VK, VV, DK, DV = 2, 4, 8, 11
KF = 192
KREG, VREG = 36864, 86016


def qf(qt, u):
    return vr(QF + (u*4+qt)*4, 4)


def sreg(buf, qt, kt):
    return SB + buf*32 + qt*8 + kt*4


def oacc(dt, qt):
    return (dt*4 + qt) * 4


def k_read(slot, kt, u):
    return f"ds_read_b128 {ar(KF+kt*24+u*4, 4)}, v{VK+(u&1)} offset:{slot*12288+kt*6144+128*(u>>1)}"


def v_read(slot, dt, rd):
    b = VF + (dt % 8)*4 + 2*rd
    return f"ds_read_b64_tr_b16 {vr(b, 2)}, v{VV+(dt&3)} offset:{slot*12288+rd*6144+128*(dt>>2)}"


def softmax_ops(buf, qts):
    E, S = [], []
    for qt in qts:
        b = sreg(buf, qt, 0)
        for p in range(4):
            e0 = len(E)
            E.append(f"v_exp_f32 v{b+2*p}, v{b+2*p}")
            E.append(f"v_exp_f32 v{b+2*p+1}, v{b+2*p+1}")
            S.append((e0, f"v_add_f32 v{LS+2*qt}, v{LS+2*qt}, v{b+2*p}"))
            S.append((e0+1, f"v_add_f32 v{LS+2*qt+1}, v{LS+2*qt+1}, v{b+2*p+1}"))
            S.append((e0+1, f"v_cvt_pk_bf16_f32 v{b+p}, v{b+2*p}, v{b+2*p+1}"))
    return E, S


def fill_valu(gaps, lo, hi, E, S):
    ei, si = 0, 0
    epos = {}
    n_empty = sum(1 for g in range(lo, hi) if not gaps[g][0] and not gaps[g][2])
    assert n_empty >= len(E), (n_empty, len(E))
    for g in range(lo, hi):
        used = len(gaps[g][0]) + len(gaps[g][2])
        avail = [k for k in range(si, len(S)) if S[k][0] in epos and epos[S[k][0]] < g]
        navail = 0
        for k in range(si, len(S)):
            if S[k][0] in epos and epos[S[k][0]] < g:
                navail += 1
            else:
                break
        if used == 0:
            empty_left = sum(1 for q in range(g, hi) if not gaps[q][0] and not gaps[q][2])
            must_exp = empty_left <= len(E) - ei
            if ei < len(E) and (must_exp or navail < 4):
                gaps[g][1].append(E[ei])
                epos[ei] = g
                ei += 1
                continue
        free = 2 - used
        while free > 0 and navail > 0:
            gaps[g][1].append(S[si][1])
            si += 1
            navail -= 1
            free -= 1
    assert ei == len(E) and si == len(S), (ei, len(E), si, len(S))


def gen_stage(A, sg, extra=None, first=False):
    nb, cb = (sg + 1) & 1, sg & 1
    M = []
    for kt in range(2):
        for qt in range(4):
            d = vr(sreg(nb, qt, kt), 4)
            for u in range(6):
                M.append(mfma(d, ar(KF+kt*24+u*4, 4), qf(qt, u), vr(NM+qt*4, 4) if u == 0 else d))
    for dt in range(12):
        for qt in range(4):
            o = ar(oacc(dt, qt), 4)
            M.append(mfma(o, vr(VF+(dt % 8)*4, 4), vr(sreg(cb, qt, 0), 4), "0" if first else o))
    gaps = [[[], [], []] for _ in range(96)]
    for u in range(6):
        gaps[1+3*u][0].append(k_read((sg+1) % 4, 1, u))
    gaps[23][2].append("s_waitcnt lgkmcnt(0)")
    for j in range(24):
        gaps[26+2*j][0].append(v_read(sg, j // 2, j & 1))
    for g in (47, 59, 71):
        gaps[g][2].append("s_waitcnt lgkmcnt(5)")
    gaps[79][2].append("s_waitcnt vmcnt(12) lgkmcnt(0)")
    gaps[79][2].append("s_barrier")
    for u in range(6):
        gaps[81+u][0].append(k_read((sg+2) % 4, 0, u))
    gaps[95][2].append("s_waitcnt lgkmcnt(0)")
    dpos = CFG.get("dpos", 1)
    NT = " nt" if CFG.get("nt", 1) else ""
    P = [3, 9, 15, 21, 27, 33] if dpos == 1 else [3, 6, 9, 12, 15, 18]
    gaps[1][2].append(f"s_add_u32 m0, s29, {KREG + sg*12288}")
    for n in range(3):
        gaps[P[n]][0].append(f"buffer_load_dwordx4 v{DK+n}, s[16:19], s30 offen offset:{1024*n}{NT} lds")
    gaps[16 if dpos == 1 else 10][2].append(f"s_add_u32 m0, s29, {VREG + ((sg+3) % 4)*12288}")
    for n in range(3):
        gaps[P[3+n]][0].append(f"buffer_load_dwordx4 v{DV+n}, s[20:23], s30 offen offset:{1024*n}{NT} lds")
    gaps[36][2].append("s_add_u32 s30, s30, 12288")
    if extra:
        for g, s in extra:
            gaps[g][2].append(s)
    E, S = softmax_ops(cb, (2, 3))
    fill_valu(gaps, 0, 47, E, S)
    E, S = softmax_ops(nb, (0, 1))
    fill_valu(gaps, 48, 96, E, S)
    abl = CFG.get("abl", 0) if not first else 0
    for g in range(96):
        A(M[g])
        for s in gaps[g][0] + gaps[g][1] + gaps[g][2]:
            if abl & 1 and s.startswith("ds_read_b128"):
                continue
            if abl & 2 and s.startswith("ds_read_b64"):
                continue
            if abl & 4 and s.startswith("v_exp"):
                continue
            if abl & 8 and s.startswith("v_add"):
                continue
            if abl & 16 and s.startswith("v_cvt"):
                continue
            if abl & 32 and s.startswith("buffer_load"):
                continue
            if abl & 64 and s.startswith("s_barrier"):
                continue
            A(s)


def gen_tail(A, sg):
    cb = sg & 1
    for j in range(16):
        A(v_read(sg, j // 2, j & 1))
        if j == 11:
            A("s_waitcnt lgkmcnt(4)")
    E, S = softmax_ops(cb, (2, 3))
    for e in E:
        A(e)
    A("s_nop 0")
    for _, s in S:
        A(s)
    A("s_waitcnt lgkmcnt(0)")
    A("s_nop 1")
    for dt in range(12):
        if dt == 8:
            A("s_waitcnt lgkmcnt(0)")
        for qt in range(4):
            o = ar(oacc(dt, qt), 4)
            A(mfma(o, vr(VF+(dt % 8)*4, 4), vr(sreg(cb, qt, 0), 4), o))
            if 1 <= dt <= 4 and qt < 2:
                A(v_read(sg, dt + 7, qt))


def xlane_reduce(A, op, regs, tmp):
    for swap in ("v_permlane32_swap_b32", "v_permlane16_swap_b32"):
        for i, r in enumerate(regs):
            A(f"v_mov_b32 v{tmp+i}, v{r}")
        A("s_nop 1")
        for i, r in enumerate(regs):
            A(f"{swap} v{tmp+i}, v{r}")
        A("s_nop 1")
        for i, r in enumerate(regs):
            A(f"{op} v{r}, v{r}, v{tmp+i}")


class Track:
    def __init__(self, name, init=()):
        self.name, self.q, self.done = name, list(init), 0

    def issue(self, tag):
        self.q.append(tag)

    def need(self, tags):
        idx = max((len(self.q) - 1 - self.q[::-1].index(t)) for t in tags)
        if idx < self.done:
            return None
        self.done = idx + 1
        return len(self.q) - 1 - idx

    def drain(self):
        self.done = len(self.q)


XREG = 110592
CREG = 147456
FREG = 148608
K1_LDS = 148672
FLG_OFF = 0x6000000
SPIN_MAX = 1 << 22


def emit_plain(A, L):
    prev = None
    for e in L:
        if e[0] == "d" and prev is not None and "m0" in prev:
            A("s_nop 0")
        for s_ in e[1:]:
            A(s_)
        prev = e[-1]


def poll(A, label, vaddr, vtmp, sbase, mask_sgpr_pair, want, cmp="v_cmp_ne_u32"):
    A(f"s_mov_b32 s33, {SPIN_MAX}")
    A(f"s_mov_b64 exec, {mask_sgpr_pair}")
    A.label(label)
    A(f"global_load_dword v{vtmp}, v{vaddr}, {sbase} sc1")
    A("s_waitcnt vmcnt(0)")
    A(f"{cmp} vcc, {want}, v{vtmp}")
    A("s_cmp_eq_u64 vcc, exec")
    A(f"s_cbranch_scc1 {label}_OK")
    A("s_sleep 1")
    A("s_sub_u32 s33, s33, 1")
    A("s_cmp_lg_u32 s33, 0")
    A(f"s_cbranch_scc1 {label}")
    A.label(label + "_OK")
    A("s_mov_b64 exec, -1")


def gen_main(A, cfg):
    name = NAME + "_kernel"
    NT = " nt" if cfg.get("nt", 1) else ""
    kernel_begin(A, name)
    A("s_cmp_ge_u32 s2, 256")
    A("s_cbranch_scc1 K1_END")
    ST = Stamps(A, cfg.get("stamp", 0))
    ST()
    A("s_load_dwordx2 s[60:61], s[0:1], 0")
    A("s_load_dwordx4 s[44:47], s[0:1], 24")
    A("s_load_dwordx4 s[48:51], s[0:1], 48")
    A("s_load_dwordx4 s[40:43], s[0:1], 8")
    A("s_load_dwordx2 s[58:59], s[0:1], 64")
    A("s_load_dwordx2 s[62:63], s[0:1], 72")
    A("s_load_dwordx2 s[64:65], s[0:1], 80")
    A("s_load_dwordx2 s[52:53], s[0:1], 88")
    A("v_lshrrev_b32 v1, 6, v0")
    A("v_and_b32 v0, 63, v0")
    A("v_readfirstlane_b32 s28, v1")
    A("s_and_b32 s31, s2, 7")
    A("s_lshr_b32 s32, s2, 3")
    A("s_lshl_b32 s31, s31, 2")
    A("s_and_b32 s33, s32, 3")
    A("s_add_u32 s31, s31, s33")
    A("s_lshr_b32 s32, s32, 2")
    A("s_mul_i32 s29, s28, 3072")
    XD, XR, WD, GD, CQ, CG, CC = 14, 16, 18, 21, 24, 26, 27
    A("v_lshrrev_b32 v36, 3, v0")
    A("v_mul_u32_u24 v37, 1280, v36")
    A("v_lshrrev_b32 v38, 4, v0")
    A("v_and_b32 v39, 7, v0")
    A("v_xor_b32 v39, v39, v38")
    A(f"v_lshl_add_u32 v{XD}, v39, 4, v37")
    A("v_xor_b32 v39, 4, v39")
    A(f"v_lshl_add_u32 v{XD+1}, v39, 4, v37")
    for n in range(3):
        A(f"v_add_u32 v40, {64*n}, v0")
        A(f"v_mul_u32_u24 v{44+n}, 2731, v40")
        A(f"v_lshrrev_b32 v{44+n}, 16, v{44+n}")
        A(f"v_mul_u32_u24 v41, 24, v{44+n}")
        A("v_sub_u32 v41, v40, v41")
        A(f"v_and_b32 v42, 2, v{44+n}")
        A("v_lshlrev_b32 v42, 1, v42")
        A("v_xor_b32 v41, v41, v42")
        A("s_lshl_b32 s33, s28, 4")
        A(f"v_add_u32 v42, s33, v{44+n}")
        A("v_mul_u32_u24 v42, 12288, v42")
        A("v_lshl_add_u32 v42, v41, 4, v42")
        A(f"v_subrev_u32 v{WD+n}, {1024*n}, v42")
        A("v_mul_u32_u24 v41, 10923, v40")
        A("v_lshrrev_b32 v41, 16, v41")
        A("v_mul_u32_u24 v42, 6, v41")
        A("v_sub_u32 v42, v40, v42")
        A("s_and_b32 s33, s28, 1")
        A("s_lshl_b32 s33, s33, 5")
        A("v_add_u32 v41, s33, v41")
        A("v_mul_u32_u24 v41, 3072, v41")
        A("v_lshl_add_u32 v41, v42, 4, v41")
        A(f"v_subrev_u32 v{GD+n}, {1024*n}, v41")
    A("s_mov_b32 s36, 0")
    A("s_mov_b32 s37, 0")
    A("s_mov_b32 s38, 0")
    A("s_mov_b32 s39, 0")
    A("s_lshl_b32 s57, s28, 13")
    A(f"s_add_u32 s57, s57, {XREG}")
    A("s_lshl_b32 s33, s32, 2")
    A("s_add_u32 s33, s33, s28")
    A(f"s_mul_i32 s56, s33, {64*1280}")
    A("s_waitcnt lgkmcnt(0)")
    srd(A, 4, 60, off_sgpr=56, size=64*1280)
    A("s_mul_i32 s34, s31, 384")
    A(f"s_sub_u32 s35, {640*12288}, s34")
    srd(A, 8, 44, off_sgpr=34, size_sgpr=35)
    A("s_cmp_lt_u32 s28, 2")
    A("s_cselect_b32 s44, s48, s50")
    A("s_cselect_b32 s45, s49, s51")
    A("s_mul_i32 s34, s31, 96")
    A(f"s_sub_u32 s35, {640*3072}, s34")
    srd(A, 12, 44, off_sgpr=34, size_sgpr=35)

    GA, SUM, GRM, CAC, ONE, WF, CF, XF = 0, 96, 112, 128, 148, 152, 176, 192
    QA = 64
    SLOT = 36864

    def qacc(t, qt):
        return QA + ((t >> 1)*4 + qt)*8 + (t & 1)*4

    def x_dma(n):
        return [("s", f"s_add_u32 m0, s57, {1024*n}"), ("s", f"s_add_u32 s35, s36, {10240*n}"),
                ("d", f"buffer_load_dwordx4 v{XD+(n&1)}, s[4:7], s35 offen lds")]
    xadv = [("s", "s_add_u32 s36, s36, 128")]

    def x_read(st, k2, qt):
        return f"ds_read_b128 {ar(XF+st*32+(k2*4+qt)*4, 4)}, v{XR+k2} offset:{qt*2048}"

    def w_dma():
        L = []
        L.append(("s", "s_lshl_b32 s34, s29, 1"))
        L.append(("s", "s_add_u32 m0, s39, s34"))
        for n in range(3):
            L.append(("d", f"buffer_load_dwordx4 v{WD+n}, s[8:11], s37 offen offset:{1024*n}{NT} lds"))
        L.append(("s", "s_add_u32 m0, m0, 3072"))
        L.append(("s", f"s_add_u32 s35, s37, {8*12288}"))
        for n in range(3):
            L.append(("d", f"buffer_load_dwordx4 v{WD+n}, s[8:11], s35 offen offset:{1024*n}{NT} lds"))
        L.append(("s", "s_add_u32 s34, s29, 24576"))
        L.append(("s", "s_add_u32 m0, s39, s34"))
        for n in range(3):
            L.append(("d", f"buffer_load_dwordx4 v{GD+n}, s[12:15], s38 offen offset:{1024*n} lds"))
        L.append(("s", f"s_add_u32 s38, s38, {64*3072}"))
        L.append(("s", "s_lshl_b32 s37, s38, 2"))
        L.append(("s", f"s_add_u32 s39, s39, {SLOT}"))
        L.append(("s2", f"s_cmp_eq_u32 s39, {3*SLOT}", "s_cselect_b32 s39, 0, s39"))
        return L

    def kv_dma(kind, i):
        L = [("s", f"s_add_u32 m0, s29, {(KREG if kind == 'K' else VREG) + i*12288}")]
        if kind == "K" and i == 0:
            for n in range(3):
                L.append(("s", f"v_subrev_u32 v{37+n}, 12288, v{DK+n}"))
            for n in range(3):
                L.append(("d", f"buffer_load_dwordx4 v{37+n}, s[16:19], 0 offen offset:{1024*n}{NT} lds"))
        elif kind == "K":
            L.append(("s", f"s_mov_b32 s30, {(i-1)*12288}"))
            for n in range(3):
                L.append(("d", f"buffer_load_dwordx4 v{DK+n}, s[16:19], s30 offen offset:{1024*n}{NT} lds"))
        else:
            L.append(("s", f"s_mov_b32 s30, {i*12288}"))
            for n in range(3):
                L.append(("d", f"buffer_load_dwordx4 v{DV+n}, s[20:23], s30 offen offset:{1024*n}{NT} lds"))
        return L

    def w_reads(t):
        L = []
        for k2 in range(2):
            for rd in range(2):
                d = ar(WF + (t % 3)*8 + k2*4 + 2*rd, 2)
                if t < 12:
                    u, par = t >> 1, t & 1
                    L.append(f"ds_read_b64_tr_b16 {d}, v{CQ+(u&1)} offset:{k2*32*384+rd*4*384+128*(u>>1)+8*par}")
                else:
                    tt = t - 12
                    L.append(f"ds_read_b64_tr_b16 {d}, v{CG} offset:{24576+(tt//3)*6144+k2*32*96+rd*4*96+32*(tt%3)}")
        return L

    def c_reads(p):
        L = []
        for k2 in range(2):
            for rd in range(2):
                d = ar(CF + k2*4 + 2*rd, 2)
                if p < 3:
                    L.append(f"ds_read_b64_tr_b16 {d}, v{CC} offset:{k2*32*384+rd*4*384+128*p}")
                else:
                    L.append(f"ds_read_b64_tr_b16 {d}, v{CC+p-2} offset:{24576+k2*32*96+rd*4*96}")
        return L

    for n in range(8):
        emit_plain(A, x_dma(n))
    emit_plain(A, xadv)
    emit_plain(A, w_dma())
    A("s_lshl_b32 s34, s33, 7")
    A("s_lshl_b32 s35, s31, 2")
    A("s_add_u32 s34, s34, s35")
    A("s_and_b32 s35, s2, 1")
    A("s_lshl_b32 s35, s35, 5")
    A("s_lshr_b32 s56, s2, 3")
    A("s_add_u32 s35, s35, s56")
    A("s_lshl_b32 s35, s35, 2")
    A("s_add_u32 s35, s35, s28")
    A("s_lshl_b32 s35, s35, 2")
    A("s_bfe_u32 s56, s2, 0x20001")
    A("s_add_u32 s35, s35, s56")
    A("s_lshl_b32 s35, s35, 2")
    A("s_add_u32 s35, s35, 0x1000")
    A(f"s_add_u32 s34, s34, {FLG_OFF}")
    A(f"s_add_u32 s35, s35, {FLG_OFF}")
    A("v_mov_b32 v1, s34")
    A("v_mov_b32 v40, s35")
    A("v_cmp_eq_u32 vcc, 1, v0")
    A("v_mov_b32 v41, 0")
    A("s_nop 0")
    A("v_cndmask_b32 v1, v1, v40, vcc")
    A("s_mov_b64 exec, 3")
    A("global_store_dword v1, v41, s[52:53] sc1")
    A("s_mov_b64 exec, -1")
    emit_plain(A, w_dma())
    A(f"s_mul_i32 s34, s33, {4*RT_STRIDE}")
    srd(A, 24, 52, off_sgpr=34, off_imm=OF_OFF, size=4*RT_STRIDE)
    A("s_mul_i32 s34, s31, 786432")
    srd(A, 16, 40, off_sgpr=34, size=786432)
    srd(A, 20, 42, off_sgpr=34, size=786432)
    A("s_cmp_ge_u32 s2, 192")
    A("s_cselect_b32 s44, s58, s46")
    A("s_cselect_b32 s45, s59, s47")
    A("s_cselect_b32 s34, 192, 0")
    A("s_sub_u32 s34, s2, s34")
    A("s_mul_i32 s34, s34, 40960")
    A("s_cmp_lt_u32 s2, 240")
    A("s_cselect_b32 s35, 40960, 0")
    A("s_cselect_b32 s34, s34, 0")
    srd(A, 40, 44, off_sgpr=34, size_sgpr=35)
    A("s_mul_i32 s34, s2, 40960")
    srd(A, 48, 52, off_sgpr=34, off_imm=WP_OFF, size_sgpr=35)
    A("v_bfe_u32 v39, v0, 2, 2")
    A("v_and_b32 v40, 3, v0")
    A("v_and_b32 v41, 15, v0")
    for n in range(3):
        A("s_lshl_b32 s34, s28, 3")
        A(f"v_add_u32 v42, s34, v{44+n}")
        A("v_bfe_u32 v43, v42, 1, 3")
        A("v_xor_b32 v43, v43, v0")
        A("v_lshlrev_b32 v43, 4, v43")
        A("v_add_u32 v43, s29, v43")
        A(f"v_add_u32 v{DK+n}, 12288, v43")
        A("v_and_b32 v43, 6, v42")
        A("v_xor_b32 v43, v43, v0")
        A("v_lshlrev_b32 v43, 4, v43")
        A(f"v_add_u32 v{DV+n}, s29, v43")
    A("v_lshl_add_u32 v42, v38, 3, v39")
    A("v_mul_u32_u24 v43, 384, v42")
    A("v_lshl_add_u32 v43, v40, 4, v43")
    A("v_lshrrev_b32 v44, 1, v39")
    A(f"v_lshl_add_u32 v{CQ}, v44, 6, v43")
    A("v_xor_b32 v45, 1, v44")
    A(f"v_lshl_add_u32 v{CQ+1}, v45, 6, v43")
    A("s_lshr_b32 s34, s28, 1")
    A("v_xor_b32 v45, s34, v44")
    A(f"v_lshl_add_u32 v{CC}, v45, 6, v43")
    A("s_and_b32 s35, s28, 1")
    A("s_lshl_b32 s34, s35, 3")
    A(f"v_add_u32 v{CC}, s34, v{CC}")
    A("v_mul_u32_u24 v43, 96, v42")
    A(f"v_lshl_add_u32 v{CG}, v40, 3, v43")
    A("s_lshl_b32 s34, s28, 5")
    A("s_cmp_eq_u32 s28, 3")
    A("s_cselect_b32 s34, 6144, s34")
    A(f"v_add_u32 v{CC+1}, s34, v{CG}")
    A("s_lshl_b32 s34, s35, 5")
    A(f"s_add_u32 s34, s34, {6144+32}")
    A(f"v_add_u32 v{CC+2}, s34, v{CG}")
    A("v_bfe_u32 v44, v41, 1, 3")
    A("v_xor_b32 v44, v44, v38")
    A("v_xor_b32 v45, 4, v44")
    A("v_lshlrev_b32 v43, 7, v41")
    A("v_add_u32 v43, s57, v43")
    A(f"v_lshl_add_u32 v{XR}, v44, 4, v43")
    A(f"v_lshl_add_u32 v{XR+1}, v45, 4, v43")
    A("v_mul_u32_u24 v43, 384, v41")
    A(f"v_add_u32 v43, {KREG}, v43")
    A(f"v_lshl_add_u32 v{VK}, v44, 4, v43")
    A(f"v_lshl_add_u32 v{VK+1}, v45, 4, v43")
    A("v_lshrrev_b32 v42, 2, v0")
    A("v_mul_u32_u24 v43, 384, v42")
    A(f"v_add_u32 v43, {VREG}, v43")
    A("v_and_b32 v44, 1, v40")
    A("v_lshl_add_u32 v43, v44, 3, v43")
    A("v_and_b32 v44, 6, v42")
    A("v_lshrrev_b32 v45, 1, v40")
    A("v_xor_b32 v44, v44, v45")
    for j in range(4):
        A(f"v_xor_b32 v45, {2*j}, v44")
        A(f"v_lshl_add_u32 v{VV+j}, v45, 4, v43")
    PD = 30
    A("s_mul_i32 s34, s28, 320")
    for n in range(5):
        A(f"v_add_u32 v43, {64*n}, v0")
        A("v_mul_u32_u24 v44, 3277, v43")
        A("v_lshrrev_b32 v44, 16, v44")
        A("v_mul_u32_u24 v45, 20, v44")
        A("v_sub_u32 v45, v43, v45")
        A("v_mul_u32_u24 v44, 1280, v44")
        A("v_lshl_add_u32 v44, v45, 4, v44")
        A(f"v_add_u32 v{PD+n}, s34, v44")
    PR, PS = 35, 39
    A("v_mul_u32_u24 v43, 320, v42")
    A("v_lshl_add_u32 v43, v40, 3, v43")
    A("s_mul_i32 s58, s28, 10240")
    A("s_cmp_eq_u32 s28, 3")
    A("s_cselect_b32 s58, 135168, s58")
    A(f"v_add_u32 v{PR}, s58, v43")
    A("v_lshlrev_b32 v36, 4, v38")
    A(f"v_add_u32 v36, {CREG}, v36")
    A("s_lshl_b32 s34, s28, 6")
    A("v_add_u32 v56, s34, v36")
    A("s_and_b32 s34, s34, 64")
    A("v_add_u32 v57, s34, v36")
    for i in range(ONE):
        A(f"v_accvgpr_write_b32 a{i}, 0")
    A("v_mov_b32 v43, 0x3f803f80")
    for i in range(4):
        A(f"v_accvgpr_write_b32 a{ONE+i}, v43")
    for i in range(192):
        A(f"v_mov_b32 v{QA+i}, 0")
    A("s_waitcnt vmcnt(19)")
    for k2 in range(2):
        for qt in range(4):
            A(x_read(0, k2, qt))
    A("s_waitcnt lgkmcnt(0)")
    for n in range(8):
        emit_plain(A, x_dma(n))
    emit_plain(A, xadv)
    A("s_waitcnt vmcnt(18)")
    A("s_barrier")
    ST()
    for s in w_reads(0) + w_reads(1):
        A(s)

    PA, PB = 14, 40
    G0, TT = 48, 52

    def stats_ops():
        B = Asm()
        for qt in range(4):
            B(f"v_accvgpr_read_b32 v{G0+qt}, a{GRM+4*qt}")
        B("v_and_b32 v58, 3, v0")
        for r in range(1, 4):
            B(f"v_cmp_eq_u32 vcc, {r}, v58")
            for qt in range(4):
                B(f"v_accvgpr_read_b32 v{TT+qt}, a{GRM+4*qt+r}")
            for qt in range(4):
                B(f"v_cndmask_b32 v{G0+qt}, v{G0+qt}, v{TT+qt}, vcc")
        B("v_bfe_u32 v58, v0, 2, 2")
        B("v_lshrrev_b32 v59, 4, v0")
        B("v_cmp_eq_u32 vcc, v58, v59")
        B(f"s_mov_b32 s34, {hex(f2u(1.0/640))}")
        B("s_nop 0")
        for qt in range(4):
            B(f"v_cndmask_b32 v{G0+qt}, 0, v{G0+qt}, vcc")
        xlane_reduce(B, "v_add_f32", [G0+q for q in range(4)], TT)
        for qt in range(4):
            B(f"v_accvgpr_read_b32 v{TT+qt}, a{SUM+4*qt}")
        for qt in range(4):
            B(f"v_mul_f32 v{TT+qt}, s34, v{TT+qt}")
            B(f"v_mul_f32 v{G0+qt}, s34, v{G0+qt}")
        for qt in range(4):
            B(f"v_fma_f32 v{G0+qt}, -v{TT+qt}, v{TT+qt}, v{G0+qt}")
        for qt in range(4):
            B(f"v_max_f32 v{G0+qt}, 0, v{G0+qt}")
        for qt in range(4):
            B(f"v_cvt_pk_bf16_f32 v{G0+qt}, v{TT+qt}, v{G0+qt}")
        for qt in range(4):
            B(f"v_lshlrev_b32 v{TT+qt}, 16, v{G0+qt}")
            B(f"v_and_b32 v{G0+qt}, 0xffff0000, v{G0+qt}")
        for qt in range(4):
            B(f"v_sub_f32 v{PA+2*qt}, 0, v{TT+qt}")
            B(f"v_add_f32 v{G0+qt}, {hex(f2u(1e-5))}, v{G0+qt}")
        for qt in range(4):
            B(f"v_cvt_pk_bf16_f32 v{G0+qt}, v{G0+qt}, v{G0+qt}")
        for qt in range(4):
            B(f"v_lshlrev_b32 v{G0+qt}, 16, v{G0+qt}")
        for qt in range(4):
            B(f"v_sqrt_f32 v{G0+qt}, v{G0+qt}")
        for qt in range(4):
            B(f"v_cvt_pk_bf16_f32 v{G0+qt}, v{G0+qt}, v{G0+qt}")
        for qt in range(4):
            B(f"v_lshlrev_b32 v{G0+qt}, 16, v{G0+qt}")
        for qt in range(4):
            B(f"v_rcp_f32 v{TT+qt}, v{G0+qt}")
        for qt in range(4):
            B(f"v_mul_f32 v{PB+2*qt+1}, v{G0+qt}, v{G0+qt}")
        for qt in range(4):
            B(f"v_mul_f32 v{PA+2*qt+1}, {hex(f2u(LOG2E * 192 ** -0.5))}, v{TT+qt}")
            B(f"v_mul_f32 v{PB+2*qt}, {hex(f2u(-LOG2E))}, v{TT+qt}")
        return [l.strip() for l in B.L]

    def superstep(st, mode):
        M = []
        blk = []
        xf = lambda k2, qt: ar(XF+st*32+(k2*4+qt)*4, 4)
        stat_blocks = [0, 1, 3, 4, 6, 7, 9, 10] if mode != "last" else [0, 0, 1, 1, 3, 3, 4, 4]
        for t in range(18):
            blk.append(len(M))
            for qt in range(4):
                acc = vr(qacc(t, qt), 4) if t < 12 else ar(GA + ((t-12)*4+qt)*4, 4)
                for k2 in range(2):
                    M.append((mfma(acc, ar(WF+(t % 3)*8+k2*4, 4), xf(k2, qt), acc), [f"w{t}"]))
            if t % 3 == 2 and t < 15:
                p = t // 3
                for k2 in range(2):
                    M.append((mfma(ar(CAC+4*p, 4), ar(CF+k2*4, 4), ar(ONE, 4), ar(CAC+4*p, 4)), [f"c{p}"]))
            for i, sb_ in enumerate(stat_blocks):
                if sb_ == t:
                    k2, qt = i >> 2, i & 3
                    M.append((mfma(ar(SUM+4*qt, 4), ar(ONE, 4), xf(k2, qt), ar(SUM+4*qt, 4)), []))
                    M.append((mfma(ar(GRM+4*qt, 4), xf(k2, qt), xf(k2, qt), ar(GRM+4*qt, 4)), []))
        NG = len(M)
        blk.append(NG)
        front = [None]*NG
        back = [[] for _ in range(NG)]
        resv = set(b - 1 for b in blk[1:])

        def room(g):
            return 2 - (front[g] is not None) - len(back[g]) - (g in resv)

        def put_front(g, e):
            while front[g] is not None or room(g) < 1:
                g += 1
            front[g] = e
            return g

        def put_back(g, ss):
            while room(g) < len(ss):
                g += 1
            back[g] += ss
            return g
        for t in range(18):
            if mode == "last" and t >= 16:
                continue
            for k, s_ in enumerate(w_reads((t+2) % 18)):
                front[blk[t]+k] = ("l", s_, f"w{(t+2) % 18}" + ("n" if t >= 16 else ""), None)
        for p in range(5):
            for k, s_ in enumerate(c_reads(p)):
                front[blk[3*p]+4+k] = ("l", s_, f"c{p}", None)
        if mode != "last":
            for qt in range(4):
                g = blk[5+2*qt] + 4
                for k2 in range(2):
                    g = put_front(g, ("l", x_read(st ^ 1, k2, qt), f"x{qt}", ("vm", f"X{qt}")))
        dl = {"loop": w_dma(), "pre": kv_dma("K", 0) + kv_dma("K", 1) + kv_dma("K", 2),
              "last": kv_dma("V", 0) + kv_dma("K", 3) + kv_dma("V", 1) + kv_dma("V", 2)}[mode]
        g = 0
        last_d = -10
        nd = 0
        for e in dl:
            if e[0] == "d":
                g = put_front(max(g + 1, last_d + 7), ("d", e[1], f"W{nd}", None))
                last_d = g
                nd += 1
            else:
                g = put_back(g, list(e[1:]))
        if mode == "loop":
            assert g < blk[9], (g, blk)
            for n in range(8):
                g = max(g, blk[8 + 2*(n >> 1)])
                for e in x_dma(n):
                    if e[0] == "d":
                        g = put_front(max(g + 1, last_d + 5), ("d", e[1], f"X{n>>1}", ("lg", f"x{n>>1}")))
                        last_d = g
                    else:
                        g = put_back(g, list(e[1:]))
            for e in xadv:
                g = put_back(g, list(e[1:]))
        gb = blk[16] - 1
        rest = []
        if mode != "last":
            g = put_back(blk[12] + 1, [f"s_add_u32 s33, s33, {SLOT}"])
            g = put_back(g + 1, [f"s_cmp_eq_u32 s33, {3*SLOT}", "s_cselect_b32 s59, s56, s55"])
            g = put_back(g + 1, [f"s_cmp_eq_u32 s33, {3*SLOT}", "s_cselect_b32 s33, 0, s33"])
            assert g < gb
        else:
            for p in range(5):
                front[blk[16]+p] = ("l", f"ds_write_b128 v{56 if p < 4 else 57}, {ar(CAC+4*p, 4)} offset:{256*p}", "cw", None)
            g = blk[6]
            ops = stats_ops()
            while ops and g < NG:
                cost = 2 if ops[0].startswith(("v_sqrt", "v_rcp")) else 1
                if room(g) >= cost and not any(b_.startswith(("v_sqrt", "v_rcp")) for b_ in back[g]):
                    back[g].append(ops.pop(0))
                else:
                    g += 1
            rest = ops
        LG = Track("lgkm", ["w0"]*4 + ["w1"]*4)
        VM = Track("vm", [f"W{i}" for i in range(9)] + [f"X{i>>1}" for i in range(8)])
        for g in range(NG):
            txt, needs = M[g]
            if needs:
                n_ = LG.need(needs)
                if n_ is not None:
                    A(f"s_waitcnt lgkmcnt({n_})")
            A(txt)
            if front[g] is not None:
                kind, s_, tag, nd_ = front[g]
                if nd_:
                    n_ = (VM if nd_[0] == "vm" else LG).need([nd_[1]])
                    if n_ is not None:
                        A(f"s_waitcnt {'vmcnt' if nd_[0] == 'vm' else 'lgkmcnt'}({n_})")
                A(s_)
                (LG if kind == "l" else VM).issue(tag)
            for s_ in back[g]:
                A(s_)
            if g == gb and mode != "last":
                assert VM.done > 8
                A("s_waitcnt lgkmcnt(0)")
                LG.drain()
                A("s_barrier")
                for r_ in (CQ, CQ+1, CG, CC, CC+1, CC+2):
                    A(f"v_add_u32 v{r_}, s59, v{r_}")
        if mode == "loop":
            assert [t for t in VM.q[17:]] == [f"W{i}" for i in range(9)] + [f"X{i>>1}" for i in range(8)], VM.q
        for s_ in rest:
            A(s_)

    A("s_mov_b32 s54, 4")
    A("s_mov_b32 s33, 0")
    A(f"s_mov_b32 s55, {SLOT}")
    A(f"s_mov_b32 s56, {-2*SLOT & 0xffffffff}")
    A.raw(".p2align 5")
    A.label("K1_GEMM")
    superstep(0, "loop")
    superstep(1, "loop")
    A("s_sub_u32 s54, s54, 1")
    A("s_cmp_lg_u32 s54, 0")
    A("s_cbranch_scc1 K1_GEMM")
    superstep(0, "pre")
    superstep(1, "last")
    ST()
    A("s_mov_b32 s55, 0")
    A(f"s_mov_b32 s30, {3*12288}")
    A("s_mov_b32 s59, 15")
    A("s_waitcnt lgkmcnt(0)")
    A("s_barrier")
    CT = 48
    for i in range(4):
        A(f"ds_read_b128 v[{CT+4*i}:{CT+4*i+3}], v36 offset:{64*(11-(i^1))}")
    A(f"s_mov_b32 s34, {16*1280}")
    npk = 0
    for u in range(5, -1, -1):
        cb_ = CT + 8*((5-u) & 1)
        A("s_waitcnt lgkmcnt(2)" if u > 0 else "s_waitcnt lgkmcnt(0)")
        for qt in range(3, -1, -1):
            B = QA + (u*4+qt)*8
            pa = vr(PA+2*qt, 2)
            if npk < 10:
                A(f"s_add_u32 m0, s58, {1024*npk}")
            for p in range(4):
                A(f"v_pk_fma_f32 {vr(B+2*p, 2)}, {pa}, {vr(cb_+2*p, 2)}, {vr(B+2*p, 2)} op_sel_hi:[0,1,1]")
            for p in range(4):
                A(f"v_pk_mul_f32 {vr(B+2*p, 2)}, {pa}, {vr(B+2*p, 2)} op_sel:[1,0]")
            for p in range(3, -1, -1):
                A(f"v_cvt_pk_bf16_f32 v{QF+(u*4+qt)*4+p}, v{B+2*p}, v{B+2*p+1}")
            if npk < 10:
                A(f"buffer_load_dwordx4 v{PD+npk%5}, s[40:43], {'0' if npk < 5 else 's34'} offen{NT} lds")
                npk += 1
        if u >= 2:
            for i in range(2):
                A(f"ds_read_b128 v[{cb_+4*i}:{cb_+4*i+3}], v36 offset:{64*(2*(u-2)+i)}")
    HC = 64
    SO = 24
    for t in range(6):
        A(f"ds_read_b128 v[{HC+4*t}:{HC+4*t+3}], v36 offset:{64*(12+t)}")
    A(f"v_lshlrev_b32 v{PS}, 4, v0")
    A(f"v_lshlrev_b32 v{SO}, {3 if cfg.get('hsplit', 0) else 4}, v0")
    for qt in range(1, 4):
        A(f"v_add_u32 v{SO+qt}, {qt*RT_STRIDE}, v{SO}")
    for t in range(3):
        A("s_mul_i32 s35, s31, 3")
        A(f"s_add_u32 s35, s35, {t}")
        A("s_and_b32 s36, s35, 1")
        A(f"s_lshl_b32 s36, s36, {9 if cfg.get('hsplit', 0) else 3}")
        A("s_lshr_b32 s35, s35, 1")
        A("s_add_u32 s35, s35, 192")
        A("s_lshl_b32 s35, s35, 10")
        A(f"s_add_u32 s{37+t}, s35, s36")
    A("s_waitcnt lgkmcnt(0)")
    cnt = 0
    for t in range(3):
        for qt in range(4):
            G = 96 + (cnt % 4)*12
            U, T0 = G + 4, G + 8
            cnt += 1
            pa, pb = vr(PA+2*qt, 2), vr(PB+2*qt, 2)
            for r in range(4):
                A(f"v_accvgpr_read_b32 v{G+r}, a{GA+(t*4+qt)*4+r}")
            for r in range(4):
                A(f"v_accvgpr_read_b32 v{U+r}, a{GA+((t+3)*4+qt)*4+r}")
            for p in range(2):
                A(f"v_pk_fma_f32 {vr(G+2*p, 2)}, {pa}, {vr(HC+4*t+2*p, 2)}, {vr(G+2*p, 2)} op_sel_hi:[0,1,1]")
            for p in range(2):
                A(f"v_pk_fma_f32 {vr(U+2*p, 2)}, {pa}, {vr(HC+4*(t+3)+2*p, 2)}, {vr(U+2*p, 2)} op_sel_hi:[0,1,1]")
            for p in range(2):
                A(f"v_pk_mul_f32 {vr(T0+2*p, 2)}, {pb}, {vr(G+2*p, 2)} op_sel_hi:[0,1]")
            for r in range(4):
                A(f"v_exp_f32 v{T0+r}, v{T0+r}")
            for p in range(2):
                A(f"v_pk_mul_f32 {vr(G+2*p, 2)}, {vr(G+2*p, 2)}, {vr(U+2*p, 2)}")
            for p in range(2):
                A(f"v_pk_fma_f32 {vr(T0+2*p, 2)}, {vr(T0+2*p, 2)}, {pb}, {pb} op_sel:[0,1,1]")
            for r in range(4):
                A(f"v_rcp_f32 v{T0+r}, v{T0+r}")
            A("s_nop 0")
            for p in range(2):
                A(f"v_pk_mul_f32 {vr(G+2*p, 2)}, {vr(G+2*p, 2)}, {vr(T0+2*p, 2)}")
            for p in range(2):
                A(f"v_cvt_pk_bf16_f32 v{G+p}, v{G+2*p}, v{G+2*p+1}")
            A(f"buffer_store_dwordx2 v[{G}:{G+1}], v{SO+qt}, s[24:27], s{37+t} offen sc1")
    ST()
    for i in range(16):
        A(f"v_mov_b32 v{NM+i}, 0")
    A("s_waitcnt vmcnt(22)")
    A.label("K1_ATT")
    for i in range(8):
        A(f"v_mov_b32 v{LS+i}, 0")
    A("s_barrier")
    for kt in range(2):
        for u in range(6):
            A(k_read(0, kt, u))
    A("s_waitcnt lgkmcnt(6)")
    for kt in range(2):
        if kt == 1:
            A("s_waitcnt lgkmcnt(0)")
        for qt in range(4):
            d = vr(sreg(0, qt, kt), 4)
            for u in range(6):
                A(mfma(d, ar(KF+kt*24+u*4, 4), qf(qt, u), vr(NM+qt*4, 4) if u == 0 else d))
    A("s_barrier")
    for u in range(6):
        A(k_read(1, 0, u))
    A("s_nop 0")
    A("s_cmp_lg_u32 s55, 0")
    A("s_cbranch_scc1 K1_SKIPMAX")
    for qt in range(4):
        b = sreg(0, qt, 0)
        A(f"v_max3_f32 v{30+qt}, v{b}, v{b+1}, v{b+2}")
        A(f"v_max3_f32 v{30+qt}, v{30+qt}, v{b+3}, v{b+4}")
        A(f"v_max3_f32 v{30+qt}, v{30+qt}, v{b+5}, v{b+6}")
        A(f"v_max_f32 v{30+qt}, v{30+qt}, v{b+7}")
    xlane_reduce(A, "v_max_f32", [30, 31, 32, 33], 14)
    for qt in range(4):
        b = sreg(0, qt, 0)
        for r in range(4):
            A(f"v_sub_f32 v{NM+qt*4+r}, 0, v{30+qt}")
        for e in range(8):
            A(f"v_sub_f32 v{b+e}, v{b+e}, v{30+qt}")
    A.label("K1_SKIPMAX")
    E, S = softmax_ops(0, (0, 1))
    for e in E:
        A(e)
    A("s_nop 0")
    for _, s in S:
        A(s)
    ST()
    A("s_mov_b32 s54, 15")
    A("s_waitcnt lgkmcnt(0)")
    gen_stage(A, 0, first=True)
    A("s_branch K1_LOOP1")
    A.raw(".p2align 6")
    A.label("K1_LOOP")
    gen_stage(A, 0, extra=[(90, "s_sub_u32 s54, s54, 1")])
    A.label("K1_LOOP1")
    gen_stage(A, 1)
    gen_stage(A, 2, extra=[(93, "s_cmp_eq_u32 s54, 0")])
    A("s_cbranch_scc1 K1_TAIL")
    gen_stage(A, 3, extra=[(93, "s_cmp_lg_u32 s54, s59")])
    A("s_cbranch_scc1 K1_LOOP")
    A("s_cmp_eq_u32 s54, 15")
    A("s_cbranch_scc0 K1_REPORT")
    A("s_cmp_eq_u32 s28, 0")
    A("s_cselect_b32 s59, 13, -1")
    A("s_mul_i32 s34, s28, 10240")
    A("s_add_u32 s35, s34, 4096")
    A("s_add_u32 s36, s34, 8192")
    for half in range(2):
        for ct in range(5*half, 5*half+5):
            b = 14 + 4*(ct % 5)
            A(f"ds_read_b64_tr_b16 v[{b}:{b+1}], v{PR} offset:{32*ct}")
            A(f"ds_read_b64_tr_b16 v[{b+2}:{b+3}], v{PR} offset:{32*ct+16*320}")
        for ct in range(5*half, 5*half+5):
            b = 14 + 4*(ct % 5)
            A(f"s_waitcnt lgkmcnt({8-2*(ct%5)})")
            A(f"buffer_store_dwordx4 v[{b}:{b+3}], v{PS}, s[48:51], s{34+ct//4} offen offset:{1024*(ct%4)} sc1")
        A("s_nop 1")
    A("s_branch K1_LOOP")
    A.label("K1_REPORT")
    A("s_mov_b32 s59, -1")
    A("v_mov_b32 v14, 0")
    A("v_mov_b32 v15, 1")
    A("s_mov_b64 exec, 1")
    A("global_atomic_add v14, v15, s[64:65] sc1")
    A("s_mov_b64 exec, -1")
    A("s_branch K1_LOOP")
    A.label("K1_TAIL")
    gen_tail(A, 3)
    ST()
    for qt in range(4):
        A(f"v_add_f32 v{30+2*qt}, v{LS+2*qt}, v{LS+2*qt+1}")
    xlane_reduce(A, "v_add_f32", [30, 32, 34, 36], 14)
    A(f"v_mov_b32 v14, {hex(f2u(2.0**30))}")
    A("v_cmp_nlt_f32 vcc, v30, v14")
    A("s_mov_b64 s[56:57], vcc")
    for qt in range(1, 4):
        A(f"v_cmp_nlt_f32 vcc, v{30+2*qt}, v14")
        A("s_or_b64 s[56:57], s[56:57], vcc")
    A("s_cmp_lg_u64 s[56:57], 0")
    A("s_cselect_b32 s34, 1, 0")
    A("v_mov_b32 v14, s34")
    A("v_mov_b32 v15, s28")
    A("v_lshlrev_b32 v15, 2, v15")
    A(f"v_add_u32 v15, {FREG}, v15")
    A("ds_write_b32 v15, v14")
    A(f"v_mov_b32 v15, {FREG}")
    A("s_waitcnt vmcnt(0) lgkmcnt(0)")
    A("s_barrier")
    A("s_cmp_lg_u32 s55, 0")
    A("s_cbranch_scc1 K1_EPI")
    A("ds_read_b128 v[16:19], v15")
    A("s_waitcnt lgkmcnt(0)")
    A("v_or_b32 v16, v16, v17")
    A("v_or_b32 v18, v18, v19")
    A("v_or_b32 v16, v16, v18")
    A("s_nop 0")
    A("v_readfirstlane_b32 s34, v16")
    A("s_cmp_eq_u32 s34, 0" if not cfg.get("abl", 0) else "s_cmp_eq_u32 s34, s34")
    A("s_cbranch_scc1 K1_EPI")
    A("s_mov_b32 s55, 1")
    A("v_and_b32 v34, 15, v0")
    A("v_mul_u32_u24 v34, 384, v34")
    A("v_lshrrev_b32 v35, 4, v0")
    A("v_lshl_add_u32 v34, v35, 4, v34")
    for qt in range(4):
        A(f"v_mov_b32 v{30+qt}, 0xff800000")
    A("s_mov_b32 s34, 0")
    A.label("K1_MAXLOOP")
    for u in range(6):
        A(f"buffer_load_dwordx4 {ar(KF+u*4, 4)}, v34, s[16:19], s34 offen offset:{64*u}")
    A("s_waitcnt vmcnt(0)")
    for qt in range(4):
        d = vr(sreg(0, qt, 0), 4)
        for u in range(6):
            A(mfma(d, ar(KF+u*4, 4), qf(qt, u), "0" if u == 0 else d))
    A("s_nop 15")
    for qt in range(4):
        b = sreg(0, qt, 0)
        A(f"v_max3_f32 v{30+qt}, v{30+qt}, v{b}, v{b+1}")
        A(f"v_max3_f32 v{30+qt}, v{30+qt}, v{b+2}, v{b+3}")
    A("s_add_u32 s34, s34, 6144")
    A("s_cmp_lt_u32 s34, 786432")
    A("s_cbranch_scc1 K1_MAXLOOP")
    xlane_reduce(A, "v_max_f32", [30, 31, 32, 33], 34)
    for qt in range(4):
        for r in range(4):
            A(f"v_sub_f32 v{NM+qt*4+r}, 0, v{30+qt}")
    for kind, i in [("K", 0), ("K", 1), ("V", 0), ("K", 2), ("V", 1), ("K", 3), ("V", 2)]:
        emit_plain(A, kv_dma(kind, i))
    A(f"s_mov_b32 s30, {3*12288}")
    A("s_waitcnt vmcnt(0)")
    A("s_branch K1_ATT")
    A.label("K1_EPI")
    A("v_mov_b32 v20, 0")
    A("global_load_dword v21, v20, s[64:65] sc1")
    for qt in range(4):
        A(f"v_rcp_f32 v{30+2*qt}, v{30+2*qt}")
    A("v_lshlrev_b32 v14, 4, v0")
    for qt in range(1, 4):
        A(f"v_add_u32 v{14+qt}, {qt*RT_STRIDE}, v14")
    A("s_mul_i32 s34, s31, 6144")
    A("s_add_u32 s35, s34, 4096")
    cnt = 0
    for qt in range(4):
        for u in range(6):
            T0 = 48 + (cnt % 4)*8
            P0 = 96 + (cnt % 8)*4
            cnt += 1
            for e in range(8):
                A(f"v_accvgpr_read_b32 v{T0+e}, a{oacc(2*u+(e>>2), qt)+(e&3)}")
            for p in range(4):
                A(f"v_pk_mul_f32 {vr(T0+2*p, 2)}, {vr(30+2*qt, 2)}, {vr(T0+2*p, 2)} op_sel_hi:[0,1]")
            for p in range(4):
                A(f"v_cvt_pk_bf16_f32 v{P0+p}, v{T0+2*p}, v{T0+2*p+1}")
            so, im = (34, 1024*u) if u < 4 else (35, 1024*(u-4))
            A(f"buffer_store_dwordx4 v[{P0}:{P0+3}], v{14+qt}, s[24:27], s{so} offen offset:{im} sc1")
    ST()
    gen_proj(A, cfg, ST)
    ST.dump(28)
    A.label("K1_END")
    A("s_endpgm")
    kernel_desc(A, name, 512, 102 if ST.on else 70, 256)


def gen_proj(A, cfg, ST):
    A("s_and_b32 s29, s2, 7")
    A("s_lshr_b32 s30, s2, 3")
    A("s_and_b32 s31, s29, 1")
    A("s_lshl_b32 s31, s31, 3")
    A("s_lshr_b32 s32, s30, 2")
    A("s_add_u32 s31, s31, s32")
    A("s_and_b32 s32, s30, 3")
    A("s_lshr_b32 s29, s29, 1")
    A("v_lshlrev_b32 v2, 4, v0")
    A(f"s_mul_i32 s33, s28, {2*RT_STRIDE}")
    A("v_add_u32 v9, s33, v2")
    A(f"v_add_u32 v10, {RT_STRIDE-2048}, v9")
    A("s_lshr_b32 s33, s28, 1")
    A("s_mul_i32 s33, s33, 40960")
    A("s_and_b32 s34, s28, 1")
    A("s_mul_i32 s34, s34, 5120")
    A("s_add_u32 s33, s33, s34")
    A("v_add_u32 v11, s33, v2")
    A("v_add_u32 v12, 4096, v11")
    A("s_mul_i32 s36, s29, 60")
    A("s_cmp_eq_u32 s29, 3")
    A("s_cselect_b32 s36, 192, s36")
    A("s_cselect_b32 s40, -58, 2")
    A("s_cselect_b32 s46, 3, 0x3ff")
    A("s_mov_b32 s47, 0")
    A("s_lshl_b32 s41, s28, 12")
    A("s_mul_i32 s42, s28, 5120")
    A("s_add_u32 s42, s42, 16384")
    A(f"s_mul_i32 s33, s31, {8*RT_STRIDE}")
    srd(A, 12, 52, off_sgpr=33, off_imm=OF_OFF, size=8*RT_STRIDE)
    A("s_mul_i32 s33, s32, 10240")
    A(f"s_sub_u32 s34, {240*40960}, s33")
    srd(A, 16, 52, off_sgpr=33, off_imm=WP_OFF, size_sgpr=34)
    SLOT = 36864

    def dma_b():
        L = [("s", "s_lshl_b32 s37, s36, 10"), ("s", "s_add_u32 m0, s39, s41")]
        for i in range(4):
            L.append(("d", f"buffer_load_dwordx4 v{9+(i>>1)}, s[12:15], s37 offen offset:{1024*i} sc1 lds"))
        return L

    def dma_a():
        L = [("s", "s_mul_i32 s38, s36, 40960"), ("s", "s_add_u32 m0, s39, s42")]
        for i in range(4):
            L.append(("d", f"buffer_load_dwordx4 v11, s[16:19], s38 offen offset:{1024*i} sc1 lds"))
        L.append(("s", "s_add_u32 m0, m0, 4096"))
        L.append(("d", "buffer_load_dwordx4 v12, s[16:19], s38 offen sc1 lds"))
        return L

    def dma_adv():
        L = [("s", "s_add_u32 s43, s43, 1")]
        L.append(("s", "s_cmp_eq_u32 s43, 24", "s_cselect_b32 s33, s40, 2"))
        L.append(("s", "s_add_u32 s36, s36, s33"))
        L.append(("s", f"s_add_u32 s39, s39, {SLOT}"))
        L.append(("s", f"s_cmp_eq_u32 s39, {4*SLOT}", "s_cselect_b32 s39, 0, s39"))
        return L
    A("s_waitcnt vmcnt(24)")
    A("v_readfirstlane_b32 s33, v21")
    A("s_cmp_ge_u32 s33, 256")
    A("s_cbranch_scc1 K2_P_READY")
    A("s_mov_b32 s44, 0x100")
    poll(A, "K2_PP", 20, 21, "s[64:65]", "1", "s44", cmp="v_cmp_le_u32")
    A.label("K2_P_READY")
    A("s_mov_b32 s39, 0")
    for i in range(4):
        emit_plain(A, dma_a() + [("s", "s_add_u32 s36, s36, 2"), ("s", f"s_add_u32 s39, s39, {SLOT}")])
    A("s_sub_u32 s36, s36, 8")
    A("s_lshr_b32 s33, s28, 1")
    A("s_lshl_b32 s33, s33, 2")
    for t in range(4):
        A(f"s_add_u32 s34, s29, {t}")
        A("s_and_b32 s34, s34, 3")
        A("s_add_u32 s34, s34, s33")
        A("s_lshl_b32 s34, s34, 11")
        A(f"v_add_u32 v{4+t}, s34, v2")
    A("s_and_b32 s34, s28, 1")
    A("s_mul_i32 s34, s34, 5120")
    A("s_add_u32 s34, s34, 16384")
    A("v_add_u32 v8, s34, v2")
    srd(A, 20, 60, size=2621440)
    srd(A, 24, 62, size=2621440)
    A("s_lshl_b32 s34, s31, 3")
    A("s_add_u32 s34, s34, s33")
    A("s_add_u32 s34, s34, s29")
    A("s_lshl_b32 s34, s34, 4")
    A("v_and_b32 v3, 15, v0")
    A("v_add_u32 v3, s34, v3")
    A("v_mul_u32_u24 v3, 1280, v3")
    A("v_lshrrev_b32 v13, 4, v0")
    A("v_lshl_add_u32 v3, v13, 3, v3")
    A("s_lshl_b32 s34, s32, 1")
    A("s_and_b32 s35, s28, 1")
    A("s_add_u32 s34, s34, s35")
    A("s_mul_i32 s34, s34, 160")
    A("v_add_u32 v3, s34, v3")
    A("s_lshl_b32 s51, s31, 2")
    A("s_add_u32 s51, s51, s32")
    A("s_mul_i32 s34, s51, 163840")
    srd(A, 4, 52, off_sgpr=34, off_imm=XCH_OFF, size=163840)
    A("s_lshl_b32 s34, s31, 1")
    A("s_lshr_b32 s35, s28, 1")
    A("s_add_u32 s34, s34, s35")
    A("s_lshl_b32 s34, s34, 7")
    A("s_mul_i32 s35, s29, 40")
    A("s_add_u32 s34, s34, s35")
    A(f"s_add_u32 s34, s34, {FLG_OFF}")
    A("v_lshl_add_u32 v13, v0, 2, s34")
    A("v_mov_b32 v14, 1")
    A("s_waitcnt vmcnt(20)")
    A("s_mov_b64 exec, 1")
    A("global_store_dword v1, v14, s[52:53] sc1")
    ST()
    poll(A, "K2_PO", 13, 15, "s[52:53]", "s[46:47]", "0")
    ST()
    A("s_mov_b32 s39, 0")
    A("s_mov_b32 s43, 0")
    for i in range(4):
        emit_plain(A, dma_b() + dma_adv())
    FR, AX, AY = 16, 96, 176

    def accr(base, c, t):
        return base + 20*t + 4*c

    def reads(k2):
        L = []
        order = [("A", 0), ("B", 0), ("B", 1), ("B", 2), ("B", 3), ("A", 1), ("A", 2), ("A", 3), ("A", 4)]
        for kind, i in order:
            if kind == "B":
                L.append(f"ds_read_b128 {vr(FR+36*k2+4*i, 4)}, v{4+i} offset:{1024*k2}")
            else:
                L.append(f"ds_read_b128 {vr(FR+36*k2+16+4*i, 4)}, v8 offset:{10240*k2+1024*i}")
        return L

    def half(k2, acc0, gaps, zero=False):
        for g in range(20):
            c, t = divmod(g, 4)
            acc = vr(accr(acc0, c, t), 4)
            A(mfma(acc, vr(FR+36*k2+16+4*c, 4), vr(FR+36*k2+4*t, 4), "0" if zero else acc))
            for s_ in gaps[g]:
                A(s_)

    def slot_adv(gaps, g0):
        gaps[g0] += [f"s_add_u32 s35, s35, {SLOT}"]
        gaps[g0+1] += [f"s_cmp_eq_u32 s35, {4*SLOT}", "s_cselect_b32 s50, s49, s48", "s_cselect_b32 s35, 0, s35"]
        for i in range(5):
            gaps[g0+2+i].append(f"v_add_u32 v{4+i}, s50, v{4+i}")

    RP = [0, 1, 3, 4, 5, 7, 8, 9, 11]
    DP = [2, 6, 10, 14, 18, 22, 26, 30, 34]

    def body(acc_a, acc_b, zero_b=False, loop=None, kill=False):
        gaps = [[] for _ in range(40)]
        for k, s_ in enumerate(reads(0)):
            gaps[RP[k]].append(s_)
        for k, s_ in enumerate(reads(1)):
            gaps[20+RP[k]].append(s_)
        g, nd = 0, 0
        for e in dma_b() + dma_a():
            if e[0] == "d":
                g = DP[nd]
                nd += 1
                gaps[g].append(e[1])
            else:
                gaps[g] += list(e[1:])
                g += 1
        adv = dma_adv()
        gaps[16] += list(adv[0][1:])
        gaps[17] += list(adv[1][1:])
        gaps[21] += list(adv[2][1:])
        gaps[23] += list(adv[3][1:])
        gaps[32] += list(adv[4][1:])
        if kill:
            gaps[36] += ["s_cmp_ge_u32 s43, 30", "s_cselect_b32 s14, 0, s14", "s_cselect_b32 s18, 0, s18"]
        gaps[19] += ["s_waitcnt lgkmcnt(0)"]
        gaps[12] += [f"s_add_u32 s35, s35, {SLOT}"]
        gaps[13] += [f"s_cmp_eq_u32 s35, {4*SLOT}", "s_cselect_b32 s50, s49, s48", "s_cselect_b32 s35, 0, s35"]
        for i, g_ in enumerate((33, 33, 35, 35, 37)):
            gaps[g_].append(f"v_add_u32 v{4+i}, s50, v{4+i}")
        if loop:
            gaps[12] += ["s_sub_u32 s54, s54, 1"]
            gaps[38] += ["s_cmp_lg_u32 s54, 0"]
            A(f"s_mov_b32 s54, {loop[1]}")
            A.label(loop[0])
        A("s_waitcnt vmcnt(18) lgkmcnt(0)")
        A("s_barrier")
        half(1, acc_a, gaps[:20])
        half(0, acc_b, gaps[20:], zero=zero_b)
        if loop:
            A(f"s_cbranch_scc1 {loop[0]}")

    A("s_mov_b32 s35, 0")
    A(f"s_mov_b32 s48, {SLOT}")
    A(f"s_mov_b32 s49, {-3*SLOT & 0xffffffff}")
    A("s_waitcnt vmcnt(12)")
    A("s_barrier")
    ST()
    for s_ in reads(0):
        A(s_)
    A("s_waitcnt lgkmcnt(0)")
    gaps = [[] for _ in range(20)]
    for k, s_ in enumerate(reads(1)):
        gaps[RP[k]].append(s_)
    slot_adv(gaps, 12)
    half(0, AX, gaps, zero=True)
    A("s_waitcnt vmcnt(4)")
    body(AX, AX, loop=("K2_L1", 23))
    body(AX, AY, zero_b=True)
    body(AY, AY, loop=("K2_L2", 5), kill=True)
    A("s_waitcnt lgkmcnt(0)")
    half(1, AY, [[] for _ in range(20)])
    ST()
    XR = 16
    for c in range(5):
        A(f"buffer_load_dwordx2 v[{XR+2*c}:{XR+2*c+1}], v3, s[20:23], 0 offen offset:{32*c}")
    A("v_lshlrev_b32 v5, 3, v0")
    A("s_mul_i32 s34, s28, 2560")
    for t in range(4):
        A(f"s_add_u32 s33, s29, {t}")
        A("s_and_b32 s33, s33, 3")
        A("s_mul_i32 s33, s33, 40960")
        A(f"s_add_u32 s{36+t}, s33, s34")

    def send(base, t, src, P):
        for p in range(10):
            A(f"v_cvt_pk_bf16_f32 v{P+p}, v{base+20*t+2*p}, v{base+20*t+2*p+1}")
        A(f"s_add_u32 s33, s{36+t}, {src*10240}")
        A(f"buffer_store_dwordx4 {vr(P, 4)}, v2, s[4:7], s33 offen sc1")
        A(f"buffer_store_dwordx4 {vr(P+4, 4)}, v2, s[4:7], s33 offen offset:1024 sc1")
        A(f"buffer_store_dwordx2 {vr(P+8, 2)}, v5, s[4:7], s33 offen offset:2048 sc1")
    A("s_cmp_eq_u32 s29, 3")
    A("s_cbranch_scc1 K2_SPLIT3")
    for t in (1, 2, 3, 0):
        for p in range(10):
            A(f"v_pk_add_f32 {vr(AY+20*t+2*p, 2)}, {vr(AY+20*t+2*p, 2)}, {vr(AX+20*t+2*p, 2)}")
        if t:
            send(AY, t, t-1, 28 + 12*t)
    A("s_branch K2_SENT")
    A.label("K2_SPLIT3")
    for t in range(4):
        send(AX, t, 3, 28 + 12*t)
    A("s_nop 1")
    for t in range(1, 4):
        send(AY, t, t-1, AX + 12*t)
    A.label("K2_SENT")
    A("s_lshl_b32 s33, s51, 2")
    A("s_add_u32 s33, s33, s28")
    A("s_lshl_b32 s33, s33, 4")
    A(f"s_add_u32 s33, s33, {FLG_OFF + 0x1000}")
    A("v_lshl_add_u32 v13, v0, 2, s33")
    A("s_waitcnt vmcnt(0)")
    A("s_mov_b64 exec, 2")
    A("global_store_dword v1, v14, s[52:53] sc1")
    ST()
    poll(A, "K2_PX", 13, 15, "s[52:53]", "15", "0")
    ST()
    RX = 28
    for src in range(4):
        P = RX + 12*src
        A(f"s_add_u32 s33, s36, {src*10240}")
        A(f"buffer_load_dwordx4 {vr(P, 4)}, v2, s[4:7], s33 offen sc1")
        A(f"buffer_load_dwordx4 {vr(P+4, 4)}, v2, s[4:7], s33 offen offset:1024 sc1")
        A(f"buffer_load_dwordx2 {vr(P+8, 2)}, v5, s[4:7], s33 offen offset:2048 sc1")
    T = AX + 20
    for src in range(4):
        P = RX + 12*src
        A(f"s_waitcnt vmcnt({3*(3-src)})")
        D = T if src < 3 else AX
        for p in range(10):
            A(f"v_lshlrev_b32 v{D+2*p}, 16, v{P+p}")
            A(f"v_and_b32 v{D+2*p+1}, 0xffff0000, v{P+p}")
        if src < 3:
            for p in range(10):
                A(f"v_pk_add_f32 {vr(AY+2*p, 2)}, {vr(AY+2*p, 2)}, {vr(T+2*p, 2)}")
    final_combine(A, AY, AX, XR, T)
    for c in range(5):
        A(f"buffer_store_dwordx2 v[{XR+2*c}:{XR+2*c+1}], v3, s[24:27], 0 offen offset:{32*c}")
    ST()


HEADER = """; Kernarg layout for this problem (96 bytes, ptrs only, base s[0:1]):
;   offset  72: d_out     shape=(1, 2048, 640) dtype=bfloat16
"""


CFG = {}


def generate(cfg):
    CFG.clear()
    CFG.update(cfg)
    A = Asm()
    A.raw(HEADER.rstrip())
    A.raw(f"; @launch grid=(256,1,1) block=(256,1,1) lds={K1_LDS}")
    A.raw('.amdgcn_target "amdgcn-amd-amdhsa--gfx950"')
    gen_main(A, cfg)
    return A.text()


if __name__ == "__main__":
    for x in range(192):
        assert (x * 2731) >> 16 == x // 24 and (x * 10923) >> 16 == x // 6
    for x in range(320):
        assert (x * 3277) >> 16 == x // 20
    cfg = {}
    out = f"cdna_kernels/{NAME}.s"
    for a in sys.argv[1:]:
        if "=" in a:
            k, v = a.split("=")
            if k == "out":
                out = v
            else:
                cfg[k] = int(v)
    open(out, "w").write(generate(cfg))
    print("wrote", out)
```

```python
import sys, math, struct

NAME = "recurrent_scan__mha_block_cached__swiglu_ffn__prompt"
XN_OFF = 0
WP_OFF = 0x400000
OF_OFF = 0x1000000
RT_STRIDE = 240 * 1024
LOG2E = 1.4426950408889634


def f2u(x):
    return struct.unpack("<I", struct.pack("<f", x))[0]


class Asm:
    def __init__(self):
        self.L = []

    def __call__(self, s):
        self.L.append("    " + s)

    def label(self, s):
        self.L.append(s + ":")

    def raw(self, s):
        self.L.append(s)

    def text(self):
        return "\n".join(self.L) + "\n"


def vr(b, n=1):
    return f"v{b}" if n == 1 else f"v[{b}:{b+n-1}]"


def ar(b, n=1):
    return f"a{b}" if n == 1 else f"a[{b}:{b+n-1}]"


def sr(b, n=1):
    return f"s{b}" if n == 1 else f"s[{b}:{b+n-1}]"


def kernel_begin(A, name):
    A.raw(".text")
    A.raw(f".globl {name}")
    A.raw(".p2align 8")
    A.raw(f".type {name},@function")
    A.label(name)


def kernel_desc(A, name, nv, ns, ao):
    A.raw('.section .rodata,"a"')
    A.raw(".p2align 6")
    A.raw(f".amdhsa_kernel {name}")
    A.raw(f"  .amdhsa_next_free_vgpr {nv}")
    A.raw(f"  .amdhsa_next_free_sgpr {ns}")
    A.raw(f"  .amdhsa_accum_offset {ao}")
    A.raw("  .amdhsa_group_segment_fixed_size 0")
    A.raw("  .amdhsa_kernarg_size 96")
    A.raw("  .amdhsa_user_sgpr_count 2")
    A.raw("  .amdhsa_user_sgpr_kernarg_segment_ptr 1")
    A.raw("  .amdhsa_system_sgpr_workgroup_id_x 1")
    A.raw(".end_amdhsa_kernel")


def srd(A, d, ptr, off_sgpr=None, off_imm=0, size=None, size_sgpr=None):
    if off_sgpr is not None:
        A(f"s_add_u32 s{d}, s{ptr}, s{off_sgpr}")
        A(f"s_addc_u32 s{d+1}, s{ptr+1}, 0")
        if off_imm:
            A(f"s_add_u32 s{d}, s{d}, {off_imm}")
            A(f"s_addc_u32 s{d+1}, s{d+1}, 0")
    elif off_imm:
        A(f"s_add_u32 s{d}, s{ptr}, {off_imm}")
        A(f"s_addc_u32 s{d+1}, s{ptr+1}, 0")
    else:
        A(f"s_mov_b32 s{d}, s{ptr}")
        A(f"s_mov_b32 s{d+1}, s{ptr+1}")
    if size_sgpr is not None:
        A(f"s_mov_b32 s{d+2}, s{size_sgpr}")
    else:
        A(f"s_mov_b32 s{d+2}, {size}")
    A(f"s_mov_b32 s{d+3}, 0x00020000")


STAMP_OFF = 0x8000000


class Stamps:
    def __init__(self, A, on):
        self.A, self.on, self.n = A, on, 0

    def __call__(self, lvl=1):
        if not self.on or (lvl != self.on and self.n > 0 and lvl != 9):
            return
        A = self.A
        A("s_memtime s[66:67]")
        A("s_memrealtime s[68:69]")
        A("s_waitcnt lgkmcnt(0)")
        A(f"s_mov_b32 s{70+2*self.n}, s66")
        A(f"s_mov_b32 s{71+2*self.n}, s68")
        self.n += 1
        assert self.n <= 16

    def dump(self, wave_sgpr):
        if not self.on:
            return
        A = self.A
        A("s_waitcnt vmcnt(0)")
        self(9)
        A("s_lshl_b32 s33, s2, 2")
        A(f"s_add_u32 s33, s33, s{wave_sgpr}")
        A("s_lshl_b32 s33, s33, 7")
        A(f"s_add_u32 s33, s33, {STAMP_OFF}")
        A("s_add_u32 s34, s52, s33")
        A("s_addc_u32 s35, s53, 0")
        A("v_mov_b32 v1, 0")
        for i in range(self.n):
            A(f"v_mov_b32 v2, s{70+2*i}")
            A(f"v_mov_b32 v3, s{71+2*i}")
            A(f"global_store_dwordx2 v1, v[2:3], s[34:35] offset:{8*i}")
        A("s_waitcnt vmcnt(0)")


def mfma(d, a, b, c):
    return f"v_mfma_f32_16x16x32_bf16 {d}, {a}, {b}, {c}"


XCH_OFF = 0x4000000
K2_LDS = 4 * 36864


QF = 160
SB = 96
NM = 80
VF = 48
LS = 40
VK, VV, DK, DV = 2, 4, 8, 11
KF = 192
KREG, VREG = 36864, 86016


def qf(qt, u):
    return vr(QF + (u*4+qt)*4, 4)


def sreg(buf, qt, kt):
    return SB + buf*32 + qt*8 + kt*4


def oacc(dt, qt):
    return (dt*4 + qt) * 4


def k_read(slot, kt, u):
    return f"ds_read_b128 {ar(KF+kt*24+u*4, 4)}, v{VK+(u&1)} offset:{slot*12288+kt*6144+128*(u>>1)}"


def v_read(slot, dt, rd):
    b = VF + (dt % 8)*4 + 2*rd
    return f"ds_read_b64_tr_b16 {vr(b, 2)}, v{VV+(dt&3)} offset:{slot*12288+rd*6144+128*(dt>>2)}"


def softmax_ops(buf, qts):
    E, S = [], []
    for qt in qts:
        b = sreg(buf, qt, 0)
        for p in range(4):
            e0 = len(E)
            E.append(f"v_exp_f32 v{b+2*p}, v{b+2*p}")
            E.append(f"v_exp_f32 v{b+2*p+1}, v{b+2*p+1}")
            S.append((e0, f"v_add_f32 v{LS+2*qt}, v{LS+2*qt}, v{b+2*p}"))
            S.append((e0+1, f"v_add_f32 v{LS+2*qt+1}, v{LS+2*qt+1}, v{b+2*p+1}"))
            S.append((e0+1, f"v_cvt_pk_bf16_f32 v{b+p}, v{b+2*p}, v{b+2*p+1}"))
    return E, S


def fill_valu(gaps, lo, hi, E, S):
    ei, si = 0, 0
    epos = {}
    n_empty = sum(1 for g in range(lo, hi) if not gaps[g][0] and not gaps[g][2])
    assert n_empty >= len(E), (n_empty, len(E))
    for g in range(lo, hi):
        used = len(gaps[g][0]) + len(gaps[g][2])
        avail = [k for k in range(si, len(S)) if S[k][0] in epos and epos[S[k][0]] < g]
        navail = 0
        for k in range(si, len(S)):
            if S[k][0] in epos and epos[S[k][0]] < g:
                navail += 1
            else:
                break
        if used == 0:
            empty_left = sum(1 for q in range(g, hi) if not gaps[q][0] and not gaps[q][2])
            must_exp = empty_left <= len(E) - ei
            if ei < len(E) and (must_exp or navail < 4):
                gaps[g][1].append(E[ei])
                epos[ei] = g
                ei += 1
                continue
        free = 2 - used
        while free > 0 and navail > 0:
            gaps[g][1].append(S[si][1])
            si += 1
            navail -= 1
            free -= 1
    assert ei == len(E) and si == len(S), (ei, len(E), si, len(S))


def gen_stage(A, sg, extra=None, first=False):
    nb, cb = (sg + 1) & 1, sg & 1
    M = []
    for kt in range(2):
        for qt in range(4):
            d = vr(sreg(nb, qt, kt), 4)
            for u in range(6):
                M.append(mfma(d, ar(KF+kt*24+u*4, 4), qf(qt, u), vr(NM+qt*4, 4) if u == 0 else d))
    for dt in range(12):
        for qt in range(4):
            o = ar(oacc(dt, qt), 4)
            M.append(mfma(o, vr(VF+(dt % 8)*4, 4), vr(sreg(cb, qt, 0), 4), "0" if first else o))
    gaps = [[[], [], []] for _ in range(96)]
    for u in range(6):
        gaps[1+3*u][0].append(k_read((sg+1) % 4, 1, u))
    gaps[23][2].append("s_waitcnt lgkmcnt(0)")
    for j in range(24):
        gaps[26+2*j][0].append(v_read(sg, j // 2, j & 1))
    for g in (47, 59, 71):
        gaps[g][2].append("s_waitcnt lgkmcnt(5)")
    sa = CFG.get('sabl', 0)
    ex = [0, 0 if sa & 2 else 1, 0 if sa & 4 else 1, 0]
    gaps[79][2].append(f"s_waitcnt vmcnt({12 + ex[sg] + ex[sg-1] + ex[sg-2]}) lgkmcnt(0)")
    if not ex[sg]:
        pass
    elif sg == 0:
        gaps[39][0].append("global_load_dword v22, v23, s[64:65] sc1")
    elif sg == 1:
        gaps[18][0].append("ds_read_b64_tr_b16 v[14:15], v35")
        gaps[19][0].append(f"ds_read_b64_tr_b16 v[16:17], v35 offset:{16*320}")
        gaps[39][0].append("buffer_store_dwordx4 v[14:17], v39, s[48:51], s56 offen sc1")
        gaps[75][2].append("v_add_u32 v35, 32, v35")
        gaps[75][2].append("s_add_u32 s56, s56, 1024")
    elif sg == 2:
        gaps[39][0].append("buffer_store_dwordx4 v[18:21], v39, s[44:47], s57 offen sc1")
        gaps[75][2].append("s_add_u32 s57, s57, 1024")
    gaps[79][2].append("s_barrier")
    for u in range(6):
        gaps[81+u][0].append(k_read((sg+2) % 4, 0, u))
    gaps[95][2].append("s_waitcnt lgkmcnt(0)")
    dpos = CFG.get("dpos", 1)
    NT = " nt" if CFG.get("nt", 1) else ""
    P = [3, 9, 15, 21, 27, 33] if dpos == 1 else [3, 6, 9, 12, 15, 18]
    gaps[1][2].append(f"s_add_u32 m0, s29, {KREG + sg*12288}")
    for n in range(3):
        gaps[P[n]][0].append(f"buffer_load_dwordx4 v{DK+n}, s[16:19], s30 offen offset:{1024*n}{NT} lds")
    gaps[16 if dpos == 1 else 10][2].append(f"s_add_u32 m0, s29, {VREG + ((sg+3) % 4)*12288}")
    for n in range(3):
        gaps[P[3+n]][0].append(f"buffer_load_dwordx4 v{DV+n}, s[20:23], s30 offen offset:{1024*n}{NT} lds")
    gaps[36][2].append("s_add_u32 s30, s30, 12288")
    if extra:
        for g, s in extra:
            gaps[g][2].append(s)
    E, S = softmax_ops(cb, (2, 3))
    fill_valu(gaps, 0, 47, E, S)
    E, S = softmax_ops(nb, (0, 1))
    fill_valu(gaps, 48, 96, E, S)
    abl = CFG.get("abl", 0) if not first else 0
    for g in range(96):
        A(M[g])
        for s in gaps[g][0] + gaps[g][1] + gaps[g][2]:
            if abl & 1 and s.startswith("ds_read_b128"):
                continue
            if abl & 2 and s.startswith("ds_read_b64"):
                continue
            if abl & 4 and s.startswith("v_exp"):
                continue
            if abl & 8 and s.startswith("v_add"):
                continue
            if abl & 16 and s.startswith("v_cvt"):
                continue
            if abl & 32 and s.startswith("buffer_load"):
                continue
            if abl & 64 and s.startswith("s_barrier"):
                continue
            A(s)


def gen_tail(A, sg):
    cb = sg & 1
    for j in range(12):
        A(v_read(sg, j // 2, j & 1))
    A("s_waitcnt vmcnt(0)")
    A("s_barrier")
    A(f"s_mov_b32 s33, {SPIN_MAX}")
    A.label("K2_PP")
    A("v_cmp_eq_u32 vcc, 32, v23")
    A("s_cmp_eq_u64 vcc, exec")
    A("s_cbranch_scc1 K2_PP_OK")
    A("s_sleep 1")
    A("global_load_dword v23, v25, s[64:65] sc1")
    A("s_waitcnt vmcnt(0)")
    A("s_sub_u32 s33, s33, 1")
    A("s_cmp_lg_u32 s33, 0")
    A("s_cbranch_scc1 K2_PP")
    A.label("K2_PP_OK")
    A("s_waitcnt lgkmcnt(4)")
    for j in range(12, 16):
        A(v_read(sg, j // 2, j & 1))
    W = p_at(0) + p_fill_b() + p_fill_a() + p_at(1) + p_fill_b() + p_fill_a()

    def next_fill():
        while W:
            e = W.pop(0)
            if e[0] == "d":
                A(e[1])
                while W and W[0][0] != "d":
                    A(W.pop(0)[1])
                return
            A(e[1])
            if W[0][0] == "d":
                A("s_nop 0")
    E, S = softmax_ops(cb, (2, 3))
    for k, e in enumerate(E):
        if k % 4 == 0:
            next_fill()
        A(e)
    A("s_nop 0")
    for k, (_, s) in enumerate(S):
        if k in (0, 12):
            next_fill()
        A(s)
    A("s_waitcnt lgkmcnt(0)")
    A("s_nop 1")
    for dt in range(12):
        if dt == 8:
            A("s_waitcnt lgkmcnt(0)")
        for qt in range(4):
            o = ar(oacc(dt, qt), 4)
            A(mfma(o, vr(VF+(dt % 8)*4, 4), vr(sreg(cb, qt, 0), 4), o))
            if 1 <= dt <= 4 and qt < 2:
                A(v_read(sg, dt + 7, qt))
            if qt == 2:
                next_fill()
    assert not W


def xlane_reduce(A, op, regs, tmp):
    for swap in ("v_permlane32_swap_b32", "v_permlane16_swap_b32"):
        for i, r in enumerate(regs):
            A(f"v_mov_b32 v{tmp+i}, v{r}")
        A("s_nop 1")
        for i, r in enumerate(regs):
            A(f"{swap} v{tmp+i}, v{r}")
        A("s_nop 1")
        for i, r in enumerate(regs):
            A(f"{op} v{r}, v{r}, v{tmp+i}")


class Track:
    def __init__(self, name, init=()):
        self.name, self.q, self.done = name, list(init), 0

    def issue(self, tag):
        self.q.append(tag)

    def need(self, tags):
        idx = max((len(self.q) - 1 - self.q[::-1].index(t)) for t in tags)
        if idx < self.done:
            return None
        self.done = idx + 1
        return len(self.q) - 1 - idx

    def drain(self):
        self.done = len(self.q)


XREG = 110592
CREG = 147456
FREG = 148608
K1_LDS = 148672
FLG_OFF = 0x7000000
SPIN_MAX = 1 << 22


def emit_plain(A, L):
    prev = None
    for e in L:
        if e[0] == "d" and prev is not None and "m0" in prev:
            A("s_nop 0")
        for s_ in e[1:]:
            A(s_)
        prev = e[-1]


def poll(A, label, vaddr, vtmp, sbase, mask_sgpr_pair, want, cmp="v_cmp_ne_u32"):
    A(f"s_mov_b32 s33, {SPIN_MAX}")
    A(f"s_mov_b64 exec, {mask_sgpr_pair}")
    A.label(label)
    A(f"global_load_dword v{vtmp}, v{vaddr}, {sbase} sc1")
    A("s_waitcnt vmcnt(0)")
    A(f"{cmp} vcc, {want}, v{vtmp}")
    A("s_cmp_eq_u64 vcc, exec")
    A(f"s_cbranch_scc1 {label}_OK")
    A("s_sleep 1")
    A("s_sub_u32 s33, s33, 1")
    A("s_cmp_lg_u32 s33, 0")
    A(f"s_cbranch_scc1 {label}")
    A.label(label + "_OK")
    A("s_mov_b64 exec, -1")


def gen_main(A, cfg):
    name = NAME + "_kernel"
    NT = " nt" if cfg.get("nt", 1) else ""
    kernel_begin(A, name)
    A("s_cmp_ge_u32 s2, 256")
    A("s_cbranch_scc1 K1_END")
    if cfg.get("cpf", 1):
        A("s_getpc_b64 s[34:35]")
        A("s_and_b32 s34, s34, 0xffffff00")
        A("s_lshr_b32 s33, s2, 3")
        A("s_lshl_b32 s33, s33, 12")
        A("v_lshl_add_u32 v2, v0, 4, s33")
        A(f"v_min_u32 v2, (K1_END-{name}-16)&0xfffffff0, v2")
        A("global_load_dwordx4 v[60:63], v2, s[34:35]")
    ST = Stamps(A, cfg.get("stamp", 0))
    ST()
    A("s_load_dwordx2 s[60:61], s[0:1], 0")
    A("s_load_dwordx4 s[44:47], s[0:1], 24")
    A("s_load_dwordx4 s[48:51], s[0:1], 48")
    A("s_load_dwordx4 s[40:43], s[0:1], 8")
    A("s_load_dwordx2 s[58:59], s[0:1], 64")
    A("s_load_dwordx2 s[62:63], s[0:1], 72")
    A("s_load_dwordx2 s[64:65], s[0:1], 80")
    A("s_load_dwordx2 s[52:53], s[0:1], 88")
    A("v_lshrrev_b32 v1, 6, v0")
    A("v_and_b32 v0, 63, v0")
    A("v_readfirstlane_b32 s28, v1")
    A("s_and_b32 s31, s2, 6")
    A("s_lshl_b32 s31, s31, 2")
    A("s_bfe_u32 s33, s2, 0x30003")
    A("s_add_u32 s31, s31, s33")
    A("s_and_b32 s32, s2, 1")
    A("s_lshl_b32 s32, s32, 2")
    A("s_lshr_b32 s33, s2, 6")
    A("s_add_u32 s32, s32, s33")
    A("s_mul_i32 s29, s28, 3072")
    XD, XR, WD, GD, CQ, CG, CC = 14, 16, 18, 21, 24, 26, 27
    XT = 24
    A("v_lshrrev_b32 v36, 3, v0")
    A("v_mul_u32_u24 v37, 1280, v36")
    A("v_lshrrev_b32 v38, 4, v0")
    A("v_and_b32 v39, 7, v0")
    A("v_xor_b32 v39, v39, v38")
    A(f"v_lshl_add_u32 v{XD}, v39, 4, v37")
    A("v_xor_b32 v39, 4, v39")
    A(f"v_lshl_add_u32 v{XD+1}, v39, 4, v37")
    A(f"v_add_u32 v{XD+1}, 10240, v{XD+1}")
    for n in range(3):
        A(f"v_add_u32 v40, {64*n}, v0")
        A(f"v_mul_u32_u24 v{44+n}, 2731, v40")
        A(f"v_lshrrev_b32 v{44+n}, 16, v{44+n}")
        A(f"v_mul_u32_u24 v41, 24, v{44+n}")
        A("v_sub_u32 v41, v40, v41")
        A(f"v_and_b32 v42, 2, v{44+n}")
        A("v_lshlrev_b32 v42, 1, v42")
        A("v_xor_b32 v41, v41, v42")
        A("s_lshl_b32 s33, s28, 4")
        A(f"v_add_u32 v42, s33, v{44+n}")
        A("v_mul_u32_u24 v42, 12288, v42")
        A("v_lshl_add_u32 v42, v41, 4, v42")
        A(f"v_subrev_u32 v{WD+n}, {1024*n}, v42")
        A("v_mul_u32_u24 v41, 10923, v40")
        A("v_lshrrev_b32 v41, 16, v41")
        A("v_mul_u32_u24 v42, 6, v41")
        A("v_sub_u32 v42, v40, v42")
        A("s_and_b32 s33, s31, 1")
        A("s_lshl_b32 s33, s33, 1")
        A("v_add_u32 v42, s33, v42")
        A("v_subrev_u32 v43, 6, v42")
        A("v_min_u32 v42, v42, v43")
        A("s_and_b32 s33, s28, 1")
        A("s_lshl_b32 s33, s33, 5")
        A("v_add_u32 v41, s33, v41")
        A("v_mul_u32_u24 v41, 3072, v41")
        A("v_lshl_add_u32 v41, v42, 4, v41")
        A(f"v_subrev_u32 v{GD+n}, {1024*n}, v41")
    A("s_mov_b32 s36, 0")
    A("s_mov_b32 s37, 0")
    A("s_mov_b32 s38, 0")
    A("s_mov_b32 s39, 0")
    A("s_lshl_b32 s57, s28, 13")
    A(f"s_add_u32 s57, s57, {XREG}")
    A("s_lshl_b32 s33, s32, 2")
    A("s_add_u32 s33, s33, s28")
    A(f"s_mul_i32 s56, s33, {64*1280}")
    A("s_waitcnt lgkmcnt(0)")
    srd(A, 4, 60, off_sgpr=56, size=64*1280)
    A("s_mul_i32 s34, s31, 384")
    A(f"s_sub_u32 s35, {640*12288}, s34")
    srd(A, 8, 44, off_sgpr=34, size_sgpr=35)
    A("s_cmp_lt_u32 s28, 2")
    A("s_cselect_b32 s44, s48, s50")
    A("s_cselect_b32 s45, s49, s51")
    A("s_mul_i32 s34, s31, 96")
    A(f"s_sub_u32 s35, {640*3072}, s34")
    srd(A, 12, 44, off_sgpr=34, size_sgpr=35)

    GA, SUM, GRM, CAC, ONE, WF, CF, XF = 0, 96, 112, 128, 148, 152, 176, 192
    QA = 64
    SLOT = 36864

    def qacc(t, qt):
        return QA + ((t >> 1)*4 + qt)*8 + (t & 1)*4

    def x_dma(n):
        return [("s", f"s_add_u32 m0, s57, {1024*n}"), ("s", f"s_add_u32 s35, s36, {20480*(n>>1)}"),
                ("d", f"buffer_load_dwordx4 v{XD+(n&1)}, s[4:7], s35 offen lds")]
    xadv = [("s", "s_add_u32 s36, s36, 128")]

    def x_read(st, k2, qt):
        return f"ds_read_b128 {ar(XF+st*32+(k2*4+qt)*4, 4)}, v{XR+k2} offset:{qt*2048}"

    def w_dma():
        L = []
        L.append(("s", "s_lshl_b32 s34, s29, 1"))
        L.append(("s", "s_add_u32 m0, s39, s34"))
        for n in range(3):
            L.append(("d", f"buffer_load_dwordx4 v{WD+n}, s[8:11], s37 offen offset:{1024*n}{NT} lds"))
        L.append(("s", "s_add_u32 m0, m0, 3072"))
        L.append(("s", f"s_add_u32 s35, s37, {8*12288}"))
        for n in range(3):
            L.append(("d", f"buffer_load_dwordx4 v{WD+n}, s[8:11], s35 offen offset:{1024*n}{NT} lds"))
        L.append(("s", "s_add_u32 s34, s29, 24576"))
        L.append(("s", "s_add_u32 m0, s39, s34"))
        for n in range(3):
            L.append(("d", f"buffer_load_dwordx4 v{GD+n}, s[12:15], s38 offen offset:{1024*n} lds"))
        L.append(("s", f"s_add_u32 s38, s38, {64*3072}"))
        L.append(("s", "s_lshl_b32 s37, s38, 2"))
        L.append(("s", f"s_add_u32 s39, s39, {SLOT}"))
        L.append(("s2", f"s_cmp_eq_u32 s39, {3*SLOT}", "s_cselect_b32 s39, 0, s39"))
        return L

    def kv_dma(kind, i):
        L = [("s", f"s_add_u32 m0, s29, {(KREG if kind == 'K' else VREG) + i*12288}")]
        if kind == "K" and i == 0:
            for n in range(3):
                L.append(("s", f"v_subrev_u32 v{60+n}, 12288, v{DK+n}"))
            for n in range(3):
                L.append(("d", f"buffer_load_dwordx4 v{60+n}, s[16:19], 0 offen offset:{1024*n}{NT} lds"))
        elif kind == "K":
            L.append(("s", f"s_mov_b32 s30, {(i-1)*12288}"))
            for n in range(3):
                L.append(("d", f"buffer_load_dwordx4 v{DK+n}, s[16:19], s30 offen offset:{1024*n}{NT} lds"))
        else:
            L.append(("s", f"s_mov_b32 s30, {i*12288}"))
            for n in range(3):
                L.append(("d", f"buffer_load_dwordx4 v{DV+n}, s[20:23], s30 offen offset:{1024*n}{NT} lds"))
        return L

    def w_reads(t):
        L = []
        for k2 in range(2):
            for rd in range(2):
                d = ar(WF + (t % 3)*8 + k2*4 + 2*rd, 2)
                if t < 12:
                    u, par = t >> 1, t & 1
                    L.append(f"ds_read_b64_tr_b16 {d}, v{CQ+(u&1)} offset:{k2*32*384+rd*4*384+128*(u>>1)+8*par}")
                else:
                    tt = t - 12
                    L.append(f"ds_read_b64_tr_b16 {d}, v{CG} offset:{24576+(tt//3)*6144+k2*32*96+rd*4*96+32*(tt%3)}")
        return L

    def c_reads(p):
        L = []
        for k2 in range(2):
            for rd in range(2):
                d = ar(CF + k2*4 + 2*rd, 2)
                if p < 3:
                    L.append(f"ds_read_b64_tr_b16 {d}, v{CC} offset:{k2*32*384+rd*4*384+128*p}")
                else:
                    L.append(f"ds_read_b64_tr_b16 {d}, v{CC+p-2} offset:{24576+k2*32*96+rd*4*96}")
        return L

    for n in range(8):
        emit_plain(A, x_dma(n))
    emit_plain(A, xadv)
    emit_plain(A, w_dma())
    A("s_lshl_b32 s34, s33, 7")
    A("s_lshl_b32 s35, s31, 2")
    A("s_add_u32 s34, s34, s35")
    A("s_and_b32 s35, s2, 1")
    A("s_lshl_b32 s35, s35, 5")
    A("s_lshr_b32 s56, s2, 3")
    A("s_add_u32 s35, s35, s56")
    A("s_lshl_b32 s35, s35, 2")
    A("s_add_u32 s35, s35, s28")
    A("s_lshl_b32 s35, s35, 2")
    A("s_bfe_u32 s56, s2, 0x20001")
    A("s_add_u32 s35, s35, s56")
    A("s_lshl_b32 s35, s35, 2")
    A("s_add_u32 s35, s35, 0x1000")
    A(f"s_add_u32 s34, s34, {FLG_OFF}")
    A(f"s_add_u32 s35, s35, {FLG_OFF}")
    A("v_mov_b32 v1, s34")
    A("v_mov_b32 v40, s35")
    A("v_cmp_eq_u32 vcc, 1, v0")
    A("v_mov_b32 v41, 0")
    A("s_nop 0")
    A("v_cndmask_b32 v1, v1, v40, vcc")
    A("s_mov_b64 exec, 3")
    A("global_store_dword v1, v41, s[52:53] sc1")
    A("s_mov_b64 exec, -1")
    emit_plain(A, w_dma())
    A("s_mul_i32 s34, s31, 786432")
    srd(A, 16, 40, off_sgpr=34, size=786432)
    srd(A, 20, 42, off_sgpr=34, size=786432)
    A("s_cmp_ge_u32 s2, 192")
    A("s_cselect_b32 s44, s58, s46")
    A("s_cselect_b32 s45, s59, s47")
    A("s_cselect_b32 s34, 192, 0")
    A("s_sub_u32 s34, s2, s34")
    A("s_mul_i32 s34, s34, 40960")
    A("s_cmp_lt_u32 s2, 240")
    A("s_cselect_b32 s35, 40960, 0")
    A("s_cselect_b32 s34, s34, 0")
    srd(A, 40, 44, off_sgpr=34, size_sgpr=35)
    A("s_lshl_b32 s34, s2, 2")
    A("s_add_u32 s34, s34, s28")
    A("s_mul_i32 s34, s34, 10240")
    A("s_lshr_b32 s35, s35, 2")
    srd(A, 48, 52, off_sgpr=34, off_imm=WP_OFF, size_sgpr=35)
    A("s_and_b32 s34, s2, 1")
    A("s_lshl_b32 s34, s34, 5")
    A("s_lshr_b32 s35, s2, 3")
    A("s_add_u32 s34, s34, s35")
    A("s_lshl_b32 s34, s34, 2")
    A("s_bfe_u32 s35, s2, 0x20001")
    A("s_add_u32 s34, s34, s35")
    A("s_lshl_b32 s34, s34, 2")
    A("s_add_u32 s34, s34, s28")
    A("s_mul_i32 s34, s34, 15360")
    srd(A, 44, 52, off_sgpr=34, off_imm=XCH_OFF, size=7680)
    A("v_bfe_u32 v39, v0, 2, 2")
    A("v_and_b32 v40, 3, v0")
    A("v_and_b32 v41, 15, v0")
    for n in range(3):
        A("s_lshl_b32 s34, s28, 3")
        A(f"v_add_u32 v42, s34, v{44+n}")
        A("v_bfe_u32 v43, v42, 1, 3")
        A("v_xor_b32 v43, v43, v0")
        A("v_lshlrev_b32 v43, 4, v43")
        A("v_add_u32 v43, s29, v43")
        A(f"v_add_u32 v{DK+n}, 12288, v43")
        A("v_and_b32 v43, 6, v42")
        A("v_xor_b32 v43, v43, v0")
        A("v_lshlrev_b32 v43, 4, v43")
        A(f"v_add_u32 v{DV+n}, s29, v43")
    A("v_lshl_add_u32 v42, v38, 3, v39")
    A("v_mul_u32_u24 v43, 384, v42")
    A("v_lshl_add_u32 v43, v40, 4, v43")
    A("v_lshrrev_b32 v44, 1, v39")
    A(f"v_lshl_add_u32 v{CQ}, v44, 6, v43")
    A("v_xor_b32 v45, 1, v44")
    A(f"v_lshl_add_u32 v{CQ+1}, v45, 6, v43")
    A("s_lshr_b32 s34, s28, 1")
    A("v_xor_b32 v45, s34, v44")
    A(f"v_lshl_add_u32 v{CC}, v45, 6, v43")
    A("s_and_b32 s35, s28, 1")
    A("s_lshl_b32 s34, s35, 3")
    A(f"v_add_u32 v{CC}, s34, v{CC}")
    A("v_mul_u32_u24 v43, 96, v42")
    A(f"v_lshl_add_u32 v{CG}, v40, 3, v43")
    A("s_lshl_b32 s34, s28, 5")
    A("s_cmp_eq_u32 s28, 3")
    A("s_cselect_b32 s34, 6144, s34")
    A(f"v_add_u32 v{CC+1}, s34, v{CG}")
    A("s_lshl_b32 s34, s35, 5")
    A(f"s_add_u32 s34, s34, {6144+32}")
    A(f"v_add_u32 v{CC+2}, s34, v{CG}")
    A("v_bfe_u32 v44, v41, 1, 3")
    A("v_xor_b32 v44, v44, v38")
    A("v_xor_b32 v45, 4, v44")
    A("v_lshlrev_b32 v43, 7, v41")
    A("v_add_u32 v43, s57, v43")
    A(f"v_lshl_add_u32 v{XR}, v44, 4, v43")
    A(f"v_lshl_add_u32 v{XR+1}, v45, 4, v43")
    A("v_mul_u32_u24 v43, 384, v41")
    A(f"v_add_u32 v43, {KREG}, v43")
    A(f"v_lshl_add_u32 v{VK}, v44, 4, v43")
    A(f"v_lshl_add_u32 v{VK+1}, v45, 4, v43")
    A("v_lshrrev_b32 v42, 2, v0")
    A("v_mul_u32_u24 v43, 384, v42")
    A(f"v_add_u32 v43, {VREG}, v43")
    A("v_and_b32 v44, 1, v40")
    A("v_lshl_add_u32 v43, v44, 3, v43")
    A("v_and_b32 v44, 6, v42")
    A("v_lshrrev_b32 v45, 1, v40")
    A("v_xor_b32 v44, v44, v45")
    for j in range(4):
        A(f"v_xor_b32 v45, {2*j}, v44")
        A(f"v_lshl_add_u32 v{VV+j}, v45, 4, v43")
    PD = 30
    A("s_mul_i32 s34, s28, 320")
    for n in range(5):
        A(f"v_add_u32 v43, {64*n}, v0")
        A("v_mul_u32_u24 v44, 3277, v43")
        A("v_lshrrev_b32 v44, 16, v44")
        A("v_mul_u32_u24 v45, 20, v44")
        A("v_sub_u32 v45, v43, v45")
        A("v_mul_u32_u24 v44, 1280, v44")
        A("v_lshl_add_u32 v44, v45, 4, v44")
        A(f"v_add_u32 v{PD+n}, s34, v44")
    PR, PS = 35, 39
    A("v_mul_u32_u24 v43, 320, v42")
    A("v_lshl_add_u32 v43, v40, 3, v43")
    A("s_mul_i32 s58, s28, 10240")
    A("s_cmp_eq_u32 s28, 3")
    A("s_cselect_b32 s58, 135168, s58")
    A(f"v_add_u32 v{PR}, s58, v43")
    A("v_lshlrev_b32 v36, 4, v38")
    A(f"v_add_u32 v36, {CREG}, v36")
    A("s_lshl_b32 s34, s28, 6")
    A("v_add_u32 v56, s34, v36")
    A("s_and_b32 s34, s34, 64")
    A("v_add_u32 v57, s34, v36")
    for i in range(ONE):
        A(f"v_accvgpr_write_b32 a{i}, 0")
    A("v_mov_b32 v43, 0x3f803f80")
    for i in range(4):
        A(f"v_accvgpr_write_b32 a{ONE+i}, v43")
    for i in range(192):
        A(f"v_mov_b32 v{QA+i}, 0")
    A("s_waitcnt vmcnt(19)")
    for k2 in range(2):
        for qt in range(4):
            A(x_read(0, k2, qt))
    A("s_waitcnt lgkmcnt(0)")
    for n in range(8):
        emit_plain(A, x_dma(n))
    emit_plain(A, xadv)
    A("s_waitcnt vmcnt(18)")
    A("s_barrier")
    ST()
    for s in w_reads(0) + w_reads(1):
        A(s)

    PA, PB = 14, 40
    G0, TT = 48, 52

    def stats_ops():
        B = Asm()
        for qt in range(4):
            B(f"v_accvgpr_read_b32 v{G0+qt}, a{GRM+4*qt}")
        B("v_and_b32 v58, 3, v0")
        for r in range(1, 4):
            B(f"v_cmp_eq_u32 vcc, {r}, v58")
            for qt in range(4):
                B(f"v_accvgpr_read_b32 v{TT+qt}, a{GRM+4*qt+r}")
            for qt in range(4):
                B(f"v_cndmask_b32 v{G0+qt}, v{G0+qt}, v{TT+qt}, vcc")
        B("v_bfe_u32 v58, v0, 2, 2")
        B("v_lshrrev_b32 v59, 4, v0")
        B("v_cmp_eq_u32 vcc, v58, v59")
        B(f"s_mov_b32 s34, {hex(f2u(1.0/640))}")
        B("s_nop 0")
        for qt in range(4):
            B(f"v_cndmask_b32 v{G0+qt}, 0, v{G0+qt}, vcc")
        xlane_reduce(B, "v_add_f32", [G0+q for q in range(4)], TT)
        for qt in range(4):
            B(f"v_accvgpr_read_b32 v{TT+qt}, a{SUM+4*qt}")
        for qt in range(4):
            B(f"v_mul_f32 v{TT+qt}, s34, v{TT+qt}")
            B(f"v_mul_f32 v{G0+qt}, s34, v{G0+qt}")
        for qt in range(4):
            B(f"v_fma_f32 v{G0+qt}, -v{TT+qt}, v{TT+qt}, v{G0+qt}")
        for qt in range(4):
            B(f"v_max_f32 v{G0+qt}, 0, v{G0+qt}")
        for qt in range(4):
            B(f"v_cvt_pk_bf16_f32 v{G0+qt}, v{TT+qt}, v{G0+qt}")
        for qt in range(4):
            B(f"v_lshlrev_b32 v{TT+qt}, 16, v{G0+qt}")
            B(f"v_and_b32 v{G0+qt}, 0xffff0000, v{G0+qt}")
        for qt in range(4):
            B(f"v_sub_f32 v{PA+2*qt}, 0, v{TT+qt}")
            B(f"v_add_f32 v{G0+qt}, {hex(f2u(1e-5))}, v{G0+qt}")
        for qt in range(4):
            B(f"v_cvt_pk_bf16_f32 v{G0+qt}, v{G0+qt}, v{G0+qt}")
        for qt in range(4):
            B(f"v_lshlrev_b32 v{G0+qt}, 16, v{G0+qt}")
        for qt in range(4):
            B(f"v_sqrt_f32 v{G0+qt}, v{G0+qt}")
        for qt in range(4):
            B(f"v_cvt_pk_bf16_f32 v{G0+qt}, v{G0+qt}, v{G0+qt}")
        for qt in range(4):
            B(f"v_lshlrev_b32 v{G0+qt}, 16, v{G0+qt}")
        for qt in range(4):
            B(f"v_rcp_f32 v{TT+qt}, v{G0+qt}")
        for qt in range(4):
            B(f"v_mul_f32 v{PB+2*qt+1}, v{G0+qt}, v{G0+qt}")
        for qt in range(4):
            B(f"v_mul_f32 v{PA+2*qt+1}, {hex(f2u(LOG2E * 192 ** -0.5))}, v{TT+qt}")
            B(f"v_mul_f32 v{PB+2*qt}, {hex(f2u(-LOG2E))}, v{TT+qt}")
        return [l.strip() for l in B.L]

    def superstep(st, mode):
        M = []
        blk = []
        xf = lambda k2, qt: ar(XF+st*32+(k2*4+qt)*4, 4)
        stat_blocks = [0, 1, 3, 4, 6, 7, 9, 10] if mode != "last" else [0, 0, 1, 1, 3, 3, 4, 4]
        for t in range(18):
            blk.append(len(M))
            for qt in range(4):
                acc = vr(qacc(t, qt), 4) if t < 12 else ar(GA + ((t-12)*4+qt)*4, 4)
                for k2 in range(2):
                    M.append((mfma(acc, ar(WF+(t % 3)*8+k2*4, 4), xf(k2, qt), acc), [f"w{t}"]))
            if t % 3 == 2 and t < 15:
                p = t // 3
                for k2 in range(2):
                    M.append((mfma(ar(CAC+4*p, 4), ar(CF+k2*4, 4), ar(ONE, 4), ar(CAC+4*p, 4)), [f"c{p}"]))
            for i, sb_ in enumerate(stat_blocks):
                if sb_ == t:
                    k2, qt = i >> 2, i & 3
                    M.append((mfma(ar(SUM+4*qt, 4), ar(ONE, 4), xf(k2, qt), ar(SUM+4*qt, 4)), []))
                    M.append((mfma(ar(GRM+4*qt, 4), xf(k2, qt), xf(k2, qt), ar(GRM+4*qt, 4)), []))
        NG = len(M)
        blk.append(NG)
        front = [None]*NG
        back = [[] for _ in range(NG)]
        resv = set(b - 1 for b in blk[1:])

        def room(g):
            return 2 - (front[g] is not None) - len(back[g]) - (g in resv)

        def put_front(g, e):
            while front[g] is not None or room(g) < 1:
                g += 1
            front[g] = e
            return g

        def put_back(g, ss):
            while room(g) < len(ss):
                g += 1
            back[g] += ss
            return g
        for t in range(18):
            if mode == "last" and t >= 16:
                continue
            for k, s_ in enumerate(w_reads((t+2) % 18)):
                front[blk[t]+k] = ("l", s_, f"w{(t+2) % 18}" + ("n" if t >= 16 else ""), None)
        for p in range(5):
            for k, s_ in enumerate(c_reads(p)):
                front[blk[3*p]+4+k] = ("l", s_, f"c{p}", None)
        if mode != "last":
            for qt in range(4):
                g = blk[5+2*qt] + 4
                for k2 in range(2):
                    g = put_front(g, ("l", x_read(st ^ 1, k2, qt), f"x{qt}", ("vm", f"X{qt}")))
        dl = {"loop": w_dma(), "pre": kv_dma("K", 0) + kv_dma("K", 1) + kv_dma("K", 2),
              "last": kv_dma("V", 0) + kv_dma("K", 3) + kv_dma("V", 1) + kv_dma("V", 2)}[mode]
        g = 0
        last_d = -10
        nd = 0
        for e in dl:
            if e[0] == "d":
                g = put_front(max(g + 1, last_d + 7), ("d", e[1], f"W{nd}", None))
                last_d = g
                nd += 1
            else:
                g = put_back(g, list(e[1:]))
        if mode == "loop":
            assert g < blk[9], (g, blk)
            for n in range(8):
                g = max(g, blk[8 + 2*(n >> 1)])
                for e in x_dma(n):
                    if e[0] == "d":
                        g = put_front(max(g + 1, last_d + 5), ("d", e[1], f"X{n>>1}", ("lg", f"x{n>>1}")))
                        last_d = g
                    else:
                        g = put_back(g, list(e[1:]))
            for e in xadv:
                g = put_back(g, list(e[1:]))
        gb = blk[16] - 1
        rest = []
        if mode != "last":
            g = put_back(blk[12] + 1, [f"s_add_u32 s33, s33, {SLOT}"])
            g = put_back(g + 1, [f"s_cmp_eq_u32 s33, {3*SLOT}", "s_cselect_b32 s59, s56, s55"])
            g = put_back(g + 1, [f"s_cmp_eq_u32 s33, {3*SLOT}", "s_cselect_b32 s33, 0, s33"])
            assert g < gb
        else:
            for p in range(5):
                front[blk[16]+p] = ("l", f"ds_write_b128 v{56 if p < 4 else 57}, {ar(CAC+4*p, 4)} offset:{256*p}", "cw", None)
            g = blk[6]
            ops = stats_ops()
            while ops and g < NG:
                cost = 2 if ops[0].startswith(("v_sqrt", "v_rcp")) else 1
                if room(g) >= cost and not any(b_.startswith(("v_sqrt", "v_rcp")) for b_ in back[g]):
                    back[g].append(ops.pop(0))
                else:
                    g += 1
            rest = ops
        LG = Track("lgkm", ["w0"]*4 + ["w1"]*4)
        VM = Track("vm", [f"W{i}" for i in range(9)] + [f"X{i>>1}" for i in range(8)])
        for g in range(NG):
            txt, needs = M[g]
            if needs:
                n_ = LG.need(needs)
                if n_ is not None:
                    A(f"s_waitcnt lgkmcnt({n_})")
            A(txt)
            if front[g] is not None:
                kind, s_, tag, nd_ = front[g]
                if nd_:
                    n_ = (VM if nd_[0] == "vm" else LG).need([nd_[1]])
                    if n_ is not None:
                        A(f"s_waitcnt {'vmcnt' if nd_[0] == 'vm' else 'lgkmcnt'}({n_})")
                A(s_)
                (LG if kind == "l" else VM).issue(tag)
            for s_ in back[g]:
                A(s_)
            if g == gb and mode != "last":
                assert VM.done > 8
                A("s_waitcnt lgkmcnt(0)")
                LG.drain()
                A("s_barrier")
                for r_ in (CQ, CQ+1, CG, CC, CC+1, CC+2):
                    A(f"v_add_u32 v{r_}, s59, v{r_}")
        if mode == "loop":
            assert [t for t in VM.q[17:]] == [f"W{i}" for i in range(9)] + [f"X{i>>1}" for i in range(8)], VM.q
        for s_ in rest:
            A(s_)

    A("s_mov_b32 s54, 4")
    A("s_mov_b32 s33, 0")
    A(f"s_mov_b32 s55, {SLOT}")
    A(f"s_mov_b32 s56, {-2*SLOT & 0xffffffff}")
    A.raw(".p2align 5")
    A.label("K1_GEMM")
    superstep(0, "loop")
    superstep(1, "loop")
    A("s_sub_u32 s54, s54, 1")
    A("s_cmp_lg_u32 s54, 0")
    A("s_cbranch_scc1 K1_GEMM")
    superstep(0, "pre")
    superstep(1, "last")
    ST()
    A("s_mov_b32 s55, 0")
    A(f"s_mov_b32 s30, {3*12288}")
    A("s_cmp_eq_u32 s28, 0")
    A("s_cselect_b32 s59, 5, 1")
    A("s_lshl_b32 s33, s32, 2")
    A("s_add_u32 s33, s33, s28")
    A(f"s_mul_i32 s34, s33, {4*RT_STRIDE}")
    srd(A, 24, 52, off_sgpr=34, off_imm=OF_OFF, size=4*RT_STRIDE)
    A("s_bfe_u32 s33, s2, 0x20003")
    A("s_mul_i32 s33, s33, 10240")
    A(f"s_sub_u32 s34, {240*40960}, s33")
    srd(A, 8, 52, off_sgpr=33, off_imm=WP_OFF, size_sgpr=34)
    A("s_and_b32 s33, s2, 1")
    A("s_lshl_b32 s33, s33, 5")
    A("s_lshr_b32 s34, s2, 3")
    A("s_add_u32 s33, s33, s34")
    A("s_mul_i32 s34, s33, 245760")
    srd(A, 4, 52, off_sgpr=34, off_imm=XCH_OFF, size=245760)
    A("s_lshr_b32 s33, s33, 2")
    A(f"s_mul_i32 s33, s33, {8*RT_STRIDE}")
    srd(A, 12, 52, off_sgpr=33, off_imm=OF_OFF, size=8*RT_STRIDE)
    A("s_mov_b32 s56, 0")
    A("s_mov_b32 s57, 0")
    A("s_waitcnt lgkmcnt(0)")
    A("s_barrier")
    CT = 48
    for i in range(4):
        A(f"ds_read_b128 v[{CT+4*i}:{CT+4*i+3}], v36 offset:{64*(11-(i^1))}")
    A(f"s_mov_b32 s34, {16*1280}")
    npk = 0
    for u in range(5, -1, -1):
        cb_ = CT + 8*((5-u) & 1)
        A("s_waitcnt lgkmcnt(2)" if u > 0 else "s_waitcnt lgkmcnt(0)")
        for qt in range(3, -1, -1):
            B = QA + (u*4+qt)*8
            pa = vr(PA+2*qt, 2)
            if npk < 10:
                A(f"s_add_u32 m0, s58, {1024*npk}")
            for p in range(4):
                A(f"v_pk_fma_f32 {vr(B+2*p, 2)}, {pa}, {vr(cb_+2*p, 2)}, {vr(B+2*p, 2)} op_sel_hi:[0,1,1]")
            for p in range(4):
                A(f"v_pk_mul_f32 {vr(B+2*p, 2)}, {pa}, {vr(B+2*p, 2)} op_sel:[1,0]")
            for p in range(3, -1, -1):
                A(f"v_cvt_pk_bf16_f32 v{QF+(u*4+qt)*4+p}, v{B+2*p}, v{B+2*p+1}")
            if npk < 10:
                A(f"buffer_load_dwordx4 v{PD+npk%5}, s[40:43], {'0' if npk < 5 else 's34'} offen{NT} lds")
                npk += 1
        if u >= 2:
            for i in range(2):
                A(f"ds_read_b128 v[{cb_+4*i}:{cb_+4*i+3}], v36 offset:{64*(2*(u-2)+i)}")
    HC = 64
    SO = 24
    for t in range(6):
        A(f"ds_read_b128 v[{HC+4*t}:{HC+4*t+3}], v36 offset:{64*(12+t)}")
    A(f"v_lshlrev_b32 v{PS}, 4, v0")
    A(f"s_mul_i32 s33, s28, {2*RT_STRIDE}")
    A(f"v_add_u32 v{PV}, s33, v{PS}")
    A(f"v_add_u32 v{PV+1}, {RT_STRIDE-2048}, v{PV}")
    A("s_lshr_b32 s33, s28, 1")
    A("s_mul_i32 s33, s33, 40960")
    A("s_and_b32 s35, s28, 1")
    A("s_mul_i32 s35, s35, 5120")
    A("s_add_u32 s33, s33, s35")
    A(f"v_add_u32 v{PV+2}, s33, v{PS}")
    A(f"v_add_u32 v{PV+3}, 4096, v{PV+2}")
    A("s_bfe_u32 s33, s2, 0x20001")
    A("s_mul_i32 s40, s33, 12")
    A("s_add_u32 s40, s40, 192")
    A("s_mul_i32 s43, s33, 48")
    A("s_lshl_b32 s41, s28, 12")
    A("s_mul_i32 s42, s28, 5120")
    A("s_add_u32 s42, s42, 16384")
    A(f"v_lshlrev_b32 v{SO}, 3, v0")
    A("s_mul_i32 s35, s31, 3")
    A("s_add_u32 s36, s35, 1")
    A("s_lshr_b32 s36, s36, 1")
    A("s_add_u32 s36, s36, 192")
    A("s_lshl_b32 s37, s36, 10")
    A("s_lshr_b32 s35, s35, 1")
    A("s_add_u32 s35, s35, 193")
    A("s_and_b32 s36, s31, 1")
    A("s_sub_u32 s35, s35, s36")
    A("s_lshl_b32 s35, s35, 10")
    A("s_lshl_b32 s36, s36, 9")
    A("s_add_u32 s38, s35, s36")
    A("s_waitcnt lgkmcnt(0)")
    cnt = 0
    for qt in range(4):
        HP = 148 + 6*(qt & 1)
        for t in range(3):
            G = 96 + (cnt % 4)*12
            U, T0 = G + 4, G + 8
            cnt += 1
            pa, pb = vr(PA+2*qt, 2), vr(PB+2*qt, 2)
            for r in range(4):
                A(f"v_accvgpr_read_b32 v{G+r}, a{GA+(t*4+qt)*4+r}")
            for r in range(4):
                A(f"v_accvgpr_read_b32 v{U+r}, a{GA+((t+3)*4+qt)*4+r}")
            for p in range(2):
                A(f"v_pk_fma_f32 {vr(G+2*p, 2)}, {pa}, {vr(HC+4*t+2*p, 2)}, {vr(G+2*p, 2)} op_sel_hi:[0,1,1]")
            for p in range(2):
                A(f"v_pk_fma_f32 {vr(U+2*p, 2)}, {pa}, {vr(HC+4*(t+3)+2*p, 2)}, {vr(U+2*p, 2)} op_sel_hi:[0,1,1]")
            for p in range(2):
                A(f"v_pk_mul_f32 {vr(T0+2*p, 2)}, {pb}, {vr(G+2*p, 2)} op_sel_hi:[0,1]")
            for r in range(4):
                A(f"v_exp_f32 v{T0+r}, v{T0+r}")
            for p in range(2):
                A(f"v_pk_mul_f32 {vr(G+2*p, 2)}, {vr(G+2*p, 2)}, {vr(U+2*p, 2)}")
            for p in range(2):
                A(f"v_pk_fma_f32 {vr(T0+2*p, 2)}, {vr(T0+2*p, 2)}, {pb}, {pb} op_sel:[0,1,1]")
            for r in range(4):
                A(f"v_rcp_f32 v{T0+r}, v{T0+r}")
            A("s_nop 0")
            for p in range(2):
                A(f"v_pk_mul_f32 {vr(G+2*p, 2)}, {vr(G+2*p, 2)}, {vr(T0+2*p, 2)}")
            for p in range(2):
                A(f"v_cvt_pk_bf16_f32 v{HP+2*t+p}, v{G+2*p}, v{G+2*p+1}")
            if t == 1:
                A(f"buffer_store_dwordx4 {vr(HP, 4)}, v{PS}, s[24:27], s37 offen sc1")
                A(f"s_add_u32 s37, s37, {RT_STRIDE}")
            if t == 2:
                A(f"buffer_store_dwordx2 {vr(HP+4, 2)}, v{SO}, s[24:27], s38 offen sc1")
                A(f"s_add_u32 s38, s38, {RT_STRIDE}")
    ST()
    for i in range(4):
        A(f"v_mov_b32 v{18+i}, -1")
    A("v_and_b32 v25, 7, v0")
    A("v_lshlrev_b32 v25, 2, v25")
    A("v_mov_b32 v23, 0")
    for i in range(16):
        A(f"v_mov_b32 v{NM+i}, 0")
    A("s_waitcnt vmcnt(18)")
    A.label("K1_ATT")
    for i in range(8):
        A(f"v_mov_b32 v{LS+i}, 0")
    A("s_barrier")
    for kt in range(2):
        for u in range(6):
            A(k_read(0, kt, u))
    A("s_waitcnt lgkmcnt(6)")
    for kt in range(2):
        if kt == 1:
            A("s_waitcnt lgkmcnt(0)")
        for qt in range(4):
            d = vr(sreg(0, qt, kt), 4)
            for u in range(6):
                A(mfma(d, ar(KF+kt*24+u*4, 4), qf(qt, u), vr(NM+qt*4, 4) if u == 0 else d))
    A("s_barrier")
    for u in range(6):
        A(k_read(1, 0, u))
    A("s_nop 0")
    A("s_cmp_lg_u32 s55, 0")
    A("s_cbranch_scc1 K1_SKIPMAX")
    for qt in range(4):
        b = sreg(0, qt, 0)
        A(f"v_max3_f32 v{30+qt}, v{b}, v{b+1}, v{b+2}")
        A(f"v_max3_f32 v{30+qt}, v{30+qt}, v{b+3}, v{b+4}")
        A(f"v_max3_f32 v{30+qt}, v{30+qt}, v{b+5}, v{b+6}")
        A(f"v_max_f32 v{30+qt}, v{30+qt}, v{b+7}")
    xlane_reduce(A, "v_max_f32", [30, 31, 32, 33], 14)
    for qt in range(4):
        b = sreg(0, qt, 0)
        for r in range(4):
            A(f"v_sub_f32 v{NM+qt*4+r}, 0, v{30+qt}")
        for e in range(8):
            A(f"v_sub_f32 v{b+e}, v{b+e}, v{30+qt}")
    A.label("K1_SKIPMAX")
    E, S = softmax_ops(0, (0, 1))
    for e in E:
        A(e)
    A("s_nop 0")
    for _, s in S:
        A(s)
    ST()
    A("s_mov_b32 s54, 15")
    A("s_waitcnt lgkmcnt(0)")
    gen_stage(A, 0, first=True)
    A("s_branch K1_LOOP1")
    A.raw(".p2align 6")
    A.label("K1_LOOP")
    gen_stage(A, 0, extra=[(90, "s_sub_u32 s54, s54, 1")])
    A.label("K1_LOOP1")
    gen_stage(A, 1)
    gen_stage(A, 2, extra=[(93, "s_cmp_eq_u32 s54, 0")])
    A("s_cbranch_scc1 K1_TAIL")
    gen_stage(A, 3, extra=[(93, "s_cmp_lg_u32 s54, s59")])
    A("s_cbranch_scc1 K1_LOOP")
    A("s_cmp_eq_u32 s54, 1")
    A("s_cbranch_scc0 K1_REPORT")
    A("global_load_dword v23, v25, s[64:65] sc1")
    A("s_branch K1_LOOP")
    A.label("K1_REPORT")
    A("s_mov_b32 s59, 1")
    A("s_and_b32 s33, s2, 7")
    A("s_lshl_b32 s33, s33, 2")
    A("v_mov_b32 v14, 1")
    A("v_mov_b32 v16, s33")
    A("s_mov_b64 exec, 1")
    A("global_atomic_add v16, v14, s[64:65] sc1")
    A("s_mov_b64 exec, -1")
    A("s_branch K1_LOOP")
    A.label("K1_TAIL")
    gen_tail(A, 3)
    ST()
    for qt in range(4):
        A(f"v_add_f32 v{30+2*qt}, v{LS+2*qt}, v{LS+2*qt+1}")
    xlane_reduce(A, "v_add_f32", [30, 32, 34, 36], 14)
    A(f"v_mov_b32 v14, {hex(f2u(2.0**30))}")
    A("v_cmp_nlt_f32 vcc, v30, v14")
    A("s_mov_b64 s[36:37], vcc")
    for qt in range(1, 4):
        A(f"v_cmp_nlt_f32 vcc, v{30+2*qt}, v14")
        A("s_or_b64 s[36:37], s[36:37], vcc")
    A("s_cmp_lg_u64 s[36:37], 0")
    A("s_cselect_b32 s34, 1, 0")
    A("v_mov_b32 v14, s34")
    A("v_mov_b32 v15, s28")
    A("v_lshlrev_b32 v15, 2, v15")
    A(f"v_add_u32 v15, {FREG}, v15")
    A("ds_write_b32 v15, v14")
    A(f"v_mov_b32 v15, {FREG}")
    A("s_waitcnt lgkmcnt(0)")
    A("s_barrier")
    A("s_cmp_lg_u32 s55, 0")
    A("s_cbranch_scc1 K1_EPI")
    A("ds_read_b128 v[16:19], v15")
    A("s_waitcnt lgkmcnt(0)")
    A("v_or_b32 v16, v16, v17")
    A("v_or_b32 v18, v18, v19")
    A("v_or_b32 v16, v16, v18")
    A("s_nop 0")
    A("v_readfirstlane_b32 s34, v16")
    A("s_cmp_eq_u32 s34, 0" if not cfg.get("abl", 0) else "s_cmp_eq_u32 s34, s34")
    A("s_cbranch_scc1 K1_EPI")
    A("s_mov_b32 s55, 1")
    A("v_and_b32 v34, 15, v0")
    A("v_mul_u32_u24 v34, 384, v34")
    A("v_lshrrev_b32 v35, 4, v0")
    A("v_lshl_add_u32 v34, v35, 4, v34")
    for qt in range(4):
        A(f"v_mov_b32 v{30+qt}, 0xff800000")
    A("s_mov_b32 s34, 0")
    A.label("K1_MAXLOOP")
    for u in range(6):
        A(f"buffer_load_dwordx4 {ar(KF+u*4, 4)}, v34, s[16:19], s34 offen offset:{64*u}")
    A("s_waitcnt vmcnt(0)")
    for qt in range(4):
        d = vr(sreg(0, qt, 0), 4)
        for u in range(6):
            A(mfma(d, ar(KF+u*4, 4), qf(qt, u), "0" if u == 0 else d))
    A("s_nop 15")
    for qt in range(4):
        b = sreg(0, qt, 0)
        A(f"v_max3_f32 v{30+qt}, v{30+qt}, v{b}, v{b+1}")
        A(f"v_max3_f32 v{30+qt}, v{30+qt}, v{b+2}, v{b+3}")
    A("s_add_u32 s34, s34, 6144")
    A("s_cmp_lt_u32 s34, 786432")
    A("s_cbranch_scc1 K1_MAXLOOP")
    xlane_reduce(A, "v_max_f32", [30, 31, 32, 33], 34)
    for qt in range(4):
        for r in range(4):
            A(f"v_sub_f32 v{NM+qt*4+r}, 0, v{30+qt}")
    A("s_mov_b32 s46, 0")
    A("s_mov_b32 s50, 0")
    A("v_mov_b32 v35, 0")
    A("s_barrier")
    for kind, i in [("K", 0), ("K", 1), ("V", 0), ("K", 2), ("V", 1), ("K", 3), ("V", 2)]:
        emit_plain(A, kv_dma(kind, i))
    A(f"s_mov_b32 s30, {3*12288}")
    A("s_waitcnt vmcnt(0)")
    A("s_branch K1_ATT")
    A.label("K1_EPI")
    gen_proj(A, cfg, ST)
    ST.dump(28)
    A.label("K1_END")
    A("s_endpgm")
    kernel_desc(A, name, 512, 102 if ST.on else 70, 256)


PSLOT = 36864


def p_fill_b(ffn=True):
    L = [("s", "s_lshl_b32 s37, s36, 10"), ("s", "s_add_u32 m0, s39, s41")]
    for i in range(4):
        L.append(("d", f"buffer_load_dwordx4 v{PV+(i>>1)}, s[12:15], s37 offen offset:{1024*i} sc1 lds"))
    return L


def p_fill_a():
    L = [("s", "s_mul_i32 s38, s36, 40960"), ("s", "s_add_u32 m0, s39, s42")]
    for i in range(4):
        L.append(("d", f"buffer_load_dwordx4 v{PV+2}, s[8:11], s38 offen offset:{1024*i} sc1 lds"))
    L.append(("s", "s_add_u32 m0, m0, 4096"))
    L.append(("d", f"buffer_load_dwordx4 v{PV+3}, s[8:11], s38 offen sc1 lds"))
    return L


def p_at(m):
    return [("s", f"s_add_u32 s36, s40, {2*m}" if m < 6 else f"s_add_u32 s36, s43, {2*(m-6)}"),
            ("s", f"s_mov_b32 s39, {(m % 4)*PSLOT}")]


def tagd(L, tag):
    return [e if e[0] != "d" else (e[0], e[1], tag) for e in L]


PV = 26


def gen_proj(A, cfg, ST):
    FA, SA, OS, TM = 32, 112, 160, 192
    RB = 4
    L16, L8 = 16, 17
    VM = Track("vm", ["G0"]*9 + ["G1"]*9)

    def send(P, t, kind, tag):
        L = [("s", f"s_add_u32 s34, s{44+t}, {kind*7680 + (t-1)*2560}")]
        L.append(("d", f"buffer_store_dwordx4 {vr(P, 4)}, v{L16}, s[4:7], s34 offen sc1", tag))
        L.append(("d", f"buffer_store_dwordx4 {vr(P+4, 4)}, v{L16}, s[4:7], s34 offen offset:1024 sc1", tag))
        L.append(("d", f"buffer_store_dwordx2 {vr(P+8, 2)}, v{L8}, s[4:7], s34 offen offset:2048 sc1", tag))
        return L

    RC = 18
    for qt in range(4):
        A(f"v_rcp_f32 v{RC+2*qt}, v{30+2*qt}")
    A(f"v_lshlrev_b32 v{L16}, 4, v0")
    A(f"v_lshlrev_b32 v{L8}, 3, v0")
    A("s_mul_i32 s33, s31, 6144")
    for qt in range(4):
        A(f"s_add_u32 s{16+2*qt}, s33, {qt*RT_STRIDE}")
        A(f"s_add_u32 s{17+2*qt}, s33, {qt*RT_STRIDE+4096}")
    stores = []
    for qt in range(4):
        for u in range(6):
            so, im = (16+2*qt, 1024*u) if u < 4 else (17+2*qt, 1024*(u-4))
            stores.append(("d", f"buffer_store_dwordx4 {vr(OS+(qt*6+u)*4, 4)}, v{L16}, s[24:27], s{so} offen offset:{im}" + ["", " nt", " sc0", " sc1"][cfg.get("ofl", 3)], "O"))
    g2 = tagd(p_at(2) + p_fill_b() + p_fill_a(), "G2")
    plan = {k: "g2" for k in range(9)}
    ost = cfg.get("ost", 24)
    g3e = cfg.get("g3e", 0)
    g3 = tagd(p_at(3) + p_fill_b() + p_fill_a(), "G3") if g3e else []
    if g3e:
        g2 = g2 + g3
    cnt = 0
    for qt in range(4):
        for u in range(6):
            T0 = 48 + (cnt % 4)*8
            if plan.get(cnt) == "g2":
                while g2[0][0] != "d":
                    A(g2.pop(0)[1])
            for e in range(8):
                A(f"v_accvgpr_read_b32 v{T0+e}, a{oacc(2*u+(e>>2), qt)+(e&3)}")
            if cnt in plan:
                e = g2.pop(0)
                A(e[1])
                VM.issue(e[2])
            for p in range(4):
                A(f"v_pk_mul_f32 {vr(T0+2*p, 2)}, {vr(RC+2*qt, 2)}, {vr(T0+2*p, 2)} op_sel_hi:[0,1]")
            for p in range(4):
                A(f"v_cvt_pk_bf16_f32 v{OS+cnt*4+p}, v{T0+2*p}, v{T0+2*p+1}")
            if g3e and cnt in plan:
                while g2[0][0] != "d":
                    A(g2.pop(0)[1])
                    if g2[0][0] == "d":
                        A("s_nop 0")
                e = g2.pop(0)
                A(e[1])
                VM.issue(e[2])
            elif g3e:
                for _ in range(((cnt - 8) * ost) // 15 - ((cnt - 9) * ost) // 15):
                    e = stores.pop(0)
                    A(e[1])
                    VM.issue(e[2])
            elif ((cnt + 1) * ost) // 24 > (cnt * ost) // 24:
                e = stores.pop(0)
                A(e[1])
                VM.issue(e[2])
            cnt += 1
    assert not g2
    A("s_bfe_u32 s29, s2, 0x20001")
    A("s_and_b32 s30, s2, 1")
    A("s_lshl_b32 s30, s30, 3")
    A("s_lshr_b32 s33, s2, 5")
    A("s_add_u32 s30, s30, s33")
    A("s_lshr_b32 s33, s28, 1")
    A("s_lshl_b32 s33, s33, 2")
    A("s_mul_i32 s35, s28, 15360")
    for t in range(4):
        A(f"s_add_u32 s34, s29, {t}")
        A("s_and_b32 s34, s34, 3")
        A(f"s_mul_i32 s{44+t}, s34, 61440")
        A(f"s_add_u32 s{44+t}, s{44+t}, s35")
        A("s_add_u32 s34, s34, s33")
        A("s_lshl_b32 s34, s34, 11")
        A(f"v_add_u32 v{RB+t}, s34, v{L16}")
        A(f"v_add_u32 v{RB+5+t}, s34, v{L8}")
    A("s_and_b32 s34, s28, 1")
    A("s_mul_i32 s34, s34, 5120")
    A("s_add_u32 s34, s34, 16384")
    A(f"v_add_u32 v{RB+4}, s34, v{L16}")
    A("s_lshl_b32 s34, s30, 3")
    A("s_add_u32 s34, s34, s33")
    A("s_add_u32 s34, s34, s29")
    A("s_lshl_b32 s34, s34, 4")
    A("v_and_b32 v3, 15, v0")
    A("v_add_u32 v3, s34, v3")
    A("v_mul_u32_u24 v3, 1280, v3")
    A("v_lshrrev_b32 v2, 4, v0")
    A("v_lshl_add_u32 v3, v2, 3, v3")
    A("s_bfe_u32 s34, s2, 0x20003")
    A("s_lshl_b32 s34, s34, 1")
    A("s_and_b32 s35, s28, 1")
    A("s_add_u32 s34, s34, s35")
    A("s_mul_i32 s34, s34, 160")
    A("v_add_u32 v3, s34, v3")
    A("s_lshl_b32 s34, s30, 1")
    A("s_lshr_b32 s35, s28, 1")
    A("s_add_u32 s34, s34, s35")
    A("s_lshl_b32 s34, s34, 7")
    A("s_lshl_b32 s35, s29, 5")
    A("s_add_u32 s34, s34, s35")
    A(f"s_add_u32 s34, s34, {FLG_OFF}")
    A("v_and_b32 v2, 7, v0")
    A("v_lshl_add_u32 v2, v2, 2, s34")
    A(f"s_mov_b32 s48, {PSLOT}")
    A(f"s_mov_b32 s49, {-3*PSLOT & 0xffffffff}")
    ST()

    def reads(n, k2):
        L = []
        split = n is not None and n < 12 and n % 3 == 1
        order = [("A", 0), ("B", 0), ("B", 1), ("B", 2), ("B", 3), ("A", 1), ("A", 2), ("A", 3), ("A", 4)]
        for kind, i in order:
            if kind == "B" and split:
                L.append(f"ds_read2_b64 {ar(36*k2+4*i, 4)}, v{RB+5+i} offset0:{128*k2} offset1:{128*k2+64}")
            elif kind == "B":
                L.append(f"ds_read_b128 {ar(36*k2+4*i, 4)}, v{RB+i} offset:{1024*k2}")
            else:
                L.append(f"ds_read_b128 {ar(36*k2+16+4*i, 4)}, v{RB+4} offset:{10240*k2+1024*i}")
        return L

    def half(k2, acc0, gaps, zero=False):
        for g in range(20):
            c, t = divmod(g, 4)
            acc = vr(acc0 + 20*t + 4*c, 4)
            A(mfma(acc, ar(36*k2+16+4*c, 4), ar(36*k2+4*t, 4), "0" if zero else acc))
            for e in gaps[g]:
                if callable(e):
                    e()
                elif isinstance(e, tuple):
                    A(e[0])
                    VM.issue(e[1])
                else:
                    A(e)

    RP = [0, 1, 3, 4, 5, 7, 8, 9, 11]

    def place(gaps, L, pos):
        pos = list(pos)
        pend = []
        for e in L:
            if e[0] != "d":
                pend.append(e[1])
                continue
            g = pos.pop(0)
            for k, s_ in enumerate(pend):
                gaps[max(0, g - 1 - (len(pend) - 1 - k) // 2)].append(s_)
            pend = []
            gaps[g].insert(0, (e[1], e[2]))
        assert not pend

    def spread(n, lo=2, hi=38):
        cand = [g for g in range(lo, hi + 1) if (g % 20) not in RP]
        assert n <= len(cand), (n, len(cand))
        return [cand[(k*len(cand))//n] for k in range(n)]

    def base_adv(gaps, m, wide):
        d = PSLOT if (m + 1) % 4 else -3*PSLOT
        regs = list(range(RB, RB+5)) + (list(range(RB+5, RB+9)) if wide else [])
        g = len(gaps) - 8
        for i, r in enumerate(regs):
            gaps[g + (i*7)//len(regs)].append(f"v_add_u32 v{r}, s{48 if d > 0 else 49}, v{r}")

    def set_flag(lane, tag):
        def fn():
            n_ = VM.need([tag])
            if n_ is not None:
                A(f"s_waitcnt vmcnt({n_})")
            A("v_mov_b32 v14, 1")
            A(f"s_mov_b64 exec, {1 << lane}")
            A("global_store_dword v1, v14, s[52:53] sc1")
            A("s_mov_b64 exec, -1")
            VM.issue("flag")
        return fn

    def check_flags(label, vaddr, flush=None):
        if flush is None:
            n_ = VM.need(["poll" + label])
            if n_ is not None:
                A(f"s_waitcnt vmcnt({n_})")
        A("v_cmp_ne_u32 vcc, 0, v15")
        A("s_cmp_eq_u64 vcc, exec")
        A(f"s_cbranch_scc1 {label}_OK")
        if flush is not None:
            for e in flush:
                A(e[1])
            A("s_mov_b32 s26, 0")
            A("v_mov_b32 v14, 1")
            A("s_waitcnt vmcnt(0)")
            A("s_mov_b64 exec, 1")
            A("global_store_dword v1, v14, s[52:53] sc1")
        poll(A, label, vaddr, 15, "s[52:53]", "-1", "0")

    def sbody(m, ops, extra=None):
        gaps = [[] for _ in range(40)]
        for k, s_ in enumerate(reads(2*m+2, 0)):
            gaps[RP[k]].append(s_)
        for k, s_ in enumerate(reads(2*m+3, 1)):
            gaps[20+RP[k]].append(s_)
        nd = sum(e[0] == "d" for e in ops)
        place(gaps, ops, spread(nd) if nd else [])
        gaps[19].append("s_waitcnt lgkmcnt(0)")
        base_adv(gaps, m + 1, m + 1 < 5)
        for g, e in (extra or []):
            gaps[g].append(e)
        n_ = VM.need([f"G{m+1}"])
        A("s_waitcnt lgkmcnt(0)" + (f" vmcnt({n_})" if n_ is not None else ""))
        A("s_barrier")
        half(1, FA if 2*m+1 < 12 else SA, gaps[:20])
        half(0, FA if 2*m+2 < 12 else SA, gaps[20:], zero=(2*m+2 == 12))
        if m < 12:
            ST(2)

    def full(m):
        return tagd(p_at(m) + p_fill_b(m < 6) + p_fill_a(), f"G{m}")

    def only_a(m):
        return tagd(p_at(m) + p_fill_a(), f"G{m}")

    def only_b(m):
        return tagd(p_at(m) + p_fill_b(m < 6), f"G{m}")

    def mix(*lists):
        pos = []
        for gi, L in enumerate(lists):
            g, cur = [], []
            for e in L:
                cur.append(e)
                if e[0] == "d":
                    g.append(cur)
                    cur = []
            for k, e in enumerate(g):
                pos.append(((k + 0.5) / len(g), gi, e))
        pos.sort(key=lambda x: (x[0], x[1]))
        return [e for _, _, grp in pos for e in grp]

    ST(2)
    n_ = VM.need(["G0"])
    A(f"s_waitcnt vmcnt({n_})")
    A("s_barrier")
    for s_ in reads(0, 0):
        A(s_)
    A("s_waitcnt lgkmcnt(0)")
    gaps = [[] for _ in range(20)]
    for k, s_ in enumerate(reads(1, 1)):
        gaps[RP[k]].append(s_)
    fl, pl = cfg.get("fl", -1), cfg.get("pl", 2)
    nrest = len(stores)
    take = lambda n: [stores.pop(0) for _ in range(min(n, len(stores)))]
    ops = mix(only_a(3) if not g3e else [], take((nrest + 4) // 5 if fl >= 1 else (nrest + 2) // 3 if fl == 0 else nrest))
    if ops:
        place(gaps, ops, spread(sum(e[0] == "d" for e in ops), 2, 18))
    if fl == -1:
        gaps[19].append(set_flag(0, "O"))
    base_adv(gaps, 0, True)
    half(0, FA, gaps, zero=True)
    pend_b = []
    for m in range(5):
        ops = (only_b(3) if m == 0 and not g3e else [])
        if m + 4 < 6 or m > pl:
            ops += pend_b + full(m + 4)
            pend_b = []
        else:
            ops += only_a(m + 4)
            pend_b += only_b(m + 4)
        st_ = take((len(stores) + 1) // 2 if (m == 0 and fl >= 1) else len(stores))
        ex_ = []
        if m == fl:
            ex_.append((39, set_flag(0, "O")))
        if m == pl:
            ex_.append((cfg.get("pollat", 6), ("global_load_dword v15, v2, s[52:53] sc1", "pollK2_PO")))
        sbody(m, (st_ + ops if cfg.get("stfirst") else mix(ops, st_)) if st_ else ops, extra=ex_)
        if m == pl:
            ST()
            check_flags("K2_PO", 2)
            ST()
    assert not pend_b and not stores and fl < pl
    cv = []
    for t in range(1, 4):
        for q in range(10):
            cv.append(f"v_cvt_pk_bf16_f32 v{TM+10*(t-1)+q}, v{FA+20*t+2*q}, v{FA+20*t+2*q+1}")
    sbody(5, full(9), extra=[(28 + k // 2, c_) for k, c_ in enumerate(cv[:20])])
    fs = [send(TM+10*(t-1), t, 1, "F") for t in range(1, 4)]
    if cfg.get("nofsc"):
        fs = [[(e[0], e[1].replace(" sc1", "")) + tuple(e[2:]) for e in f] for f in fs]
    sbody(6, mix(full(10), fs[0]), extra=[(k, c_) for k, c_ in enumerate(cv[20:])])
    sbody(7, mix(full(11), fs[1]))
    sbody(8, mix(full(12), fs[2]))
    sbody(9, full(13))
    sbody(10, full(14))
    sbody(11, full(15), extra=[(0, set_flag(1, "F"))])
    ST()
    assert VM.q[-19:] == ["G14"]*9 + ["flag"] + ["G15"]*9, VM.q[-30:]
    A(f"s_add_u32 s36, s43, {2*(16-6)}")
    A(f"s_mov_b32 s39, {(16 % 4)*PSLOT}")
    A(f"s_mov_b32 s35, {(13 % 4)*PSLOT}")
    A("s_mov_b32 s54, 14")
    DP = [2, 6, 10, 14, 18, 22, 26, 30, 34]
    gaps = [[] for _ in range(40)]
    for k, s_ in enumerate(reads(None, 0)):
        gaps[RP[k]].append(s_)
    for k, s_ in enumerate(reads(None, 1)):
        gaps[20+RP[k]].append(s_)
    g, nd = 0, 0
    for e in p_fill_b(False) + p_fill_a():
        if e[0] == "d":
            g = DP[nd]
            nd += 1
            gaps[g].append(e[1])
        else:
            gaps[g] += list(e[1:])
            g += 1
    gaps[16] += ["s_add_u32 s36, s36, 2", f"s_add_u32 s39, s39, {PSLOT}"]
    gaps[17] += [f"s_cmp_eq_u32 s39, {4*PSLOT}", "s_cselect_b32 s39, 0, s39"]
    gaps[19] += ["s_waitcnt lgkmcnt(0)"]
    gaps[12] += [f"s_add_u32 s35, s35, {PSLOT}", "s_sub_u32 s54, s54, 1"]
    gaps[13] += [f"s_cmp_eq_u32 s35, {4*PSLOT}", "s_cselect_b32 s50, s49, s48"]
    gaps[32] += [f"s_cmp_eq_u32 s35, {4*PSLOT}", "s_cselect_b32 s35, 0, s35"]
    for i, g_ in enumerate((33, 33, 35, 35, 37)):
        gaps[g_].append(f"v_add_u32 v{RB+i}, s50, v{RB+i}")
    gaps[38] += ["s_cmp_lg_u32 s54, 0"]
    A.label("K2_LOOP")
    A("s_waitcnt vmcnt(18) lgkmcnt(0)")
    A("s_barrier")
    half(1, SA, gaps[:20])
    half(0, SA, gaps[20:])
    A("s_cbranch_scc1 K2_LOOP")
    VM.q, VM.done = ["G27"]*9 + ["G28"]*9 + ["G29"]*9, 0
    RF, RS, T, XR, XF_ = 52, 82, 192, 222, 232
    FS = FA

    def recv(P, off, tag):
        return [("s", f"s_add_u32 s34, s44, {off}"),
                ("d", f"buffer_load_dwordx4 {vr(P, 4)}, v{L16}, s[4:7], s34 offen sc1", tag),
                ("d", f"buffer_load_dwordx4 {vr(P+4, 4)}, v{L16}, s[4:7], s34 offen offset:1024 sc1", tag),
                ("d", f"buffer_load_dwordx2 {vr(P+8, 2)}, v{L8}, s[4:7], s34 offen offset:2048 sc1", tag)]
    B = Asm()
    B("s_lshr_b32 s33, s2, 3")
    B("s_and_b32 s34, s2, 1")
    B("s_lshl_b32 s34, s34, 5")
    B("s_add_u32 s33, s33, s34")
    B("s_lshl_b32 s33, s33, 2")
    B("s_add_u32 s33, s33, s28")
    B("s_lshl_b32 s33, s33, 4")
    B(f"s_add_u32 s33, s33, {FLG_OFF + 0x1000}")
    B("v_and_b32 v2, 3, v0")
    B("v_lshl_add_u32 v2, v2, 2, s33")
    srd(B, 20, 60, size=2621440)
    srd(B, 16, 62, size=2621440)
    ex_ = [(k, l.strip()) for k, l in enumerate(B.L)]
    ex_.append((19, ("global_load_dword v15, v2, s[52:53] sc1", "pollK2_PF")))
    for c in range(5):
        ex_.append((22 + 3*c, (f"buffer_load_dwordx2 v[{XR+2*c}:{XR+2*c+1}], v3, s[20:23], 0 offen offset:{32*c}", "x")))
    sbody(26, [], extra=ex_)
    sbody(27, [])
    check_flags("K2_PF", 2)
    sbody(28, sum((recv(RF+10*d, 7680+2560*d, f"RF{d}") for d in range(3)), []))
    A("s_waitcnt lgkmcnt(0)")
    gaps = [[] for _ in range(20)]
    place(gaps, sum((recv(RS+10*d, 2560*d, "RS") for d in range(3)), []), [2*k+1 for k in range(9)])
    half(1, SA, gaps)
    ST()
    A("s_nop 7")
    for t in range(1, 4):
        P = SA + 20*t
        for q in range(10):
            A(f"v_cvt_pk_bf16_f32 v{P+q}, v{P+2*q}, v{P+2*q+1}")
        for e in send(P, t, 0, "S"):
            A(e[1])
            if e[0] == "d":
                VM.issue(e[2])
    for d in range(3):
        A(f"s_waitcnt vmcnt({VM.need([f'RF{d}'])})")
        for q in range(10):
            A(f"v_lshlrev_b32 v{T+2*q}, 16, v{RF+10*d+q}")
            A(f"v_and_b32 v{T+2*q+1}, 0xffff0000, v{RF+10*d+q}")
        for q in range(10):
            A(f"v_pk_add_f32 {vr(FS+2*q, 2)}, {vr(FS+2*q, 2)}, {vr(T+2*q, 2)}")
    A(f"s_mov_b32 s33, {hex(f2u(-LOG2E))}")
    for q in range(10):
        A(f"v_cvt_pk_bf16_f32 v{T+q}, v{FS+2*q}, v{FS+2*q+1}")
    for q in range(10):
        A(f"v_lshlrev_b32 v{FS+2*q}, 16, v{T+q}")
        A(f"v_and_b32 v{FS+2*q+1}, 0xffff0000, v{T+q}")
    for q in range(20):
        A(f"v_mul_f32 v{T+q}, s33, v{FS+q}")
    for q in range(20):
        A(f"v_exp_f32 v{T+q}, v{T+q}")
    for q in range(20):
        A(f"v_add_f32 v{T+q}, 1.0, v{T+q}")
    for q in range(20):
        A(f"v_rcp_f32 v{T+q}, v{T+q}")
    for q in range(10):
        A(f"v_pk_mul_f32 {vr(FS+2*q, 2)}, {vr(FS+2*q, 2)}, {vr(T+2*q, 2)}")
    for q in range(10):
        A(f"v_cvt_pk_bf16_f32 v{T+q}, v{FS+2*q}, v{FS+2*q+1}")
    for q in range(10):
        A(f"v_lshlrev_b32 v{FS+2*q}, 16, v{T+q}")
        A(f"v_and_b32 v{FS+2*q+1}, 0xffff0000, v{T+q}")
        A(f"v_lshlrev_b32 v{XF_+2*q}, 16, v{XR+q}")
        A(f"v_and_b32 v{XF_+2*q+1}, 0xffff0000, v{XR+q}")
    ST()
    A(f"s_mov_b32 s35, {SPIN_MAX if not cfg.get('sabl') else 1}")
    A(f"s_waitcnt vmcnt({VM.need(['RS'])})")
    A.label("K2_PS")
    A(f"v_max3_u32 v12, v{RS}, v{RS+1}, v{RS+2}")
    A(f"v_max3_u32 v13, v{RS+3}, v{RS+4}, v{RS+5}")
    for q in range(6, 30, 4):
        A(f"v_max3_u32 v12, v12, v{RS+q}, v{RS+q+1}")
        A(f"v_max3_u32 v13, v13, v{RS+q+2}, v{RS+q+3}")
    A("v_max_u32 v12, v12, v13")
    A("v_cmp_eq_u32 vcc, -1, v12")
    A("s_cmp_eq_u64 vcc, 0")
    A("s_cbranch_scc1 K2_PS_OK")
    A("s_sub_u32 s35, s35, 1")
    A("s_cmp_eq_u32 s35, 0")
    A("s_cbranch_scc1 K2_PS_OK")
    for d in range(3):
        for e in recv(RS + 10*d, 2560*d, "RS"):
            A(e[1])
    A("s_waitcnt vmcnt(0)")
    A("s_branch K2_PS")
    A.label("K2_PS_OK")
    ST()
    for d in range(3):
        for q in range(10):
            A(f"v_lshlrev_b32 v{T+2*q}, 16, v{RS+10*d+q}")
            A(f"v_and_b32 v{T+2*q+1}, 0xffff0000, v{RS+10*d+q}")
        for q in range(10):
            A(f"v_pk_add_f32 {vr(SA+2*q, 2)}, {vr(SA+2*q, 2)}, {vr(T+2*q, 2)}")
    for q in range(10):
        A(f"v_cvt_pk_bf16_f32 v{T+q}, v{SA+2*q}, v{SA+2*q+1}")
    for q in range(10):
        A(f"v_lshlrev_b32 v{SA+2*q}, 16, v{T+q}")
        A(f"v_and_b32 v{SA+2*q+1}, 0xffff0000, v{T+q}")
    for q in range(10):
        A(f"v_pk_mul_f32 {vr(SA+2*q, 2)}, {vr(SA+2*q, 2)}, {vr(FS+2*q, 2)}")
    for q in range(10):
        A(f"v_cvt_pk_bf16_f32 v{T+q}, v{SA+2*q}, v{SA+2*q+1}")
    for q in range(10):
        A(f"v_lshlrev_b32 v{SA+2*q}, 16, v{T+q}")
        A(f"v_and_b32 v{SA+2*q+1}, 0xffff0000, v{T+q}")
    for q in range(10):
        A(f"v_pk_add_f32 {vr(SA+2*q, 2)}, {vr(SA+2*q, 2)}, {vr(XF_+2*q, 2)}")
    for q in range(10):
        A(f"v_cvt_pk_bf16_f32 v{XR+q}, v{SA+2*q}, v{SA+2*q+1}")
    for c in range(5):
        A(f"buffer_store_dwordx2 v[{XR+2*c}:{XR+2*c+1}], v3, s[16:19], 0 offen offset:{32*c}")
    ST()


HEADER = """; Kernarg layout for this problem (96 bytes, ptrs only, base s[0:1]):
;   offset  72: d_out     shape=(1, 2048, 640) dtype=bfloat16
"""


CFG = {}


def generate(cfg):
    CFG.clear()
    CFG.update(cfg)
    A = Asm()
    A.raw(HEADER.rstrip())
    A.raw(f"; @launch grid=(256,1,1) block=(256,1,1) lds={K1_LDS}")
    A.raw('.amdgcn_target "amdgcn-amd-amdhsa--gfx950"')
    gen_main(A, cfg)
    return A.text()


if __name__ == "__main__":
    for x in range(192):
        assert (x * 2731) >> 16 == x // 24 and (x * 10923) >> 16 == x // 6
    for x in range(320):
        assert (x * 3277) >> 16 == x // 20
    cfg = {}
    out = f"cdna_kernels/{NAME}.s"
    for a in sys.argv[1:]:
        if "=" in a:
            k, v = a.split("=")
            if k == "out":
                out = v
            else:
                cfg[k] = int(v)
    open(out, "w").write(generate(cfg))
    print("wrote", out)
```

```python
import sys, math, struct

NAME = "recurrent_scan__mha_block_cached__swiglu_ffn__prompt"
XN_OFF = 0
WP_OFF = 0x400000
OF_OFF = 0x1000000
RT_STRIDE = 240 * 1024
LOG2E = 1.4426950408889634


def f2u(x):
    return struct.unpack("<I", struct.pack("<f", x))[0]


class Asm:
    def __init__(self):
        self.L = []

    def __call__(self, s):
        self.L.append("    " + s)

    def label(self, s):
        self.L.append(s + ":")

    def raw(self, s):
        self.L.append(s)

    def text(self):
        return "\n".join(self.L) + "\n"


def vr(b, n=1):
    return f"v{b}" if n == 1 else f"v[{b}:{b+n-1}]"


def ar(b, n=1):
    return f"a{b}" if n == 1 else f"a[{b}:{b+n-1}]"


def sr(b, n=1):
    return f"s{b}" if n == 1 else f"s[{b}:{b+n-1}]"


def kernel_begin(A, name):
    A.raw(".text")
    A.raw(f".globl {name}")
    A.raw(".p2align 8")
    A.raw(f".type {name},@function")
    A.label(name)


def kernel_desc(A, name, nv, ns, ao):
    A.raw('.section .rodata,"a"')
    A.raw(".p2align 6")
    A.raw(f".amdhsa_kernel {name}")
    A.raw(f"  .amdhsa_next_free_vgpr {nv}")
    A.raw(f"  .amdhsa_next_free_sgpr {ns}")
    A.raw(f"  .amdhsa_accum_offset {ao}")
    A.raw("  .amdhsa_group_segment_fixed_size 0")
    A.raw("  .amdhsa_kernarg_size 96")
    A.raw("  .amdhsa_user_sgpr_count 2")
    A.raw("  .amdhsa_user_sgpr_kernarg_segment_ptr 1")
    A.raw("  .amdhsa_system_sgpr_workgroup_id_x 1")
    A.raw(".end_amdhsa_kernel")


def srd(A, d, ptr, off_sgpr=None, off_imm=0, size=None, size_sgpr=None):
    if off_sgpr is not None:
        A(f"s_add_u32 s{d}, s{ptr}, s{off_sgpr}")
        A(f"s_addc_u32 s{d+1}, s{ptr+1}, 0")
        if off_imm:
            A(f"s_add_u32 s{d}, s{d}, {off_imm}")
            A(f"s_addc_u32 s{d+1}, s{d+1}, 0")
    elif off_imm:
        A(f"s_add_u32 s{d}, s{ptr}, {off_imm}")
        A(f"s_addc_u32 s{d+1}, s{ptr+1}, 0")
    else:
        A(f"s_mov_b32 s{d}, s{ptr}")
        A(f"s_mov_b32 s{d+1}, s{ptr+1}")
    if size_sgpr is not None:
        A(f"s_mov_b32 s{d+2}, s{size_sgpr}")
    else:
        A(f"s_mov_b32 s{d+2}, {size}")
    A(f"s_mov_b32 s{d+3}, 0x00020000")


STAMP_OFF = 0x8000000


class Stamps:
    def __init__(self, A, on):
        self.A, self.on, self.n = A, on, 0

    def __call__(self, lvl=1):
        if not self.on or (lvl != self.on and self.n > 0 and lvl != 9):
            return
        A = self.A
        A("s_memtime s[66:67]")
        A("s_memrealtime s[68:69]")
        A("s_waitcnt lgkmcnt(0)")
        A(f"s_mov_b32 s{70+2*self.n}, s66")
        A(f"s_mov_b32 s{71+2*self.n}, s68")
        self.n += 1
        assert self.n <= 16

    def dump(self, wave_sgpr):
        if not self.on:
            return
        A = self.A
        A("s_waitcnt vmcnt(0)")
        self(9)
        A("s_lshl_b32 s33, s2, 2")
        A(f"s_add_u32 s33, s33, s{wave_sgpr}")
        A("s_lshl_b32 s33, s33, 7")
        A(f"s_add_u32 s33, s33, {STAMP_OFF}")
        A("s_add_u32 s34, s52, s33")
        A("s_addc_u32 s35, s53, 0")
        A("v_mov_b32 v1, 0")
        for i in range(self.n):
            A(f"v_mov_b32 v2, s{70+2*i}")
            A(f"v_mov_b32 v3, s{71+2*i}")
            A(f"global_store_dwordx2 v1, v[2:3], s[34:35] offset:{8*i}")
        A("s_waitcnt vmcnt(0)")


def mfma(d, a, b, c):
    return f"v_mfma_f32_16x16x32_bf16 {d}, {a}, {b}, {c}"


XCH_OFF = 0x4000000
K2_LDS = 4 * 36864


QF = 160
SB = 96
NM = 80
VF = 48
LS = 40
VK, VV, DK, DV = 2, 4, 8, 11
KF = 192
KREG, VREG = 36864, 86016


def qf(qt, u):
    return vr(QF + (u*4+qt)*4, 4)


def sreg(buf, qt, kt):
    return SB + buf*32 + qt*8 + kt*4


def oacc(dt, qt):
    return (dt*4 + qt) * 4


def k_read(slot, kt, u):
    return f"ds_read_b128 {ar(KF+kt*24+u*4, 4)}, v{VK+(u&1)} offset:{slot*12288+kt*6144+128*(u>>1)}"


def v_read(slot, dt, rd):
    b = VF + (dt % 8)*4 + 2*rd
    return f"ds_read_b64_tr_b16 {vr(b, 2)}, v{VV+(dt&3)} offset:{slot*12288+rd*6144+128*(dt>>2)}"


def softmax_ops(buf, qts):
    E, S = [], []
    for qt in qts:
        b = sreg(buf, qt, 0)
        for p in range(4):
            e0 = len(E)
            E.append(f"v_exp_f32 v{b+2*p}, v{b+2*p}")
            E.append(f"v_exp_f32 v{b+2*p+1}, v{b+2*p+1}")
            S.append((e0, f"v_add_f32 v{LS+2*qt}, v{LS+2*qt}, v{b+2*p}"))
            S.append((e0+1, f"v_add_f32 v{LS+2*qt+1}, v{LS+2*qt+1}, v{b+2*p+1}"))
            S.append((e0+1, f"v_cvt_pk_bf16_f32 v{b+p}, v{b+2*p}, v{b+2*p+1}"))
    return E, S


def fill_valu(gaps, lo, hi, E, S):
    ei, si = 0, 0
    epos = {}
    n_empty = sum(1 for g in range(lo, hi) if not gaps[g][0] and not gaps[g][2])
    assert n_empty >= len(E), (n_empty, len(E))
    for g in range(lo, hi):
        used = len(gaps[g][0]) + len(gaps[g][2])
        avail = [k for k in range(si, len(S)) if S[k][0] in epos and epos[S[k][0]] < g]
        navail = 0
        for k in range(si, len(S)):
            if S[k][0] in epos and epos[S[k][0]] < g:
                navail += 1
            else:
                break
        if used == 0:
            empty_left = sum(1 for q in range(g, hi) if not gaps[q][0] and not gaps[q][2])
            must_exp = empty_left <= len(E) - ei
            if ei < len(E) and (must_exp or navail < 4):
                gaps[g][1].append(E[ei])
                epos[ei] = g
                ei += 1
                continue
        free = 2 - used
        while free > 0 and navail > 0:
            gaps[g][1].append(S[si][1])
            si += 1
            navail -= 1
            free -= 1
    assert ei == len(E) and si == len(S), (ei, len(E), si, len(S))


def gen_stage(A, sg, extra=None, first=False):
    nb, cb = (sg + 1) & 1, sg & 1
    M = []
    qko = CFG.get("qko", 1)
    for kt in range(2):
        if qko == 0:
            seq = [(qt, u, u == 0) for qt in range(4) for u in range(6)]
        elif qko == 1:
            seq = [(qt, u if qt % 2 == 0 else 5 - u, u == 0) for qt in range(4) for u in range(6)]
        else:
            seq = [(qt, u, u == 0) for u in range(6) for qt in range(4)]
        for qt, u, st_ in seq:
            d = vr(sreg(nb, qt, kt), 4)
            M.append(mfma(d, ar(KF+kt*24+u*4, 4), qf(qt, u), vr(NM+qt*4, 4) if st_ else d))
    pvo = CFG.get("pvo", 2)
    if pvo == 0:
        order = [(dt, qt) for dt in range(12) for qt in range(4)]
    elif pvo == 1:
        order = [(2*g + d, qt) for g in range(6) for qt in range(4) for d in range(2)]
    elif pvo == 2:
        order = [(dt, qt if dt % 2 == 0 else 3 - qt) for dt in range(12) for qt in range(4)]
    elif pvo == 3:
        order = [(3*g + d, qt) for g in range(4) for qt in range(4) for d in range(3)]
    elif pvo == 4:
        order = [(3*g + (d if qt % 2 == 0 else 2 - d), qt if g % 2 == 0 else 3 - qt) for g in range(4) for qt in range(4) for d in range(3)]
    for dt, qt in order:
        o = ar(oacc(dt, qt), 4)
        M.append(mfma(o, vr(VF+(dt % 8)*4, 4), vr(sreg(cb, qt, 0), 4), "0" if first else o))
    gaps = [[[], [], []] for _ in range(96)]
    for u in range(6):
        gaps[1+3*u][0].append(k_read((sg+1) % 4, 1, u))
    gaps[23][2].append("s_waitcnt lgkmcnt(0)")
    for j in range(24):
        gaps[26+2*j][0].append(v_read(sg, j // 2, j & 1))
    for g in (47, 59, 71):
        gaps[g][2].append("s_waitcnt lgkmcnt(5)")
    sa = CFG.get('sabl', 0)
    ex = [0, 0 if sa & 2 else 1, 0 if sa & 4 else 1, 0]
    nb_ = CFG.get("nb", 0)
    if nb_:
        gaps[78][2].append(f"s_waitcnt vmcnt({9 + ex[sg] + ex[sg-1]}) lgkmcnt(0)")
        gaps[77][2].append("v_add_u32 v36, 1, v36")
        gaps[79][0].append("ds_write_b32 v37, v36")
        gaps[88][0].append("ds_read_b32 v34, v38")
        if not first:
            lab = f"K1_SY{sg}"
            gaps[0][2].append("v_cmp_lt_u32 vcc, v34, v36")
            gaps[2][2].append(f"s_cbranch_vccnz {lab}_WAIT")
            gaps[2][2].append(f"{lab}:")
    else:
        gaps[79][2].append(f"s_waitcnt vmcnt({12 + ex[sg] + ex[sg-1] + ex[sg-2]}) lgkmcnt(0)")
    if not ex[sg]:
        pass
    elif sg == 0:
        gaps[39][0].append("global_load_dword v22, v23, s[64:65] sc1")
    elif sg == 1:
        gaps[18][0].append("ds_read_b64_tr_b16 v[14:15], v35")
        gaps[19][0].append(f"ds_read_b64_tr_b16 v[16:17], v35 offset:{16*320}")
        gaps[39][0].append("buffer_store_dwordx4 v[14:17], v39, s[48:51], s56 offen sc1")
        gaps[75][2].append("v_add_u32 v35, 32, v35")
        gaps[75][2].append("s_add_u32 s56, s56, 1024")
    elif sg == 2:
        gaps[39][0].append("buffer_store_dwordx4 v[18:21], v39, s[44:47], s57 offen sc1")
        gaps[75][2].append("s_add_u32 s57, s57, 1024")
    if not nb_:
        gaps[79][2].append("s_barrier")
    for u in range(6):
        gaps[81+u][0].append(k_read((sg+2) % 4, 0, u))
    gaps[95][2].append("s_waitcnt lgkmcnt(0)")
    dpos = CFG.get("dpos", 1)
    NT = " nt" if CFG.get("ntl", 0) else ""
    P = [3, 9, 15, 21, 27, 33] if dpos == 1 else [3, 6, 9, 12, 15, 18]
    gaps[1][2].append(f"s_add_u32 m0, s29, {KREG + sg*12288}")
    for n in range(3):
        gaps[P[n]][0].append(f"buffer_load_dwordx4 v{DK+n}, s[16:19], s30 offen offset:{1024*n}{NT} lds")
    gaps[16 if dpos == 1 else 10][2].append(f"s_add_u32 m0, s29, {VREG + ((sg+3) % 4)*12288}")
    for n in range(3):
        gaps[P[3+n]][0].append(f"buffer_load_dwordx4 v{DV+n}, s[20:23], s30 offen offset:{1024*n}{NT} lds")
    gaps[36][2].append("s_add_u32 s30, s30, 12288")
    if extra:
        for g, s in extra:
            gaps[g][2].append(s)
    E, S = softmax_ops(cb, (2, 3))
    fill_valu(gaps, 0, 47, E, S)
    E, S = softmax_ops(nb, (0, 1))
    fill_valu(gaps, 48, 96, E, S)
    abl = CFG.get("abl", 0) if not first else 0
    for g in range(96):
        A(M[g])
        for s in gaps[g][0] + gaps[g][1] + gaps[g][2]:
            if abl & 1 and s.startswith("ds_read_b128"):
                continue
            if abl & 2 and s.startswith("ds_read_b64"):
                continue
            if abl & 4 and s.startswith("v_exp"):
                continue
            if abl & 8 and s.startswith("v_add"):
                continue
            if abl & 16 and s.startswith("v_cvt"):
                continue
            if abl & 32 and s.startswith("buffer_load"):
                continue
            if abl & 64 and s.startswith("s_barrier"):
                continue
            if s.endswith(":"):
                A.label(s[:-1])
                continue
            A(s)


def gen_tail(A, sg):
    cb = sg & 1
    A("s_waitcnt vmcnt(0)")
    A("s_barrier")
    for j in range(12):
        A(v_read(sg, j // 2, j & 1))
    A(f"s_mov_b32 s33, {SPIN_MAX}")
    A.label("K2_PP")
    A("v_cmp_le_u32 vcc, 32, v23")
    A("s_cmp_eq_u64 vcc, exec")
    A("s_cbranch_scc1 K2_PP_OK")
    A("s_sleep 1")
    A("global_load_dword v23, v25, s[64:65] sc1")
    A("s_waitcnt vmcnt(0)")
    A("s_sub_u32 s33, s33, 1")
    A("s_cmp_lg_u32 s33, 0")
    A("s_cbranch_scc1 K2_PP")
    A.label("K2_PP_OK")
    A("s_waitcnt lgkmcnt(4)")
    for j in range(12, 16):
        A(v_read(sg, j // 2, j & 1))
    W = p_at(0) + p_fill_b() + p_fill_a() + p_at(1) + p_fill_b() + p_fill_a()

    def next_fill():
        while W:
            e = W.pop(0)
            if e[0] == "d":
                A(e[1])
                while W and W[0][0] != "d":
                    A(W.pop(0)[1])
                return
            A(e[1])
            if W[0][0] == "d":
                A("s_nop 0")
    E, S = softmax_ops(cb, (2, 3))
    for k, e in enumerate(E):
        if k % 4 == 0:
            next_fill()
        A(e)
    A("s_nop 0")
    for k, (_, s) in enumerate(S):
        if k in (0, 12):
            next_fill()
        A(s)
    A("s_waitcnt lgkmcnt(0)")
    A("s_nop 1")
    for dt in range(12):
        if dt == 8:
            A("s_waitcnt lgkmcnt(0)")
        for qt in range(4):
            o = ar(oacc(dt, qt), 4)
            A(mfma(o, vr(VF+(dt % 8)*4, 4), vr(sreg(cb, qt, 0), 4), o))
            if 1 <= dt <= 4 and qt < 2:
                A(v_read(sg, dt + 7, qt))
            if qt == 2:
                next_fill()
    assert not W


def xlane_reduce(A, op, regs, tmp):
    for swap in ("v_permlane32_swap_b32", "v_permlane16_swap_b32"):
        for i, r in enumerate(regs):
            A(f"v_mov_b32 v{tmp+i}, v{r}")
        A("s_nop 1")
        for i, r in enumerate(regs):
            A(f"{swap} v{tmp+i}, v{r}")
        A("s_nop 1")
        for i, r in enumerate(regs):
            A(f"{op} v{r}, v{r}, v{tmp+i}")


class Track:
    def __init__(self, name, init=()):
        self.name, self.q, self.done = name, list(init), 0

    def issue(self, tag):
        self.q.append(tag)

    def need(self, tags):
        idx = max((len(self.q) - 1 - self.q[::-1].index(t)) for t in tags)
        if idx < self.done:
            return None
        self.done = idx + 1
        return len(self.q) - 1 - idx

    def drain(self):
        self.done = len(self.q)


XREG = 110592
CREG = 147456
FREG = 148608
K1_LDS = 148672
FLG_OFF = 0x7000000
SPIN_MAX = 1 << 22


def emit_plain(A, L):
    prev = None
    for e in L:
        if e[0] == "d" and prev is not None and "m0" in prev:
            A("s_nop 0")
        for s_ in e[1:]:
            A(s_)
        prev = e[-1]


def poll(A, label, vaddr, vtmp, sbase, mask_sgpr_pair, want, cmp="v_cmp_ne_u32"):
    A(f"s_mov_b32 s33, {SPIN_MAX}")
    A(f"s_mov_b64 exec, {mask_sgpr_pair}")
    A.label(label)
    A(f"global_load_dword v{vtmp}, v{vaddr}, {sbase} sc1")
    A("s_waitcnt vmcnt(0)")
    A(f"{cmp} vcc, {want}, v{vtmp}")
    A("s_cmp_eq_u64 vcc, exec")
    A(f"s_cbranch_scc1 {label}_OK")
    A("s_sleep 1")
    A("s_sub_u32 s33, s33, 1")
    A("s_cmp_lg_u32 s33, 0")
    A(f"s_cbranch_scc1 {label}")
    A.label(label + "_OK")
    A("s_mov_b64 exec, -1")


def gen_main(A, cfg):
    name = NAME + "_kernel"
    NT = " nt" if cfg.get("nt", 0) else ""
    NTW = " nt" if cfg.get("ntw", 1) else ""
    NTG = " nt" if cfg.get("ntg", 0) else ""
    NTX = " nt" if cfg.get("ntx", 0) else ""
    kernel_begin(A, name)
    A("s_cmp_ge_u32 s2, 256")
    A("s_cbranch_scc1 K1_END")
    if cfg.get("cpf", 1):
        A("s_getpc_b64 s[34:35]")
        A("s_and_b32 s34, s34, 0xffffff00")
        A("s_lshr_b32 s33, s2, 3")
        A("s_lshl_b32 s33, s33, 12")
        A("v_lshl_add_u32 v2, v0, 4, s33")
        A(f"v_min_u32 v2, (K1_END-{name}-16)&0xfffffff0, v2")
        A("global_load_dwordx4 v[60:63], v2, s[34:35]")
    ST = Stamps(A, cfg.get("stamp", 0))
    ST()
    A("s_load_dwordx2 s[60:61], s[0:1], 0")
    A("s_load_dwordx4 s[44:47], s[0:1], 24")
    A("s_load_dwordx4 s[48:51], s[0:1], 48")
    A("s_load_dwordx4 s[40:43], s[0:1], 8")
    A("s_load_dwordx2 s[58:59], s[0:1], 64")
    A("s_load_dwordx2 s[62:63], s[0:1], 72")
    A("s_load_dwordx2 s[64:65], s[0:1], 80")
    A("s_load_dwordx2 s[52:53], s[0:1], 88")
    A("v_lshrrev_b32 v1, 6, v0")
    A("v_and_b32 v0, 63, v0")
    A("v_readfirstlane_b32 s28, v1")
    A("s_and_b32 s31, s2, 6")
    A("s_lshl_b32 s31, s31, 2")
    A("s_bfe_u32 s33, s2, 0x30003")
    A("s_add_u32 s31, s31, s33")
    A("s_and_b32 s32, s2, 1")
    A("s_lshl_b32 s32, s32, 2")
    A("s_lshr_b32 s33, s2, 6")
    A("s_add_u32 s32, s32, s33")
    A("s_mul_i32 s29, s28, 3072")
    XD, XR, WD, GD, CQ, CG, CC = 14, 16, 18, 21, 24, 26, 27
    XT = 24
    A("v_lshrrev_b32 v36, 3, v0")
    A("v_mul_u32_u24 v37, 1280, v36")
    A("v_lshrrev_b32 v38, 4, v0")
    A("v_and_b32 v39, 7, v0")
    A("v_xor_b32 v39, v39, v38")
    A(f"v_lshl_add_u32 v{XD}, v39, 4, v37")
    A("v_xor_b32 v39, 4, v39")
    A(f"v_lshl_add_u32 v{XD+1}, v39, 4, v37")
    A(f"v_add_u32 v{XD+1}, 10240, v{XD+1}")
    for n in range(3):
        A(f"v_add_u32 v40, {64*n}, v0")
        A(f"v_mul_u32_u24 v{44+n}, 2731, v40")
        A(f"v_lshrrev_b32 v{44+n}, 16, v{44+n}")
        A(f"v_mul_u32_u24 v41, 24, v{44+n}")
        A("v_sub_u32 v41, v40, v41")
        A(f"v_and_b32 v42, 2, v{44+n}")
        A("v_lshlrev_b32 v42, 1, v42")
        A("v_xor_b32 v41, v41, v42")
        A("s_lshl_b32 s33, s28, 4")
        A(f"v_add_u32 v42, s33, v{44+n}")
        A("v_mul_u32_u24 v42, 12288, v42")
        A("v_lshl_add_u32 v42, v41, 4, v42")
        A(f"v_subrev_u32 v{WD+n}, {1024*n}, v42")
        A("v_mul_u32_u24 v41, 10923, v40")
        A("v_lshrrev_b32 v41, 16, v41")
        A("v_mul_u32_u24 v42, 6, v41")
        A("v_sub_u32 v42, v40, v42")
        A("s_and_b32 s33, s31, 1")
        A("s_lshl_b32 s33, s33, 1")
        A("v_add_u32 v42, s33, v42")
        A("v_subrev_u32 v43, 6, v42")
        A("v_min_u32 v42, v42, v43")
        A("s_and_b32 s33, s28, 1")
        A("s_lshl_b32 s33, s33, 5")
        A("v_add_u32 v41, s33, v41")
        A("v_mul_u32_u24 v41, 3072, v41")
        A("v_lshl_add_u32 v41, v42, 4, v41")
        A(f"v_subrev_u32 v{GD+n}, {1024*n}, v41")
    A("s_mov_b32 s36, 0")
    A("s_mov_b32 s37, 0")
    A("s_mov_b32 s38, 0")
    A("s_mov_b32 s39, 0")
    A("s_lshl_b32 s57, s28, 13")
    A(f"s_add_u32 s57, s57, {XREG}")
    A("s_lshl_b32 s33, s32, 2")
    A("s_add_u32 s33, s33, s28")
    A(f"s_mul_i32 s56, s33, {64*1280}")
    A("s_waitcnt lgkmcnt(0)")
    ST(3)
    srd(A, 4, 60, off_sgpr=56, size=64*1280)
    A("s_mul_i32 s34, s31, 384")
    A(f"s_sub_u32 s35, {640*12288}, s34")
    srd(A, 8, 44, off_sgpr=34, size_sgpr=35)
    A("s_cmp_lt_u32 s28, 2")
    A("s_cselect_b32 s44, s48, s50")
    A("s_cselect_b32 s45, s49, s51")
    A("s_mul_i32 s34, s31, 96")
    A(f"s_sub_u32 s35, {640*3072}, s34")
    srd(A, 12, 44, off_sgpr=34, size_sgpr=35)

    GA, SUM, GRM, CAC, ONE, WF, CF, XF = 0, 96, 112, 128, 148, 152, 176, 192
    QA = 64
    SLOT = 36864

    def qacc(t, qt):
        return QA + ((t >> 1)*4 + qt)*8 + (t & 1)*4

    def x_dma(n):
        return [("s", f"s_add_u32 m0, s57, {1024*n}"), ("s", f"s_add_u32 s35, s36, {20480*(n>>1)}"),
                ("d", f"buffer_load_dwordx4 v{XD+(n&1)}, s[4:7], s35 offen{NTX} lds")]
    xadv = [("s", "s_add_u32 s36, s36, 128")]

    def x_read(st, k2, qt):
        return f"ds_read_b128 {ar(XF+st*32+(k2*4+qt)*4, 4)}, v{XR+k2} offset:{qt*2048}"

    def w_dma():
        L = []
        L.append(("s", "s_lshl_b32 s34, s29, 1"))
        L.append(("s", "s_add_u32 m0, s39, s34"))
        for n in range(3):
            L.append(("d", f"buffer_load_dwordx4 v{WD+n}, s[8:11], s37 offen offset:{1024*n}{NTW} lds"))
        L.append(("s", "s_add_u32 m0, m0, 3072"))
        L.append(("s", f"s_add_u32 s35, s37, {8*12288}"))
        for n in range(3):
            L.append(("d", f"buffer_load_dwordx4 v{WD+n}, s[8:11], s35 offen offset:{1024*n}{NTW} lds"))
        L.append(("s", "s_add_u32 s34, s29, 24576"))
        L.append(("s", "s_add_u32 m0, s39, s34"))
        for n in range(3):
            L.append(("d", f"buffer_load_dwordx4 v{GD+n}, s[12:15], s38 offen offset:{1024*n}{NTG} lds"))
        L.append(("s", f"s_add_u32 s38, s38, {64*3072}"))
        L.append(("s", "s_lshl_b32 s37, s38, 2"))
        L.append(("s", f"s_add_u32 s39, s39, {SLOT}"))
        L.append(("s2", f"s_cmp_eq_u32 s39, {3*SLOT}", "s_cselect_b32 s39, 0, s39"))
        return L

    def kv_dma(kind, i):
        L = [("s", f"s_add_u32 m0, s29, {(KREG if kind == 'K' else VREG) + i*12288}")]
        if kind == "K" and i == 0:
            for n in range(3):
                L.append(("s", f"v_subrev_u32 v{60+n}, 12288, v{DK+n}"))
            for n in range(3):
                L.append(("d", f"buffer_load_dwordx4 v{60+n}, s[16:19], 0 offen offset:{1024*n}{NT} lds"))
        elif kind == "K":
            L.append(("s", f"s_mov_b32 s30, {(i-1)*12288}"))
            for n in range(3):
                L.append(("d", f"buffer_load_dwordx4 v{DK+n}, s[16:19], s30 offen offset:{1024*n}{NT} lds"))
        else:
            L.append(("s", f"s_mov_b32 s30, {i*12288}"))
            for n in range(3):
                L.append(("d", f"buffer_load_dwordx4 v{DV+n}, s[20:23], s30 offen offset:{1024*n}{NT} lds"))
        return L

    def w_reads(t):
        L = []
        for k2 in range(2):
            for rd in range(2):
                d = ar(WF + (t % 3)*8 + k2*4 + 2*rd, 2)
                if t < 12:
                    u, par = t >> 1, t & 1
                    L.append(f"ds_read_b64_tr_b16 {d}, v{CQ+(u&1)} offset:{k2*32*384+rd*4*384+128*(u>>1)+8*par}")
                else:
                    tt = t - 12
                    L.append(f"ds_read_b64_tr_b16 {d}, v{CG} offset:{24576+(tt//3)*6144+k2*32*96+rd*4*96+32*(tt%3)}")
        return L

    def c_reads(p):
        L = []
        for k2 in range(2):
            for rd in range(2):
                d = ar(CF + k2*4 + 2*rd, 2)
                if p < 3:
                    L.append(f"ds_read_b64_tr_b16 {d}, v{CC} offset:{k2*32*384+rd*4*384+128*p}")
                else:
                    L.append(f"ds_read_b64_tr_b16 {d}, v{CC+p-2} offset:{24576+k2*32*96+rd*4*96}")
        return L

    A0 = A
    A = Asm()
    A("s_lshl_b32 s34, s33, 7")
    A("s_lshl_b32 s35, s31, 2")
    A("s_add_u32 s34, s34, s35")
    A("s_and_b32 s35, s2, 1")
    A("s_lshl_b32 s35, s35, 5")
    A("s_lshr_b32 s56, s2, 3")
    A("s_add_u32 s35, s35, s56")
    A("s_lshl_b32 s35, s35, 2")
    A("s_add_u32 s35, s35, s28")
    A("s_lshl_b32 s35, s35, 2")
    A("s_bfe_u32 s56, s2, 0x20001")
    A("s_add_u32 s35, s35, s56")
    A("s_lshl_b32 s35, s35, 2")
    A("s_add_u32 s35, s35, 0x1000")
    A(f"s_add_u32 s34, s34, {FLG_OFF}")
    A(f"s_add_u32 s35, s35, {FLG_OFF}")
    A("v_mov_b32 v1, s34")
    A("v_mov_b32 v40, s35")
    A("v_cmp_eq_u32 vcc, 1, v0")
    A("v_mov_b32 v41, 0")
    A("s_nop 0")
    A("v_cndmask_b32 v1, v1, v40, vcc")
    A("s_mul_i32 s34, s31, 786432")
    srd(A, 16, 40, off_sgpr=34, size=786432)
    srd(A, 20, 42, off_sgpr=34, size=786432)
    A("s_cmp_ge_u32 s2, 192")
    A("s_cselect_b32 s44, s58, s46")
    A("s_cselect_b32 s45, s59, s47")
    A("s_cselect_b32 s34, 192, 0")
    A("s_sub_u32 s34, s2, s34")
    A("s_mul_i32 s34, s34, 40960")
    A("s_cmp_lt_u32 s2, 240")
    A("s_cselect_b32 s35, 40960, 0")
    A("s_cselect_b32 s34, s34, 0")
    srd(A, 40, 44, off_sgpr=34, size_sgpr=35)
    A("s_lshl_b32 s34, s2, 2")
    A("s_add_u32 s34, s34, s28")
    A("s_mul_i32 s34, s34, 10240")
    A("s_lshr_b32 s35, s35, 2")
    srd(A, 48, 52, off_sgpr=34, off_imm=WP_OFF, size_sgpr=35)
    A("s_and_b32 s34, s2, 1")
    A("s_lshl_b32 s34, s34, 5")
    A("s_lshr_b32 s35, s2, 3")
    A("s_add_u32 s34, s34, s35")
    A("s_lshl_b32 s34, s34, 2")
    A("s_bfe_u32 s35, s2, 0x20001")
    A("s_add_u32 s34, s34, s35")
    A("s_lshl_b32 s34, s34, 2")
    A("s_add_u32 s34, s34, s28")
    A("s_mul_i32 s34, s34, 15360")
    srd(A, 44, 52, off_sgpr=34, off_imm=XCH_OFF, size=7680)
    A("v_bfe_u32 v39, v0, 2, 2")
    A("v_and_b32 v40, 3, v0")
    A("v_and_b32 v41, 15, v0")
    for n in range(3):
        A("s_lshl_b32 s34, s28, 3")
        A(f"v_add_u32 v42, s34, v{44+n}")
        A("v_bfe_u32 v43, v42, 1, 3")
        A("v_xor_b32 v43, v43, v0")
        A("v_lshlrev_b32 v43, 4, v43")
        A("v_add_u32 v43, s29, v43")
        A(f"v_add_u32 v{DK+n}, 12288, v43")
        A("v_and_b32 v43, 6, v42")
        A("v_xor_b32 v43, v43, v0")
        A("v_lshlrev_b32 v43, 4, v43")
        A(f"v_add_u32 v{DV+n}, s29, v43")
    A("v_lshl_add_u32 v42, v38, 3, v39")
    A("v_mul_u32_u24 v43, 384, v42")
    A("v_lshl_add_u32 v43, v40, 4, v43")
    A("v_lshrrev_b32 v44, 1, v39")
    A(f"v_lshl_add_u32 v{CQ}, v44, 6, v43")
    A("v_xor_b32 v45, 1, v44")
    A(f"v_lshl_add_u32 v{CQ+1}, v45, 6, v43")
    A("s_lshr_b32 s34, s28, 1")
    A("v_xor_b32 v45, s34, v44")
    A(f"v_lshl_add_u32 v{CC}, v45, 6, v43")
    A("s_and_b32 s35, s28, 1")
    A("s_lshl_b32 s34, s35, 3")
    A(f"v_add_u32 v{CC}, s34, v{CC}")
    A("v_mul_u32_u24 v43, 96, v42")
    A(f"v_lshl_add_u32 v{CG}, v40, 3, v43")
    A("s_lshl_b32 s34, s28, 5")
    A("s_cmp_eq_u32 s28, 3")
    A("s_cselect_b32 s34, 6144, s34")
    A(f"v_add_u32 v{CC+1}, s34, v{CG}")
    A("s_lshl_b32 s34, s35, 5")
    A(f"s_add_u32 s34, s34, {6144+32}")
    A(f"v_add_u32 v{CC+2}, s34, v{CG}")
    A("v_bfe_u32 v44, v41, 1, 3")
    A("v_xor_b32 v44, v44, v38")
    A("v_xor_b32 v45, 4, v44")
    A("v_lshlrev_b32 v43, 7, v41")
    A("v_add_u32 v43, s57, v43")
    A(f"v_lshl_add_u32 v{XR}, v44, 4, v43")
    A(f"v_lshl_add_u32 v{XR+1}, v45, 4, v43")
    A("v_mul_u32_u24 v43, 384, v41")
    A(f"v_add_u32 v43, {KREG}, v43")
    A(f"v_lshl_add_u32 v{VK}, v44, 4, v43")
    A(f"v_lshl_add_u32 v{VK+1}, v45, 4, v43")
    A("v_lshrrev_b32 v42, 2, v0")
    A("v_mul_u32_u24 v43, 384, v42")
    A(f"v_add_u32 v43, {VREG}, v43")
    A("v_and_b32 v44, 1, v40")
    A("v_lshl_add_u32 v43, v44, 3, v43")
    A("v_and_b32 v44, 6, v42")
    A("v_lshrrev_b32 v45, 1, v40")
    A("v_xor_b32 v44, v44, v45")
    for j in range(4):
        A(f"v_xor_b32 v45, {2*j}, v44")
        A(f"v_lshl_add_u32 v{VV+j}, v45, 4, v43")
    PD = 30
    A("s_mul_i32 s34, s28, 320")
    for n in range(5):
        A(f"v_add_u32 v43, {64*n}, v0")
        A("v_mul_u32_u24 v44, 3277, v43")
        A("v_lshrrev_b32 v44, 16, v44")
        A("v_mul_u32_u24 v45, 20, v44")
        A("v_sub_u32 v45, v43, v45")
        A("v_mul_u32_u24 v44, 1280, v44")
        A("v_lshl_add_u32 v44, v45, 4, v44")
        A(f"v_add_u32 v{PD+n}, s34, v44")
    PR, PS = 35, 39
    A("v_mul_u32_u24 v43, 320, v42")
    A("v_lshl_add_u32 v43, v40, 3, v43")
    A("s_mul_i32 s58, s28, 10240")
    A("s_cmp_eq_u32 s28, 3")
    A("s_cselect_b32 s58, 135168, s58")
    A(f"v_add_u32 v{PR}, s58, v43")
    A("v_lshlrev_b32 v36, 4, v38")
    A(f"v_add_u32 v36, {CREG}, v36")
    A("s_lshl_b32 s34, s28, 6")
    A("v_add_u32 v56, s34, v36")
    A("s_and_b32 s34, s34, 64")
    A("v_add_u32 v57, s34, v36")
    A("v_mov_b32 v43, 0x3f803f80")
    for i in range(4):
        A(f"v_accvgpr_write_b32 a{ONE+i}, v43")
    su = [l.strip().replace("s34", "s66").replace("s35", "s67") for l in A.L]
    A = A0
    per = (len(su) + 16) // 17
    prev = None
    for e in sum((x_dma(n) for n in range(8)), []) + xadv + w_dma():
        if e[0] == "d" and "m0" in prev:
            A("s_nop 0")
        for s_ in e[1:]:
            A(s_)
        prev = e[-1]
        if e[0] == "d":
            k = 0
            while su and (k < per or su[0].startswith(("s_cselect", "s_addc", "global_store", "s_mov_b64 exec"))):
                A(su.pop(0))
                k += 1
    assert not su
    ST(3)
    w1in = cfg.get("w1in", 0)
    if not w1in:
        emit_plain(A, w_dma())
    ST(3)
    A(f"s_waitcnt vmcnt({9 if w1in else 18})")
    ST(3)
    for k2 in range(2):
        for qt in range(4):
            A(x_read(0, k2, qt))
    A(f"s_waitcnt vmcnt({0 if w1in else 9}) lgkmcnt(0)")
    ST(3)
    A("s_barrier")
    ST()
    ST(3)
    ST(4)
    for s in w_reads(0) + w_reads(1):
        A(s)

    PA, PB = 14, 40
    G0, TT = 48, 52

    def stats_ops():
        B = Asm()
        for qt in range(4):
            B(f"v_accvgpr_read_b32 v{G0+qt}, a{GRM+4*qt}")
        B("v_and_b32 v58, 3, v0")
        for r in range(1, 4):
            B(f"v_cmp_eq_u32 vcc, {r}, v58")
            for qt in range(4):
                B(f"v_accvgpr_read_b32 v{TT+qt}, a{GRM+4*qt+r}")
            for qt in range(4):
                B(f"v_cndmask_b32 v{G0+qt}, v{G0+qt}, v{TT+qt}, vcc")
        B("v_bfe_u32 v58, v0, 2, 2")
        B("v_lshrrev_b32 v59, 4, v0")
        B("v_cmp_eq_u32 vcc, v58, v59")
        B(f"s_mov_b32 s34, {hex(f2u(1.0/640))}")
        B("s_nop 0")
        for qt in range(4):
            B(f"v_cndmask_b32 v{G0+qt}, 0, v{G0+qt}, vcc")
        xlane_reduce(B, "v_add_f32", [G0+q for q in range(4)], TT)
        for qt in range(4):
            B(f"v_accvgpr_read_b32 v{TT+qt}, a{SUM+4*qt}")
        for qt in range(4):
            B(f"v_mul_f32 v{TT+qt}, s34, v{TT+qt}")
            B(f"v_mul_f32 v{G0+qt}, s34, v{G0+qt}")
        for qt in range(4):
            B(f"v_fma_f32 v{G0+qt}, -v{TT+qt}, v{TT+qt}, v{G0+qt}")
        for qt in range(4):
            B(f"v_max_f32 v{G0+qt}, 0, v{G0+qt}")
        for qt in range(4):
            B(f"v_cvt_pk_bf16_f32 v{G0+qt}, v{TT+qt}, v{G0+qt}")
        for qt in range(4):
            B(f"v_lshlrev_b32 v{TT+qt}, 16, v{G0+qt}")
            B(f"v_and_b32 v{G0+qt}, 0xffff0000, v{G0+qt}")
        for qt in range(4):
            B(f"v_sub_f32 v{PA+2*qt}, 0, v{TT+qt}")
            B(f"v_add_f32 v{G0+qt}, {hex(f2u(1e-5))}, v{G0+qt}")
        for qt in range(4):
            B(f"v_cvt_pk_bf16_f32 v{G0+qt}, v{G0+qt}, v{G0+qt}")
        for qt in range(4):
            B(f"v_lshlrev_b32 v{G0+qt}, 16, v{G0+qt}")
        for qt in range(4):
            B(f"v_sqrt_f32 v{G0+qt}, v{G0+qt}")
        for qt in range(4):
            B(f"v_cvt_pk_bf16_f32 v{G0+qt}, v{G0+qt}, v{G0+qt}")
        for qt in range(4):
            B(f"v_lshlrev_b32 v{G0+qt}, 16, v{G0+qt}")
        for qt in range(4):
            B(f"v_rcp_f32 v{TT+qt}, v{G0+qt}")
        for qt in range(4):
            B(f"v_mul_f32 v{PB+2*qt+1}, v{G0+qt}, v{G0+qt}")
        for qt in range(4):
            B(f"v_mul_f32 v{PA+2*qt+1}, {hex(f2u(LOG2E * 192 ** -0.5))}, v{TT+qt}")
            B(f"v_mul_f32 v{PB+2*qt}, {hex(f2u(-LOG2E))}, v{TT+qt}")
        return [l.strip() for l in B.L]

    def superstep(st, mode):
        z0 = mode == "first"
        M = []
        blk = []
        xf = lambda k2, qt: ar(XF+st*32+(k2*4+qt)*4, 4)
        stat_blocks = [0, 1, 3, 4, 6, 7, 9, 10] if mode != "last" else [0, 0, 1, 1, 3, 3, 4, 4]
        for t in range(18):
            blk.append(len(M))
            gsn = cfg.get("gsn", 2)
            for qi in range(4):
                qt = qi if (gsn < 2 or t % 2 == 0) else 3 - qi
                acc = vr(qacc(t, qt), 4) if t < 12 else ar(GA + ((t-12)*4+qt)*4, 4)
                for ki in range(2):
                    k2 = ki if (gsn == 0 or qi % 2 == 0) else 1 - ki
                    M.append((mfma(acc, ar(WF+(t % 3)*8+k2*4, 4), xf(k2, qt), "0" if z0 and ki == 0 else acc), [f"w{t}"]))
            if t % 3 == 2 and t < 15:
                p = t // 3
                for k2 in range(2):
                    M.append((mfma(ar(CAC+4*p, 4), ar(CF+k2*4, 4), ar(ONE, 4), "0" if z0 and k2 == 0 else ar(CAC+4*p, 4)), [f"c{p}"]))
            for i, sb_ in enumerate(stat_blocks):
                if sb_ == t:
                    k2, qt = i >> 2, i & 3
                    M.append((mfma(ar(SUM+4*qt, 4), ar(ONE, 4), xf(k2, qt), "0" if z0 and k2 == 0 else ar(SUM+4*qt, 4)), []))
                    M.append((mfma(ar(GRM+4*qt, 4), xf(k2, qt), xf(k2, qt), "0" if z0 and k2 == 0 else ar(GRM+4*qt, 4)), []))
        NG = len(M)
        blk.append(NG)
        front = [None]*NG
        back = [[] for _ in range(NG)]
        resv = set(b - 1 for b in blk[1:])

        def room(g):
            return 2 - (front[g] is not None) - len(back[g]) - (g in resv)

        def put_front(g, e):
            while front[g] is not None or room(g) < 1:
                g += 1
            front[g] = e
            return g

        def put_back(g, ss):
            while room(g) < len(ss):
                g += 1
            back[g] += ss
            return g
        for t in range(18):
            if mode == "last" and t >= 16:
                continue
            for k, s_ in enumerate(w_reads((t+2) % 18)):
                front[blk[t]+k] = ("l", s_, f"w{(t+2) % 18}" + ("n" if t >= 16 else ""), None)
        for p in range(5):
            for k, s_ in enumerate(c_reads(p)):
                front[blk[3*p]+4+k] = ("l", s_, f"c{p}", None)
        if mode != "last":
            for qt in range(4):
                g = blk[(5+2*qt) if not z0 else (9+qt)] + 4
                for k2 in range(2):
                    g = put_front(g, ("l", x_read(st ^ 1, k2, qt), f"x{qt}", ("vm", f"X{qt}")))
        dl = {"loop": w_dma(), "first": w_dma(), "pre": kv_dma("K", 0) + kv_dma("K", 1) + kv_dma("K", 2),
              "last": kv_dma("V", 0) + kv_dma("K", 3) + kv_dma("V", 1) + kv_dma("V", 2)}[mode]
        g = 0
        last_d = -10
        nd = 0
        if z0:
            pre = [(e, f"X{n>>1}") for n in range(8) for e in x_dma(n)] + [(e, None) for e in xadv]
            if w1in:
                pre = [(e, "W8") for e in w_dma()] + pre
            for e, tg in pre:
                if e[0] == "d":
                    g = put_front(max(g + 1, last_d + (3 if w1in else 4)), ("d", e[1], tg, None))
                    last_d = g
                else:
                    g = put_back(g, list(e[1:]))
        for e in dl:
            if e[0] == "d":
                g = put_front(max(g + 1, last_d + (7 if not z0 else 3)), ("d", e[1], f"W{nd}", None))
                last_d = g
                nd += 1
            else:
                g = put_back(g, list(e[1:]))
        if mode in ("loop", "first"):
            assert g < blk[9] or z0, (g, blk)
            for n in range(8):
                g = max(g, blk[(8 + 2*(n >> 1)) if not z0 else (12 + (n >> 1))])
                for e in x_dma(n):
                    if e[0] == "d":
                        g = put_front(max(g + 1, last_d + (5 if not z0 else 3)), ("d", e[1], f"X{n>>1}", ("lg", f"x{n>>1}")))
                        last_d = g
                    else:
                        g = put_back(g, list(e[1:]))
            for e in xadv:
                g = put_back(g, list(e[1:]))
        gb = blk[16] - 1
        rest = []
        if mode != "last":
            g = put_back(blk[12] + 1, [f"s_add_u32 s33, s33, {SLOT}"])
            g = put_back(g + 1, [f"s_cmp_eq_u32 s33, {3*SLOT}", "s_cselect_b32 s59, s56, s55"])
            g = put_back(g + 1, [f"s_cmp_eq_u32 s33, {3*SLOT}", "s_cselect_b32 s33, 0, s33"])
            assert g < gb
        else:
            for p in range(5):
                front[blk[16]+p] = ("l", f"ds_write_b128 v{56 if p < 4 else 57}, {ar(CAC+4*p, 4)} offset:{256*p}", "cw", None)
            g = blk[6]
            ops = stats_ops()
            while ops and g < NG:
                cost = 2 if ops[0].startswith(("v_sqrt", "v_rcp")) else 1
                if room(g) >= cost and not any(b_.startswith(("v_sqrt", "v_rcp")) for b_ in back[g]):
                    back[g].append(ops.pop(0))
                else:
                    g += 1
            rest = ops
        LG = Track("lgkm", ["w0"]*4 + ["w1"]*4)
        VM = Track("vm", [f"W{i}" for i in range(9)] + [f"X{i>>1}" for i in range(8)] if not z0 else ([] if w1in else ["W8"]*9))
        for g in range(NG):
            txt, needs = M[g]
            if needs:
                n_ = LG.need(needs)
                if n_ is not None:
                    A(f"s_waitcnt lgkmcnt({n_})")
            if not (cfg.get("nostat") and not needs and mode != "first") and not (cfg.get("noc") and needs and needs[0][0] == "c" and mode != "first"):
                A(txt)
            if front[g] is not None and cfg.get("noc") and front[g][2][0] == "c" and front[g][2] != "cw" and mode != "first":
                LG.issue(front[g][2])
                A("ds_read_b32 v63, v0")
            elif front[g] is not None:
                kind, s_, tag, nd_ = front[g]
                if nd_:
                    n_ = (VM if nd_[0] == "vm" else LG).need([nd_[1]])
                    if n_ is not None:
                        A(f"s_waitcnt {'vmcnt' if nd_[0] == 'vm' else 'lgkmcnt'}({n_})")
                A(s_)
                (LG if kind == "l" else VM).issue(tag)
            for s_ in back[g]:
                A(s_)
            if g == gb and mode != "last":
                assert VM.done > 8
                A("s_waitcnt lgkmcnt(0)")
                LG.drain()
                A("s_barrier")
                for r_ in (CQ, CQ+1, CG, CC, CC+1, CC+2):
                    A(f"v_add_u32 v{r_}, s59, v{r_}")
        if mode in ("loop", "first"):
            assert [t for t in VM.q[17:]] == [f"W{i}" for i in range(9)] + [f"X{i>>1}" for i in range(8)], VM.q
        for s_ in rest:
            A(s_)

    A("s_mov_b32 s54, 4")
    A("s_mov_b32 s33, 0")
    A(f"s_mov_b32 s55, {SLOT}")
    A(f"s_mov_b32 s56, {-2*SLOT & 0xffffffff}")
    superstep(0, "first")
    if cfg.get("stamp") == 4:
        for k in range(1, 8):
            ST(4)
            superstep(k & 1, "loop")
        ST(4)
        A("s_branch K1_GEMM_END")
    A("s_branch K1_GEMM1")
    A.raw(".p2align 5")
    A.label("K1_GEMM")
    superstep(0, "loop")
    A.label("K1_GEMM1")
    superstep(1, "loop")
    A("s_sub_u32 s54, s54, 1")
    A("s_cmp_lg_u32 s54, 0")
    A("s_cbranch_scc1 K1_GEMM")
    A.label("K1_GEMM_END")
    ST(3)
    superstep(0, "pre")
    ST(3)
    ST(4)
    superstep(1, "last")
    ST()
    ST(4)
    A("s_mov_b32 s55, 0")
    A(f"s_mov_b32 s30, {3*12288}")
    A("s_cmp_eq_u32 s28, 0")
    A("s_cselect_b32 s59, 5, 1")
    A("s_lshl_b32 s33, s32, 2")
    A("s_add_u32 s33, s33, s28")
    A(f"s_mul_i32 s34, s33, {4*RT_STRIDE}")
    srd(A, 24, 52, off_sgpr=34, off_imm=OF_OFF, size=4*RT_STRIDE)
    A("s_bfe_u32 s33, s2, 0x20003")
    A("s_mul_i32 s33, s33, 10240")
    A(f"s_sub_u32 s34, {240*40960}, s33")
    srd(A, 8, 52, off_sgpr=33, off_imm=WP_OFF, size_sgpr=34)
    A("s_and_b32 s33, s2, 1")
    A("s_lshl_b32 s33, s33, 5")
    A("s_lshr_b32 s34, s2, 3")
    A("s_add_u32 s33, s33, s34")
    A("s_mul_i32 s34, s33, 245760")
    srd(A, 4, 52, off_sgpr=34, off_imm=XCH_OFF, size=245760)
    A("s_lshr_b32 s33, s33, 2")
    A(f"s_mul_i32 s33, s33, {8*RT_STRIDE}")
    srd(A, 12, 52, off_sgpr=33, off_imm=OF_OFF, size=8*RT_STRIDE)
    A("s_mov_b32 s56, 0")
    A("s_mov_b32 s57, 0")
    A("s_waitcnt lgkmcnt(0)")
    A("s_barrier")
    ST(3)
    CT = 48
    for i in range(4):
        A(f"ds_read_b128 v[{CT+4*i}:{CT+4*i+3}], v36 offset:{64*(11-(i^1))}")
    A(f"s_mov_b32 s34, {16*1280}")
    npk = 0
    for u in range(5, -1, -1):
        cb_ = CT + 8*((5-u) & 1)
        A("s_waitcnt lgkmcnt(2)" if u > 0 else "s_waitcnt lgkmcnt(0)")
        for qt in range(3, -1, -1):
            B = QA + (u*4+qt)*8
            pa = vr(PA+2*qt, 2)
            if npk < 10:
                A(f"s_add_u32 m0, s58, {1024*npk}")
            for p in range(4):
                A(f"v_pk_fma_f32 {vr(B+2*p, 2)}, {pa}, {vr(cb_+2*p, 2)}, {vr(B+2*p, 2)} op_sel_hi:[0,1,1]")
            for p in range(4):
                A(f"v_pk_mul_f32 {vr(B+2*p, 2)}, {pa}, {vr(B+2*p, 2)} op_sel:[1,0]")
            for p in range(3, -1, -1):
                A(f"v_cvt_pk_bf16_f32 v{QF+(u*4+qt)*4+p}, v{B+2*p}, v{B+2*p+1}")
            if npk < 10:
                A(f"buffer_load_dwordx4 v{PD+npk%5}, s[40:43], {'0' if npk < 5 else 's34'} offen nt lds")
                npk += 1
        if u >= 2:
            for i in range(2):
                A(f"ds_read_b128 v[{cb_+4*i}:{cb_+4*i+3}], v36 offset:{64*(2*(u-2)+i)}")
    ST(3)
    HC = 64
    SO = 24
    for t in range(6):
        A(f"ds_read_b128 v[{HC+4*t}:{HC+4*t+3}], v36 offset:{64*(12+t)}")
    A(f"v_lshlrev_b32 v{PS}, 4, v0")
    A(f"s_mul_i32 s33, s28, {2*RT_STRIDE}")
    A(f"v_add_u32 v{PV}, s33, v{PS}")
    A(f"v_add_u32 v{PV+1}, {RT_STRIDE-2048}, v{PV}")
    A("s_lshr_b32 s33, s28, 1")
    A("s_mul_i32 s33, s33, 40960")
    A("s_and_b32 s35, s28, 1")
    A("s_mul_i32 s35, s35, 5120")
    A("s_add_u32 s33, s33, s35")
    A(f"v_add_u32 v{PV+2}, s33, v{PS}")
    A(f"v_add_u32 v{PV+3}, 4096, v{PV+2}")
    A("s_bfe_u32 s33, s2, 0x20001")
    A("s_mul_i32 s40, s33, 12")
    A("s_add_u32 s40, s40, 192")
    A("s_mul_i32 s43, s33, 48")
    A("s_lshl_b32 s41, s28, 12")
    A("s_mul_i32 s42, s28, 5120")
    A("s_add_u32 s42, s42, 16384")
    A(f"v_lshlrev_b32 v{SO}, 3, v0")
    A("s_mul_i32 s35, s31, 3")
    A("s_add_u32 s36, s35, 1")
    A("s_lshr_b32 s36, s36, 1")
    A("s_add_u32 s36, s36, 192")
    A("s_lshl_b32 s37, s36, 10")
    A("s_lshr_b32 s35, s35, 1")
    A("s_add_u32 s35, s35, 193")
    A("s_and_b32 s36, s31, 1")
    A("s_sub_u32 s35, s35, s36")
    A("s_lshl_b32 s35, s35, 10")
    A("s_lshl_b32 s36, s36, 9")
    A("s_add_u32 s38, s35, s36")
    A("s_waitcnt lgkmcnt(0)")
    cnt = 0
    for qt in range(4):
        HP = 148 + 6*(qt & 1)
        for t in range(3):
            G = 96 + (cnt % 4)*12
            U, T0 = G + 4, G + 8
            cnt += 1
            pa, pb = vr(PA+2*qt, 2), vr(PB+2*qt, 2)
            for r in range(4):
                A(f"v_accvgpr_read_b32 v{G+r}, a{GA+(t*4+qt)*4+r}")
            for r in range(4):
                A(f"v_accvgpr_read_b32 v{U+r}, a{GA+((t+3)*4+qt)*4+r}")
            for p in range(2):
                A(f"v_pk_fma_f32 {vr(G+2*p, 2)}, {pa}, {vr(HC+4*t+2*p, 2)}, {vr(G+2*p, 2)} op_sel_hi:[0,1,1]")
            for p in range(2):
                A(f"v_pk_fma_f32 {vr(U+2*p, 2)}, {pa}, {vr(HC+4*(t+3)+2*p, 2)}, {vr(U+2*p, 2)} op_sel_hi:[0,1,1]")
            for p in range(2):
                A(f"v_pk_mul_f32 {vr(T0+2*p, 2)}, {pb}, {vr(G+2*p, 2)} op_sel_hi:[0,1]")
            for r in range(4):
                A(f"v_exp_f32 v{T0+r}, v{T0+r}")
            for p in range(2):
                A(f"v_pk_mul_f32 {vr(G+2*p, 2)}, {vr(G+2*p, 2)}, {vr(U+2*p, 2)}")
            for p in range(2):
                A(f"v_pk_fma_f32 {vr(T0+2*p, 2)}, {vr(T0+2*p, 2)}, {pb}, {pb} op_sel:[0,1,1]")
            for r in range(4):
                A(f"v_rcp_f32 v{T0+r}, v{T0+r}")
            A("s_nop 0")
            for p in range(2):
                A(f"v_pk_mul_f32 {vr(G+2*p, 2)}, {vr(G+2*p, 2)}, {vr(T0+2*p, 2)}")
            for p in range(2):
                A(f"v_cvt_pk_bf16_f32 v{HP+2*t+p}, v{G+2*p}, v{G+2*p+1}")
            if t == 1:
                A(f"buffer_store_dwordx4 {vr(HP, 4)}, v{PS}, s[24:27], s37 offen sc1")
                A(f"s_add_u32 s37, s37, {RT_STRIDE}")
            if t == 2:
                A(f"buffer_store_dwordx2 {vr(HP+4, 2)}, v{SO}, s[24:27], s38 offen sc1")
                A(f"s_add_u32 s38, s38, {RT_STRIDE}")
    ST()
    for i in range(4):
        A(f"v_mov_b32 v{18+i}, -1")
    A("v_and_b32 v25, 7, v0")
    A("v_lshlrev_b32 v25, 2, v25")
    A("v_mov_b32 v23, 0")
    A("s_mov_b64 exec, 3")
    A("global_store_dword v1, v23, s[52:53] sc1")
    A("s_mov_b64 exec, -1")
    for i in range(16):
        A(f"v_mov_b32 v{NM+i}, 0")
    A("s_waitcnt vmcnt(19)")
    ST(3)
    A.label("K1_ATT")
    A("v_mov_b32 v36, 0")
    A("s_lshl_b32 s33, s28, 2")
    A(f"s_add_u32 s33, s33, {FREG+32}")
    A("v_mov_b32 v37, s33")
    A("v_and_b32 v38, 3, v0")
    A("v_lshlrev_b32 v38, 2, v38")
    A(f"v_add_u32 v38, {FREG+32}, v38")
    A("ds_write_b32 v37, v36")
    for i in range(8):
        A(f"v_mov_b32 v{LS+i}, 0")
    A("s_barrier")
    for kt in range(2):
        for u in range(6):
            A(k_read(0, kt, u))
    A("s_waitcnt lgkmcnt(6)")
    for kt in range(2):
        if kt == 1:
            A("s_waitcnt lgkmcnt(0)")
        for qt in range(4):
            d = vr(sreg(0, qt, kt), 4)
            for u in range(6):
                A(mfma(d, ar(KF+kt*24+u*4, 4), qf(qt, u), vr(NM+qt*4, 4) if u == 0 else d))
    A("s_barrier")
    for u in range(6):
        A(k_read(1, 0, u))
    A("s_nop 0")
    A("s_cmp_lg_u32 s55, 0")
    A("s_cbranch_scc1 K1_SKIPMAX")
    for qt in range(4):
        b = sreg(0, qt, 0)
        A(f"v_max3_f32 v{30+qt}, v{b}, v{b+1}, v{b+2}")
        A(f"v_max3_f32 v{30+qt}, v{30+qt}, v{b+3}, v{b+4}")
        A(f"v_max3_f32 v{30+qt}, v{30+qt}, v{b+5}, v{b+6}")
        A(f"v_max_f32 v{30+qt}, v{30+qt}, v{b+7}")
    xlane_reduce(A, "v_max_f32", [30, 31, 32, 33], 14)
    for qt in range(4):
        b = sreg(0, qt, 0)
        for r in range(4):
            A(f"v_sub_f32 v{NM+qt*4+r}, 0, v{30+qt}")
        for e in range(8):
            A(f"v_sub_f32 v{b+e}, v{b+e}, v{30+qt}")
    A.label("K1_SKIPMAX")
    ST(3)
    E, S = softmax_ops(0, (0, 1))
    for e in E:
        A(e)
    A("s_nop 0")
    for _, s in S:
        A(s)
    ST()
    A("s_mov_b32 s54, 15")
    A("s_waitcnt lgkmcnt(0)")
    gen_stage(A, 0, first=True)
    A("s_branch K1_LOOP1")
    A.raw(".p2align 6")
    A.label("K1_LOOP")
    gen_stage(A, 0, extra=[(90, "s_sub_u32 s54, s54, 1")])
    A.label("K1_LOOP1")
    gen_stage(A, 1)
    gen_stage(A, 2, extra=[(93, "s_cmp_eq_u32 s54, 0")])
    A("s_cbranch_scc1 K1_TAIL")
    gen_stage(A, 3, extra=[(93, "s_cmp_lg_u32 s54, s59")])
    A("s_cbranch_scc1 K1_LOOP")
    A("s_cmp_eq_u32 s54, 1")
    A("s_cbranch_scc0 K1_REPORT")
    A("global_load_dword v23, v25, s[64:65] sc1")
    A("s_branch K1_LOOP")
    A.label("K1_REPORT")
    A("s_mov_b32 s59, 1")
    A("s_and_b32 s33, s2, 7")
    A("s_lshl_b32 s33, s33, 2")
    A("v_mov_b32 v14, 1")
    A("v_mov_b32 v16, s33")
    A("s_mov_b64 exec, 1")
    A("global_atomic_add v16, v14, s[64:65] sc1")
    A("s_mov_b64 exec, -1")
    A("s_branch K1_LOOP")
    if cfg.get("nb", 0):
        for sg in range(4):
            A.label(f"K1_SY{sg}_WAIT")
            A("ds_read_b32 v34, v38")
            A("s_waitcnt lgkmcnt(0)")
            A("v_cmp_lt_u32 vcc, v34, v36")
            A("s_nop 1")
            A(f"s_cbranch_vccnz K1_SY{sg}_WAIT")
            A(f"s_branch K1_SY{sg}")
    A.label("K1_TAIL")
    gen_tail(A, 3)
    ST()
    for qt in range(4):
        A(f"v_add_f32 v{30+2*qt}, v{LS+2*qt}, v{LS+2*qt+1}")
    xlane_reduce(A, "v_add_f32", [30, 32, 34, 36], 14)
    A(f"v_mov_b32 v14, {hex(f2u(2.0**30))}")
    A("v_cmp_nlt_f32 vcc, v30, v14")
    A("s_mov_b64 s[36:37], vcc")
    for qt in range(1, 4):
        A(f"v_cmp_nlt_f32 vcc, v{30+2*qt}, v14")
        A("s_or_b64 s[36:37], s[36:37], vcc")
    A("s_cmp_lg_u64 s[36:37], 0")
    A("s_cselect_b32 s34, 1, 0")
    A("v_mov_b32 v14, s34")
    A("v_mov_b32 v15, s28")
    A("v_lshlrev_b32 v15, 2, v15")
    A(f"v_add_u32 v15, {FREG}, v15")
    A("ds_write_b32 v15, v14")
    A(f"v_mov_b32 v15, {FREG}")
    A("s_waitcnt lgkmcnt(0)")
    A("s_barrier")
    A("s_cmp_lg_u32 s55, 0")
    A("s_cbranch_scc1 K1_EPI")
    A("ds_read_b128 v[16:19], v15")
    A("s_waitcnt lgkmcnt(0)")
    A("v_or_b32 v16, v16, v17")
    A("v_or_b32 v18, v18, v19")
    A("v_or_b32 v16, v16, v18")
    A("s_nop 0")
    A("v_readfirstlane_b32 s34, v16")
    A("s_cmp_eq_u32 s34, 0" if not cfg.get("abl", 0) else "s_cmp_eq_u32 s34, s34")
    A("s_cbranch_scc1 K1_EPI")
    A("s_mov_b32 s55, 1")
    A("v_and_b32 v34, 15, v0")
    A("v_mul_u32_u24 v34, 384, v34")
    A("v_lshrrev_b32 v35, 4, v0")
    A("v_lshl_add_u32 v34, v35, 4, v34")
    for qt in range(4):
        A(f"v_mov_b32 v{30+qt}, 0xff800000")
    A("s_mov_b32 s34, 0")
    A.label("K1_MAXLOOP")
    for u in range(6):
        A(f"buffer_load_dwordx4 {ar(KF+u*4, 4)}, v34, s[16:19], s34 offen offset:{64*u}")
    A("s_waitcnt vmcnt(0)")
    for qt in range(4):
        d = vr(sreg(0, qt, 0), 4)
        for u in range(6):
            A(mfma(d, ar(KF+u*4, 4), qf(qt, u), "0" if u == 0 else d))
    A("s_nop 15")
    for qt in range(4):
        b = sreg(0, qt, 0)
        A(f"v_max3_f32 v{30+qt}, v{30+qt}, v{b}, v{b+1}")
        A(f"v_max3_f32 v{30+qt}, v{30+qt}, v{b+2}, v{b+3}")
    A("s_add_u32 s34, s34, 6144")
    A("s_cmp_lt_u32 s34, 786432")
    A("s_cbranch_scc1 K1_MAXLOOP")
    xlane_reduce(A, "v_max_f32", [30, 31, 32, 33], 34)
    for qt in range(4):
        for r in range(4):
            A(f"v_sub_f32 v{NM+qt*4+r}, 0, v{30+qt}")
    A("s_mov_b32 s46, 0")
    A("s_mov_b32 s50, 0")
    A("v_mov_b32 v35, 0")
    A("s_barrier")
    for kind, i in [("K", 0), ("K", 1), ("V", 0), ("K", 2), ("V", 1), ("K", 3), ("V", 2)]:
        emit_plain(A, kv_dma(kind, i))
    A(f"s_mov_b32 s30, {3*12288}")
    A("s_waitcnt vmcnt(0)")
    A("s_branch K1_ATT")
    A.label("K1_EPI")
    gen_proj(A, cfg, ST)
    ST.dump(28)
    A.label("K1_END")
    A("s_endpgm")
    kernel_desc(A, name, 512, 102 if ST.on else 72, 256)


PSLOT = 36864


def p_fill_b(ffn=True):
    L = [("s", "s_lshl_b32 s37, s36, 10"), ("s", "s_add_u32 m0, s39, s41")]
    for i in range(4):
        L.append(("d", f"buffer_load_dwordx4 v{PV+(i>>1)}, s[12:15], s37 offen offset:{1024*i} sc1 lds"))
    return L


def p_fill_a():
    L = [("s", "s_mul_i32 s38, s36, 40960"), ("s", "s_add_u32 m0, s39, s42")]
    for i in range(4):
        L.append(("d", f"buffer_load_dwordx4 v{PV+2}, s[8:11], s38 offen offset:{1024*i} sc1 lds"))
    L.append(("s", "s_add_u32 m0, m0, 4096"))
    L.append(("d", f"buffer_load_dwordx4 v{PV+3}, s[8:11], s38 offen sc1 lds"))
    return L


def p_at(m):
    return [("s", f"s_add_u32 s36, s40, {2*m}" if m < 6 else f"s_add_u32 s36, s43, {2*(m-6)}"),
            ("s", f"s_mov_b32 s39, {(m % 4)*PSLOT}")]


def tagd(L, tag):
    return [e if e[0] != "d" else (e[0], e[1], tag) for e in L]


PV = 26


def gen_proj(A, cfg, ST):
    FA, SA, OS, TM = 32, 112, 160, 192
    RB = 4
    L16, L8 = 16, 17
    VM = Track("vm", ["G0"]*9 + ["G1"]*9)

    def send(P, t, kind, tag):
        L = [("s", f"s_add_u32 s34, s{44+t}, {kind*7680 + (t-1)*2560}")]
        L.append(("d", f"buffer_store_dwordx4 {vr(P, 4)}, v{L16}, s[4:7], s34 offen sc1", tag))
        L.append(("d", f"buffer_store_dwordx4 {vr(P+4, 4)}, v{L16}, s[4:7], s34 offen offset:1024 sc1", tag))
        L.append(("d", f"buffer_store_dwordx2 {vr(P+8, 2)}, v{L8}, s[4:7], s34 offen offset:2048 sc1", tag))
        return L

    RC = 18
    for qt in range(4):
        A(f"v_rcp_f32 v{RC+2*qt}, v{30+2*qt}")
    A(f"v_lshlrev_b32 v{L16}, 4, v0")
    A(f"v_lshlrev_b32 v{L8}, 3, v0")
    A("s_mul_i32 s33, s31, 6144")
    for qt in range(4):
        A(f"s_add_u32 s{16+2*qt}, s33, {qt*RT_STRIDE}")
        A(f"s_add_u32 s{17+2*qt}, s33, {qt*RT_STRIDE+4096}")
    stores = []
    for qt in range(4):
        for u in range(6):
            so, im = (16+2*qt, 1024*u) if u < 4 else (17+2*qt, 1024*(u-4))
            stores.append(("d", f"buffer_store_dwordx4 {vr(OS+(qt*6+u)*4, 4)}, v{L16}, s[24:27], s{so} offen offset:{im}" + ["", " nt", " sc0", " sc1"][cfg.get("ofl", 3)], "O"))
    g2 = tagd(p_at(2) + p_fill_b() + p_fill_a(), "G2")
    plan = {k: "g2" for k in range(9)}
    ost = cfg.get("ost", 24)
    g3e = cfg.get("g3e", 0)
    g3 = tagd(p_at(3) + p_fill_b() + p_fill_a(), "G3") if g3e else []
    if g3e:
        g2 = g2 + g3
    cnt = 0
    for qt in range(4):
        for u in range(6):
            T0 = 48 + (cnt % 4)*8
            if plan.get(cnt) == "g2":
                while g2[0][0] != "d":
                    A(g2.pop(0)[1])
            for e in range(8):
                A(f"v_accvgpr_read_b32 v{T0+e}, a{oacc(2*u+(e>>2), qt)+(e&3)}")
            if cnt in plan:
                e = g2.pop(0)
                A(e[1])
                VM.issue(e[2])
            for p in range(4):
                A(f"v_pk_mul_f32 {vr(T0+2*p, 2)}, {vr(RC+2*qt, 2)}, {vr(T0+2*p, 2)} op_sel_hi:[0,1]")
            for p in range(4):
                A(f"v_cvt_pk_bf16_f32 v{OS+cnt*4+p}, v{T0+2*p}, v{T0+2*p+1}")
            if g3e and cnt in plan:
                while g2[0][0] != "d":
                    A(g2.pop(0)[1])
                    if g2[0][0] == "d":
                        A("s_nop 0")
                e = g2.pop(0)
                A(e[1])
                VM.issue(e[2])
            elif g3e:
                for _ in range(((cnt - 8) * ost) // 15 - ((cnt - 9) * ost) // 15):
                    e = stores.pop(0)
                    A(e[1])
                    VM.issue(e[2])
            elif ((cnt + 1) * ost) // 24 > (cnt * ost) // 24:
                e = stores.pop(0)
                A(e[1])
                VM.issue(e[2])
            cnt += 1
    assert not g2
    A("s_bfe_u32 s29, s2, 0x20001")
    A("s_and_b32 s30, s2, 1")
    A("s_lshl_b32 s30, s30, 3")
    A("s_lshr_b32 s33, s2, 5")
    A("s_add_u32 s30, s30, s33")
    A("s_lshr_b32 s33, s28, 1")
    A("s_lshl_b32 s33, s33, 2")
    A("s_mul_i32 s35, s28, 15360")
    for t in range(4):
        A(f"s_add_u32 s34, s29, {t}")
        A("s_and_b32 s34, s34, 3")
        A(f"s_mul_i32 s{44+t}, s34, 61440")
        A(f"s_add_u32 s{44+t}, s{44+t}, s35")
        A("s_add_u32 s34, s34, s33")
        A("s_lshl_b32 s34, s34, 11")
        A(f"v_add_u32 v{RB+t}, s34, v{L16}")
        A(f"v_add_u32 v{RB+5+t}, s34, v{L8}")
    A("s_and_b32 s34, s28, 1")
    A("s_mul_i32 s34, s34, 5120")
    A("s_add_u32 s34, s34, 16384")
    A(f"v_add_u32 v{RB+4}, s34, v{L16}")
    A("s_lshl_b32 s34, s30, 3")
    A("s_add_u32 s34, s34, s33")
    A("s_add_u32 s34, s34, s29")
    A("s_lshl_b32 s34, s34, 4")
    A("v_and_b32 v3, 15, v0")
    A("v_add_u32 v3, s34, v3")
    A("v_mul_u32_u24 v3, 1280, v3")
    A("v_lshrrev_b32 v2, 4, v0")
    A("v_lshl_add_u32 v3, v2, 3, v3")
    A("s_bfe_u32 s34, s2, 0x20003")
    A("s_lshl_b32 s34, s34, 1")
    A("s_and_b32 s35, s28, 1")
    A("s_add_u32 s34, s34, s35")
    A("s_mul_i32 s34, s34, 160")
    A("v_add_u32 v3, s34, v3")
    A("s_lshl_b32 s34, s30, 1")
    A("s_lshr_b32 s35, s28, 1")
    A("s_add_u32 s34, s34, s35")
    A("s_lshl_b32 s34, s34, 7")
    A("s_lshl_b32 s35, s29, 5")
    A("s_add_u32 s34, s34, s35")
    A(f"s_add_u32 s34, s34, {FLG_OFF}")
    A("v_and_b32 v2, 7, v0")
    A("v_lshl_add_u32 v2, v2, 2, s34")
    A(f"s_mov_b32 s48, {PSLOT}")
    A(f"s_mov_b32 s49, {-3*PSLOT & 0xffffffff}")
    ST()

    def reads(n, k2):
        L = []
        split = n is not None and n < 12 and n % 3 == 1
        order = [("A", 0), ("B", 0), ("B", 1), ("B", 2), ("B", 3), ("A", 1), ("A", 2), ("A", 3), ("A", 4)]
        for kind, i in order:
            if kind == "B" and split:
                L.append(f"ds_read2_b64 {ar(36*k2+4*i, 4)}, v{RB+5+i} offset0:{128*k2} offset1:{128*k2+64}")
            elif kind == "B":
                L.append(f"ds_read_b128 {ar(36*k2+4*i, 4)}, v{RB+i} offset:{1024*k2}")
            else:
                L.append(f"ds_read_b128 {ar(36*k2+16+4*i, 4)}, v{RB+4} offset:{10240*k2+1024*i}")
        return L

    def half(k2, acc0, gaps, zero=False):
        for g in range(20):
            c, t = divmod(g, 4)
            if cfg.get("psn", 1) and c % 2:
                t = 3 - t
            acc = vr(acc0 + 20*t + 4*c, 4)
            A(mfma(acc, ar(36*k2+16+4*c, 4), ar(36*k2+4*t, 4), "0" if zero else acc))
            for e in gaps[g]:
                if callable(e):
                    e()
                elif isinstance(e, tuple):
                    A(e[0])
                    VM.issue(e[1])
                else:
                    A(e)

    RP = [0, 1, 3, 4, 5, 7, 8, 9, 11]

    def place(gaps, L, pos):
        pos = list(pos)
        pend = []
        for e in L:
            if e[0] != "d":
                pend.append(e[1])
                continue
            g = pos.pop(0)
            for k, s_ in enumerate(pend):
                gaps[max(0, g - 1 - (len(pend) - 1 - k) // 2)].append(s_)
            pend = []
            gaps[g].insert(0, (e[1], e[2]))
        assert not pend

    def spread(n, lo=2, hi=38):
        cand = [g for g in range(lo, hi + 1) if (g % 20) not in RP]
        assert n <= len(cand), (n, len(cand))
        return [cand[(k*len(cand))//n] for k in range(n)]

    def base_adv(gaps, m, wide):
        d = PSLOT if (m + 1) % 4 else -3*PSLOT
        regs = list(range(RB, RB+5)) + (list(range(RB+5, RB+9)) if wide else [])
        g = len(gaps) - 8
        for i, r in enumerate(regs):
            gaps[g + (i*7)//len(regs)].append(f"v_add_u32 v{r}, s{48 if d > 0 else 49}, v{r}")

    def set_flag(lane, tag):
        def fn():
            n_ = VM.need([tag])
            if n_ is not None:
                A(f"s_waitcnt vmcnt({n_})")
            A("v_mov_b32 v14, 1")
            A(f"s_mov_b64 exec, {1 << lane}")
            A("global_store_dword v1, v14, s[52:53] sc1")
            A("s_mov_b64 exec, -1")
            VM.issue("flag")
        return fn

    def check_flags(label, vaddr, flush=None):
        if flush is None:
            n_ = VM.need(["poll" + label])
            if n_ is not None:
                A(f"s_waitcnt vmcnt({n_})")
        A("v_cmp_ne_u32 vcc, 0, v15")
        A("s_cmp_eq_u64 vcc, exec")
        A(f"s_cbranch_scc1 {label}_OK")
        if flush is not None:
            for e in flush:
                A(e[1])
            A("s_mov_b32 s26, 0")
            A("v_mov_b32 v14, 1")
            A("s_waitcnt vmcnt(0)")
            A("s_mov_b64 exec, 1")
            A("global_store_dword v1, v14, s[52:53] sc1")
        poll(A, label, vaddr, 15, "s[52:53]", "-1", "0")

    def sbody(m, ops, extra=None):
        gaps = [[] for _ in range(40)]
        for k, s_ in enumerate(reads(2*m+2, 0)):
            gaps[RP[k]].append(s_)
        for k, s_ in enumerate(reads(2*m+3, 1)):
            gaps[20+RP[k]].append(s_)
        nd = sum(e[0] == "d" for e in ops)
        place(gaps, ops, spread(nd) if nd else [])
        gaps[19].append("s_waitcnt lgkmcnt(0)")
        base_adv(gaps, m + 1, m + 1 < 5)
        for g, e in (extra or []):
            gaps[g].append(e)
        n_ = VM.need([f"G{m+1}"])
        A("s_waitcnt lgkmcnt(0)" + (f" vmcnt({n_})" if n_ is not None else ""))
        A("s_barrier")
        half(1, FA if 2*m+1 < 12 else SA, gaps[:20])
        half(0, FA if 2*m+2 < 12 else SA, gaps[20:], zero=(2*m+2 == 12))
        if m < 12:
            ST(2)

    def full(m):
        return tagd(p_at(m) + p_fill_b(m < 6) + p_fill_a(), f"G{m}")

    def only_a(m):
        return tagd(p_at(m) + p_fill_a(), f"G{m}")

    def only_b(m):
        return tagd(p_at(m) + p_fill_b(m < 6), f"G{m}")

    def mix(*lists):
        pos = []
        for gi, L in enumerate(lists):
            g, cur = [], []
            for e in L:
                cur.append(e)
                if e[0] == "d":
                    g.append(cur)
                    cur = []
            for k, e in enumerate(g):
                pos.append(((k + 0.5) / len(g), gi, e))
        pos.sort(key=lambda x: (x[0], x[1]))
        return [e for _, _, grp in pos for e in grp]

    ST(2)
    n_ = VM.need(["G0"])
    A(f"s_waitcnt vmcnt({n_})")
    A("s_barrier")
    for s_ in reads(0, 0):
        A(s_)
    A("s_waitcnt lgkmcnt(0)")
    gaps = [[] for _ in range(20)]
    for k, s_ in enumerate(reads(1, 1)):
        gaps[RP[k]].append(s_)
    fl, pl = cfg.get("fl", -1), cfg.get("pl", 2)
    nrest = len(stores)
    take = lambda n: [stores.pop(0) for _ in range(min(n, len(stores)))]
    ops = mix(only_a(3) if not g3e else [], take((nrest + 4) // 5 if fl >= 1 else (nrest + 2) // 3 if fl == 0 else nrest))
    if ops:
        place(gaps, ops, spread(sum(e[0] == "d" for e in ops), 2, 18))
    if fl == -1:
        gaps[19].append(set_flag(0, "O"))
    base_adv(gaps, 0, True)
    half(0, FA, gaps, zero=True)
    pend_b = []
    for m in range(5):
        ops = (only_b(3) if m == 0 and not g3e else [])
        if m + 4 < 6 or m > pl:
            ops += pend_b + full(m + 4)
            pend_b = []
        else:
            ops += only_a(m + 4)
            pend_b += only_b(m + 4)
        st_ = take((len(stores) + 1) // 2 if (m == 0 and fl >= 1) else len(stores))
        ex_ = []
        if m == fl:
            ex_.append((39, set_flag(0, "O")))
        if m == pl:
            ex_.append((cfg.get("pollat", 6), ("global_load_dword v15, v2, s[52:53] sc1", "pollK2_PO")))
        sbody(m, (st_ + ops if cfg.get("stfirst") else mix(ops, st_)) if st_ else ops, extra=ex_)
        if m == pl:
            ST()
            check_flags("K2_PO", 2)
            ST()
    assert not pend_b and not stores and fl < pl
    cv = []
    for t in range(1, 4):
        for q in range(10):
            cv.append(f"v_cvt_pk_bf16_f32 v{TM+10*(t-1)+q}, v{FA+20*t+2*q}, v{FA+20*t+2*q+1}")
    sbody(5, full(9), extra=[(28 + k // 2, c_) for k, c_ in enumerate(cv[:20])])
    fs = [send(TM+10*(t-1), t, 1, "F") for t in range(1, 4)]
    if cfg.get("nofsc"):
        fs = [[(e[0], e[1].replace(" sc1", "")) + tuple(e[2:]) for e in f] for f in fs]
    sbody(6, mix(full(10), fs[0]), extra=[(k, c_) for k, c_ in enumerate(cv[20:])])
    sbody(7, mix(full(11), fs[1]))
    sbody(8, mix(full(12), fs[2]))
    sbody(9, full(13))
    sbody(10, full(14))
    sbody(11, full(15), extra=[(0, set_flag(1, "F"))])
    ST()
    assert [t for t in VM.q if t != "pf"][-19:] == ["G14"]*9 + ["flag"] + ["G15"]*9, VM.q[-30:]
    A(f"s_add_u32 s36, s43, {2*(16-6)}")
    A(f"s_mov_b32 s39, {(16 % 4)*PSLOT}")
    A(f"s_mov_b32 s35, {(13 % 4)*PSLOT}")
    A("s_mov_b32 s54, 14")
    DP = [2, 6, 10, 14, 18, 22, 26, 30, 34]
    gaps = [[] for _ in range(40)]
    for k, s_ in enumerate(reads(None, 0)):
        gaps[RP[k]].append(s_)
    for k, s_ in enumerate(reads(None, 1)):
        gaps[20+RP[k]].append(s_)
    g, nd = 0, 0
    for e in p_fill_b(False) + p_fill_a():
        if e[0] == "d":
            g = DP[nd]
            nd += 1
            gaps[g].append(e[1])
        else:
            gaps[g] += list(e[1:])
            g += 1
    gaps[16] += ["s_add_u32 s36, s36, 2", f"s_add_u32 s39, s39, {PSLOT}"]
    gaps[17] += [f"s_cmp_eq_u32 s39, {4*PSLOT}", "s_cselect_b32 s39, 0, s39"]
    gaps[19] += ["s_waitcnt lgkmcnt(0)"]
    gaps[12] += [f"s_add_u32 s35, s35, {PSLOT}", "s_sub_u32 s54, s54, 1"]
    gaps[13] += [f"s_cmp_eq_u32 s35, {4*PSLOT}", "s_cselect_b32 s50, s49, s48"]
    gaps[32] += [f"s_cmp_eq_u32 s35, {4*PSLOT}", "s_cselect_b32 s35, 0, s35"]
    for i, g_ in enumerate((33, 33, 35, 35, 37)):
        gaps[g_].append(f"v_add_u32 v{RB+i}, s50, v{RB+i}")
    gaps[38] += ["s_cmp_lg_u32 s54, 0"]
    pa_ = cfg.get("pabl", 0)
    gaps = [[e for e in g if not ((pa_ & 1 and e.startswith("buffer_load")) or (pa_ & 2 and e.startswith("ds_read")))] for g in gaps]
    A.label("K2_LOOP")
    A("s_waitcnt vmcnt(18) lgkmcnt(0)")
    if not pa_ & 4:
        A("s_barrier")
    half(1, SA, gaps[:20])
    half(0, SA, gaps[20:])
    A("s_cbranch_scc1 K2_LOOP")
    ST()
    VM.q, VM.done = ["G27"]*9 + ["G28"]*9 + ["G29"]*9, 0
    RF, RS, T, XR, XF_ = 52, 82, 192, 222, 232
    FS = FA

    def recv(P, off, tag):
        return [("s", f"s_add_u32 s34, s44, {off}"),
                ("d", f"buffer_load_dwordx4 {vr(P, 4)}, v{L16}, s[4:7], s34 offen sc1", tag),
                ("d", f"buffer_load_dwordx4 {vr(P+4, 4)}, v{L16}, s[4:7], s34 offen offset:1024 sc1", tag),
                ("d", f"buffer_load_dwordx2 {vr(P+8, 2)}, v{L8}, s[4:7], s34 offen offset:2048 sc1", tag)]
    B = Asm()
    B("s_lshr_b32 s33, s2, 3")
    B("s_and_b32 s34, s2, 1")
    B("s_lshl_b32 s34, s34, 5")
    B("s_add_u32 s33, s33, s34")
    B("s_lshl_b32 s33, s33, 2")
    B("s_add_u32 s33, s33, s28")
    B("s_lshl_b32 s33, s33, 4")
    B(f"s_add_u32 s33, s33, {FLG_OFF + 0x1000}")
    B("v_and_b32 v2, 3, v0")
    B("v_lshl_add_u32 v2, v2, 2, s33")
    srd(B, 20, 60, size=2621440)
    srd(B, 16, 62, size=2621440)
    ex_ = [(k, l.strip()) for k, l in enumerate(B.L)]
    ex_.append((19, ("global_load_dword v15, v2, s[52:53] sc1", "pollK2_PF")))
    for c in range(5):
        ex_.append((22 + 3*c, (f"buffer_load_dwordx2 v[{XR+2*c}:{XR+2*c+1}], v3, s[20:23], 0 offen offset:{32*c}", "x")))
    sbody(26, [], extra=ex_)
    sbody(27, [])
    check_flags("K2_PF", 2)
    sbody(28, sum((recv(RF+10*d, 7680+2560*d, f"RF{d}") for d in range(3)), []))
    A("s_waitcnt lgkmcnt(0)")
    gaps = [[] for _ in range(20)]
    place(gaps, sum((recv(RS+10*d, 2560*d, "RS") for d in range(3)), []), [2*k+1 for k in range(9)])
    half(1, SA, gaps)
    ST()
    A("s_nop 7")
    for t in range(1, 4):
        P = SA + 20*t
        for q in range(10):
            A(f"v_cvt_pk_bf16_f32 v{P+q}, v{P+2*q}, v{P+2*q+1}")
        for e in send(P, t, 0, "S"):
            A(e[1])
            if e[0] == "d":
                VM.issue(e[2])
    for d in range(3):
        A(f"s_waitcnt vmcnt({VM.need([f'RF{d}'])})")
        for q in range(10):
            A(f"v_lshlrev_b32 v{T+2*q}, 16, v{RF+10*d+q}")
            A(f"v_and_b32 v{T+2*q+1}, 0xffff0000, v{RF+10*d+q}")
        for q in range(10):
            A(f"v_pk_add_f32 {vr(FS+2*q, 2)}, {vr(FS+2*q, 2)}, {vr(T+2*q, 2)}")
    A(f"s_mov_b32 s33, {hex(f2u(-LOG2E))}")
    for q in range(10):
        A(f"v_cvt_pk_bf16_f32 v{T+q}, v{FS+2*q}, v{FS+2*q+1}")
    for q in range(10):
        A(f"v_lshlrev_b32 v{FS+2*q}, 16, v{T+q}")
        A(f"v_and_b32 v{FS+2*q+1}, 0xffff0000, v{T+q}")
    for q in range(20):
        A(f"v_mul_f32 v{T+q}, s33, v{FS+q}")
    for q in range(20):
        A(f"v_exp_f32 v{T+q}, v{T+q}")
    for q in range(20):
        A(f"v_add_f32 v{T+q}, 1.0, v{T+q}")
    for q in range(20):
        A(f"v_rcp_f32 v{T+q}, v{T+q}")
    for q in range(10):
        A(f"v_pk_mul_f32 {vr(FS+2*q, 2)}, {vr(FS+2*q, 2)}, {vr(T+2*q, 2)}")
    for q in range(10):
        A(f"v_cvt_pk_bf16_f32 v{T+q}, v{FS+2*q}, v{FS+2*q+1}")
    for q in range(10):
        A(f"v_lshlrev_b32 v{FS+2*q}, 16, v{T+q}")
        A(f"v_and_b32 v{FS+2*q+1}, 0xffff0000, v{T+q}")
        A(f"v_lshlrev_b32 v{XF_+2*q}, 16, v{XR+q}")
        A(f"v_and_b32 v{XF_+2*q+1}, 0xffff0000, v{XR+q}")
    ST()
    A(f"s_mov_b32 s35, {SPIN_MAX if not cfg.get('sabl') else 1}")
    A(f"s_waitcnt vmcnt({VM.need(['RS'])})")
    A.label("K2_PS")
    A(f"v_max3_u32 v12, v{RS}, v{RS+1}, v{RS+2}")
    A(f"v_max3_u32 v13, v{RS+3}, v{RS+4}, v{RS+5}")
    for q in range(6, 30, 4):
        A(f"v_max3_u32 v12, v12, v{RS+q}, v{RS+q+1}")
        A(f"v_max3_u32 v13, v13, v{RS+q+2}, v{RS+q+3}")
    A("v_max_u32 v12, v12, v13")
    A("v_cmp_eq_u32 vcc, -1, v12")
    A("s_cmp_eq_u64 vcc, 0")
    A("s_cbranch_scc1 K2_PS_OK")
    A("s_sub_u32 s35, s35, 1")
    A("s_cmp_eq_u32 s35, 0")
    A("s_cbranch_scc1 K2_PS_OK")
    pm = cfg.get("pm", 0)
    if pm == 1:
        A(f"s_sleep {cfg.get('psl', 8)}")
    elif pm == 2:
        A("v_min_u32 v12, 2, v0")
        A("v_mul_u32_u24 v12, 2560, v12")
        A("v_add_u32 v12, 2556, v12")
        A.label("K2_PI")
        A("buffer_load_dword v13, v12, s[4:7], s44 offen sc1")
        A("s_waitcnt vmcnt(0)")
        A("v_cmp_eq_u32 vcc, -1, v13")
        A("s_cmp_eq_u64 vcc, 0")
        A("s_cbranch_scc1 K2_PI_OK")
        A(f"s_sleep {cfg.get('psl', 2)}")
        A("s_sub_u32 s35, s35, 1")
        A("s_cmp_gt_u32 s35, 1")
        A("s_cbranch_scc1 K2_PI")
        A.label("K2_PI_OK")
    for d in range(3):
        for e in recv(RS + 10*d, 2560*d, "RS"):
            A(e[1])
    A("s_waitcnt vmcnt(0)")
    A("s_branch K2_PS")
    A.label("K2_PS_OK")
    ST()
    for d in range(3):
        for q in range(10):
            A(f"v_lshlrev_b32 v{T+2*q}, 16, v{RS+10*d+q}")
            A(f"v_and_b32 v{T+2*q+1}, 0xffff0000, v{RS+10*d+q}")
        for q in range(10):
            A(f"v_pk_add_f32 {vr(SA+2*q, 2)}, {vr(SA+2*q, 2)}, {vr(T+2*q, 2)}")
    for q in range(10):
        A(f"v_cvt_pk_bf16_f32 v{T+q}, v{SA+2*q}, v{SA+2*q+1}")
    for q in range(10):
        A(f"v_lshlrev_b32 v{SA+2*q}, 16, v{T+q}")
        A(f"v_and_b32 v{SA+2*q+1}, 0xffff0000, v{T+q}")
    for q in range(10):
        A(f"v_pk_mul_f32 {vr(SA+2*q, 2)}, {vr(SA+2*q, 2)}, {vr(FS+2*q, 2)}")
    for q in range(10):
        A(f"v_cvt_pk_bf16_f32 v{T+q}, v{SA+2*q}, v{SA+2*q+1}")
    for q in range(10):
        A(f"v_lshlrev_b32 v{SA+2*q}, 16, v{T+q}")
        A(f"v_and_b32 v{SA+2*q+1}, 0xffff0000, v{T+q}")
    for q in range(10):
        A(f"v_pk_add_f32 {vr(SA+2*q, 2)}, {vr(SA+2*q, 2)}, {vr(XF_+2*q, 2)}")
    for q in range(10):
        A(f"v_cvt_pk_bf16_f32 v{XR+q}, v{SA+2*q}, v{SA+2*q+1}")
    for c in range(5):
        A(f"buffer_store_dwordx2 v[{XR+2*c}:{XR+2*c+1}], v3, s[16:19], 0 offen offset:{32*c}")
    ST()


HEADER = """; Kernarg layout for this problem (96 bytes, ptrs only, base s[0:1]):
;   offset  72: d_out     shape=(1, 2048, 640) dtype=bfloat16
"""


CFG = {}


def generate(cfg):
    CFG.clear()
    CFG.update(cfg)
    A = Asm()
    A.raw(HEADER.rstrip())
    A.raw(f"; @launch grid=(256,1,1) block=(256,1,1) lds={K1_LDS}")
    A.raw('.amdgcn_target "amdgcn-amd-amdhsa--gfx950"')
    gen_main(A, cfg)
    return A.text()


if __name__ == "__main__":
    for x in range(192):
        assert (x * 2731) >> 16 == x // 24 and (x * 10923) >> 16 == x // 6
    for x in range(320):
        assert (x * 3277) >> 16 == x // 20
    cfg = {}
    out = f"cdna_kernels/{NAME}.s"
    for a in sys.argv[1:]:
        if "=" in a:
            k, v = a.split("=")
            if k == "out":
                out = v
            else:
                cfg[k] = int(v)
    open(out, "w").write(generate(cfg))
    print("wrote", out)
```

```python
import sys, math, struct

NAME = "recurrent_scan__mha_block_cached__swiglu_ffn__prompt"
XN_OFF = 0
WP_OFF = 0x400000
OF_OFF = 0x1000000
RT_STRIDE = 240 * 1024
LOG2E = 1.4426950408889634


def f2u(x):
    return struct.unpack("<I", struct.pack("<f", x))[0]


class Asm:
    def __init__(self):
        self.L = []

    def __call__(self, s):
        self.L.append("    " + s)

    def label(self, s):
        self.L.append(s + ":")

    def raw(self, s):
        self.L.append(s)

    def text(self):
        return "\n".join(self.L) + "\n"


def vr(b, n=1):
    return f"v{b}" if n == 1 else f"v[{b}:{b+n-1}]"


def ar(b, n=1):
    return f"a{b}" if n == 1 else f"a[{b}:{b+n-1}]"


def sr(b, n=1):
    return f"s{b}" if n == 1 else f"s[{b}:{b+n-1}]"


def kernel_begin(A, name):
    A.raw(".text")
    A.raw(f".globl {name}")
    A.raw(".p2align 8")
    A.raw(f".type {name},@function")
    A.label(name)


def kernel_desc(A, name, nv, ns, ao):
    A.raw('.section .rodata,"a"')
    A.raw(".p2align 6")
    A.raw(f".amdhsa_kernel {name}")
    A.raw(f"  .amdhsa_next_free_vgpr {nv}")
    A.raw(f"  .amdhsa_next_free_sgpr {ns}")
    A.raw(f"  .amdhsa_accum_offset {ao}")
    A.raw("  .amdhsa_group_segment_fixed_size 0")
    A.raw("  .amdhsa_kernarg_size 96")
    A.raw("  .amdhsa_user_sgpr_count 2")
    A.raw("  .amdhsa_user_sgpr_kernarg_segment_ptr 1")
    A.raw("  .amdhsa_system_sgpr_workgroup_id_x 1")
    A.raw(".end_amdhsa_kernel")


def srd(A, d, ptr, off_sgpr=None, off_imm=0, size=None, size_sgpr=None):
    if off_sgpr is not None:
        A(f"s_add_u32 s{d}, s{ptr}, s{off_sgpr}")
        A(f"s_addc_u32 s{d+1}, s{ptr+1}, 0")
        if off_imm:
            A(f"s_add_u32 s{d}, s{d}, {off_imm}")
            A(f"s_addc_u32 s{d+1}, s{d+1}, 0")
    elif off_imm:
        A(f"s_add_u32 s{d}, s{ptr}, {off_imm}")
        A(f"s_addc_u32 s{d+1}, s{ptr+1}, 0")
    else:
        A(f"s_mov_b32 s{d}, s{ptr}")
        A(f"s_mov_b32 s{d+1}, s{ptr+1}")
    if size_sgpr is not None:
        A(f"s_mov_b32 s{d+2}, s{size_sgpr}")
    else:
        A(f"s_mov_b32 s{d+2}, {size}")
    A(f"s_mov_b32 s{d+3}, 0x00020000")


STAMP_OFF = 0x8000000


class Stamps:
    def __init__(self, A, on):
        self.A, self.on, self.n = A, on, 0

    def __call__(self, lvl=1):
        if not self.on or (lvl != self.on and self.n > 0 and lvl != 9):
            return
        A = self.A
        A("s_memtime s[66:67]")
        A("s_memrealtime s[68:69]")
        A("s_waitcnt lgkmcnt(0)")
        A(f"s_mov_b32 s{70+2*self.n}, s66")
        A(f"s_mov_b32 s{71+2*self.n}, s68")
        self.n += 1
        assert self.n <= 16

    def dump(self, wave_sgpr):
        if not self.on:
            return
        A = self.A
        A("s_waitcnt vmcnt(0)")
        self(9)
        A("s_lshl_b32 s33, s2, 2")
        A(f"s_add_u32 s33, s33, s{wave_sgpr}")
        A("s_lshl_b32 s33, s33, 7")
        A(f"s_add_u32 s33, s33, {STAMP_OFF}")
        A("s_add_u32 s34, s52, s33")
        A("s_addc_u32 s35, s53, 0")
        A("v_mov_b32 v1, 0")
        for i in range(self.n):
            A(f"v_mov_b32 v2, s{70+2*i}")
            A(f"v_mov_b32 v3, s{71+2*i}")
            A(f"global_store_dwordx2 v1, v[2:3], s[34:35] offset:{8*i}")
        A("s_waitcnt vmcnt(0)")


def mfma(d, a, b, c):
    return f"v_mfma_f32_16x16x32_bf16 {d}, {a}, {b}, {c}"


XCH_OFF = 0x4000000
K2_LDS = 4 * 36864


QF = 160
SB = 96
NM = 80
VF = 48
LS = 40
VK, VV, DK, DV = 2, 4, 8, 11
KF = 192
KREG, VREG = 36864, 86016


def qf(qt, u):
    return vr(QF + (u*4+qt)*4, 4)


def sreg(t, qt, kt):
    return (96 + 16*(t & 3) if kt == 0 else 48 + 16*(t & 1)) + 4*qt


def oacc(dt, qt):
    return (dt*4 + qt) * 4


def kfr(t, kt, u):
    return ar(KF + ((t + kt) & 1)*24 + u*4, 4)


def k_read(t, kt, u):
    return f"ds_read_b128 {kfr(t, kt, u)}, v{VK+(u&1)} offset:{(t & 3)*12288+kt*6144+128*(u>>1)}"


def v_read(reg, t, dt, rd):
    return f"ds_read_b64_tr_b16 {ar(reg+2*rd, 2)}, v{VV+(dt&3)} offset:{(t & 3)*12288+rd*6144+128*(dt>>2)}"


def qk_mfmas(t, zero=False):
    M = []
    for kt in range(2):
        for qt in range(4):
            d = vr(sreg(t, qt, kt), 4)
            for k in range(6):
                u = k if qt % 2 == 0 else 5 - k
                M.append(mfma(d, kfr(t, kt, u), qf(qt, u), ("0" if zero else vr(NM+qt*4, 4)) if k == 0 else d))
    return M


def softmax_ops(t, qts):
    E, S = [], []
    for qt in qts:
        for p in range(4):
            b = sreg(t, qt, p >> 1) + 2*(p & 1)
            e0 = len(E)
            E.append(f"v_exp_f32 v{b}, v{b}")
            E.append(f"v_exp_f32 v{b+1}, v{b+1}")
            S.append((e0, f"v_add_f32 v{LS+2*qt}, v{LS+2*qt}, v{b}"))
            S.append((e0+1, f"v_add_f32 v{LS+2*qt+1}, v{LS+2*qt+1}, v{b+1}"))
            S.append((e0+1, f"v_cvt_pk_bf16_f32 v{sreg(t, qt, 0)+p}, v{b}, v{b+1}"))
    return E, S


def fill_valu(gaps, lo, hi, E, S):
    ei, si = 0, 0
    epos = {}
    n_empty = sum(1 for g in range(lo, hi) if not gaps[g][0] and not gaps[g][2])
    assert n_empty >= len(E), (n_empty, len(E))
    for g in range(lo, hi):
        used = len(gaps[g][0]) + len(gaps[g][2])
        avail = [k for k in range(si, len(S)) if S[k][0] in epos and epos[S[k][0]] < g]
        navail = 0
        for k in range(si, len(S)):
            if S[k][0] in epos and epos[S[k][0]] < g:
                navail += 1
            else:
                break
        if used == 0:
            empty_left = sum(1 for q in range(g, hi) if not gaps[q][0] and not gaps[q][2])
            must_exp = empty_left <= len(E) - ei
            if ei < len(E) and (must_exp or navail < 4):
                gaps[g][1].append(E[ei])
                epos[ei] = g
                ei += 1
                continue
        free = 2 - used
        while free > 0 and navail > 0:
            gaps[g][1].append(S[si][1])
            si += 1
            navail -= 1
            free -= 1
    assert ei == len(E) and si == len(S), (ei, len(E), si, len(S))


def gen_stage(A, sg, extra=None, first=False):
    M = qk_mfmas(sg + 2)
    ta = sg & 2
    ring = [KF + 48 + 4*k for k in range(4)] + [KF + (sg & 1)*24 + 4*k for k in range(6)]
    vreg = lambda j: ring[j % 10]
    for d in range(6):
        dt = 6*(sg & 1) + d
        for qi in range(4):
            qt = qi if d % 2 == 0 else 3 - qi
            o = ar(oacc(dt, qt), 4)
            for ki in range(2):
                k = ki if qi % 2 == 0 else 1 - ki
                M.append(mfma(o, vr(sreg(ta + k, qt, 0), 4), ar(vreg(2*d + k), 4), "0" if first and ki == 0 else o))
    gaps = [[[], [], []] for _ in range(96)]
    for u in range(6):
        gaps[1+3*u][0].append(k_read(sg + 2, 1, u))
    gaps[23][2].append("s_waitcnt lgkmcnt(0)")
    for r in range(24):
        j = r >> 1
        gaps[26+2*r][0].append(v_read(vreg(j), ta + (j & 1), 6*(sg & 1) + (j >> 1), r & 1))
    for g in (47, 63):
        gaps[g][2].append("s_waitcnt lgkmcnt(3)")
    ex = [0, 1, 1, 0]
    gaps[79][2].append(f"s_waitcnt vmcnt({(6 if sg & 1 else 9) + ex[sg] + ex[sg-1]}) lgkmcnt(0)")
    gaps[79][2].append("s_barrier")
    if sg == 1:
        gaps[18][0].append("ds_read_b64_tr_b16 v[14:15], v35")
        gaps[19][0].append(f"ds_read_b64_tr_b16 v[16:17], v35 offset:{16*320}")
        gaps[39][0].append("buffer_store_dwordx4 v[14:17], v39, s[48:51], s56 offen sc1")
        gaps[75][2].append("v_add_u32 v35, 32, v35")
        gaps[75][2].append("s_add_u32 s56, s56, 1024")
    elif sg == 2:
        gaps[39][0].append("buffer_store_dwordx4 v[18:21], v39, s[44:47], s57 offen sc1")
        gaps[75][2].append("s_add_u32 s57, s57, 1024")
    for u in range(6):
        gaps[81+u][0].append(k_read(sg + 3, 0, u))
    gaps[95][2].append("s_waitcnt lgkmcnt(0)")
    P = [3, 9, 15, 21, 27, 33]
    reg, srd_, base, t0 = (DK, "s[16:19]", KREG, sg) if sg & 1 else (DV, "s[20:23]", VREG, sg + 2)
    gaps[1][2].append(f"s_add_u32 m0, s29, {base + (t0 & 3)*12288}")
    for n in range(6):
        gaps[P[n]][0].append(f"buffer_load_dwordx4 v{reg+n%3}, {srd_}, s30 offen offset:{1024*(n%3)} lds")
    gaps[15][2].append("s_add_u32 s30, s30, 12288")
    gaps[16][2].append(f"s_add_u32 m0, s29, {base + ((t0+1) & 3)*12288}")
    gaps[36][2].append("s_sub_u32 s30, s30, 12288" if sg & 1 else "s_add_u32 s30, s30, 12288")
    if extra:
        for g, s in extra:
            gaps[g][2].append(s)
    E, S = softmax_ops(sg + 1, (2, 3))
    fill_valu(gaps, 0, 47, E, S)
    E, S = softmax_ops(sg + 2, (0, 1))
    fill_valu(gaps, 48, 96, E, S)
    for g in range(96):
        A(M[g])
        for s in gaps[g][0] + gaps[g][1] + gaps[g][2]:
            A(s)


def gen_tail(A):
    LG = Track("lg")
    rd = [(j, r) for j in range(24) for r in range(2)]

    def next_read():
        j, r = rd.pop(0)
        A(v_read(KF + 4*(j % 16), 2 + (j & 1), j >> 1, r))
        LG.issue(f"v{j}")
    for _ in range(12):
        next_read()
    A("s_waitcnt vmcnt(0)")
    A("s_barrier")
    A(f"s_mov_b32 s33, {SPIN_MAX}")
    A.label("K2_PP")
    A("v_cmp_le_u32 vcc, 32, v23")
    A("s_cmp_eq_u64 vcc, exec")
    A("s_cbranch_scc1 K2_PP_OK")
    A("s_sleep 1")
    A("global_load_dword v23, v25, s[64:65] sc1")
    A("s_waitcnt vmcnt(0)")
    A("s_sub_u32 s33, s33, 1")
    A("s_cmp_lg_u32 s33, 0")
    A("s_cbranch_scc1 K2_PP")
    A.label("K2_PP_OK")
    W = sum((p_at(m) + p_fill_b() + p_fill_a() for m in range(NTAILF)), [])

    def next_fill():
        while W:
            e = W.pop(0)
            if e[0] == "d":
                A(e[1])
                while W and W[0][0] != "d":
                    A(W.pop(0)[1])
                return
            A(e[1])
            if W[0][0] == "d":
                A("s_nop 0")
    E, S = softmax_ops(3, (2, 3))
    for k, e in enumerate(E):
        if k % 6 == 0:
            next_fill()
        A(e)
    B = Asm()
    for qt in range(4):
        B(f"v_add_f32 v{30+qt}, v{LS+2*qt}, v{LS+2*qt+1}")
    B("v_mov_b32 v14, 1.0")
    B("v_bfe_u32 v16, v0, 2, 2")
    B("v_lshrrev_b32 v15, 4, v0")
    for qt in range(4):
        B(f"v_mfma_f32_16x16x4_f32 {vr(NM+4*qt, 4)}, v{30+qt}, v14, 0")
    B("v_cmp_eq_u32 vcc, v16, v15")
    B("v_and_b32 v16, 1, v0")
    B("v_lshlrev_b32 v16, 4, v16")
    B("v_mov_b32 v15, 0x3f80")
    B("v_lshlrev_b32 v15, v16, v15")
    B("v_cndmask_b32 v15, 0, v15, vcc")
    B("v_and_b32 v16, 2, v0")
    B("v_cmp_eq_u32 vcc, 0, v16")
    for i in (0, 1, 4, 5):
        B(f"v_mov_b32 v{SEL+i}, 0")
    B(f"v_cndmask_b32 v{SEL+2}, 0, v15, vcc")
    B(f"v_cndmask_b32 v{SEL+3}, v15, v{SEL}, vcc")
    B(f"v_add_f32 v14, v{NM}, v{NM+1}")
    B(f"v_add_f32 v15, v{NM+2}, v{NM+3}")
    for i in range(4, 16):
        B(f"v_add_f32 v{14+(i&1)}, v{14+(i&1)}, v{NM+i}")
    B("v_add_f32 v14, v14, v15")
    B("s_lshl_b32 s35, s28, 2|"f"s_add_u32 s35, s35, {FREG}")
    B(f"v_cmp_ngt_f32 vcc, {hex(f2u(2.0**30))}, v14")
    B("v_mov_b32 v15, s35")
    B("s_cmp_lg_u64 vcc, 0|s_cselect_b32 s34, 1, 0")
    B("v_mov_b32 v14, s34")
    B("ds_write_b32 v15, v14|"f"v_mov_b32 v16, {FREG}")
    f0 = [l.strip() for l in B.L]
    B = Asm()
    B("ds_read_b128 v[20:23], v16")
    for i in range(10):
        B(f"v_rcp_f32 v{NM+i}, v{NM+i}")
    B("s_waitcnt lgkmcnt(0)|v_or_b32 v20, v20, v21")
    B("v_or3_b32 v20, v20, v22, v23|v_lshlrev_b32 v16, 4, v0")
    B("v_readfirstlane_b32 s34, v20|v_lshlrev_b32 v17, 3, v0")
    for i in range(10, 16):
        B(f"v_rcp_f32 v{NM+i}, v{NM+i}")
    f1 = [l.strip() for l in B.L]
    seq = []
    for qs in ((0, 1), (2, 3)):
        for dt in range(6):
            seq += [(dt, q) for q in (qs if dt % 2 == 0 else qs[::-1])]
    for dt in range(6, 12):
        seq += [(dt, q if dt % 2 == 0 else 3 - q) for q in range(4)]
    sm = [x[1] for x in S]
    g = 0
    for n_, (dt, qt) in enumerate(seq):
        o = ar(oacc(dt, qt), 4)
        for ki in range(2):
            k = ki if n_ % 2 == 0 else 1 - ki
            w_ = LG.need([f"v{2*dt}", f"v{2*dt+1}"])
            if w_ is not None:
                A(f"s_waitcnt lgkmcnt({min(w_, 15)})")
            if g == 24:
                assert not sm
                A("s_nop 1")
            if g == 76:
                assert not f0 and not rd, (f0, rd)
                A("s_waitcnt lgkmcnt(0)")
                LG.drain()
                A("s_barrier")
            A(mfma(o, vr(sreg(2 + k, qt, 0), 4), ar(KF + 4*((2*dt + k) % 16), 4), o))
            n = 2
            if g % 4 == 3:
                next_fill()
                n = 1
            elif rd and (rd[0][0] < 16 or g >= 24 + 4*((rd[0][0] - 16) >> 1) + 3):
                next_read()
                n = 1
            src = sm if g < 24 else f0 if g < 76 else f1
            if g >= 76:
                n = 1
            for _ in range(n):
                if src:
                    for l in src.pop(0).split("|"):
                        A(l)
                        if l.startswith("ds_write"):
                            LG.issue("fl")
            g += 1
    assert not W and not f1, (W, f1)


def xlane_reduce(A, op, regs, tmp):
    for swap in ("v_permlane32_swap_b32", "v_permlane16_swap_b32"):
        for i, r in enumerate(regs):
            A(f"v_mov_b32 v{tmp+i}, v{r}")
        A("s_nop 1")
        for i, r in enumerate(regs):
            A(f"{swap} v{tmp+i}, v{r}")
        A("s_nop 1")
        for i, r in enumerate(regs):
            A(f"{op} v{r}, v{r}, v{tmp+i}")


class Track:
    def __init__(self, name, init=()):
        self.name, self.q, self.done = name, list(init), 0

    def issue(self, tag):
        self.q.append(tag)

    def need(self, tags):
        idx = max((len(self.q) - 1 - self.q[::-1].index(t)) for t in tags)
        if idx < self.done:
            return None
        self.done = idx + 1
        return len(self.q) - 1 - idx

    def drain(self):
        self.done = len(self.q)


XREG = 110592
CREG = 147456
FREG = 148608
K1_LDS = 148672
FLG_OFF = 0x7000000
SPIN_MAX = 1 << 22


def emit_plain(A, L):
    prev = None
    for e in L:
        if e[0] == "d" and prev is not None and "m0" in prev:
            A("s_nop 0")
        for s_ in e[1:]:
            A(s_)
        prev = e[-1]


def poll(A, label, vaddr, vtmp, sbase, mask_sgpr_pair, want, cmp="v_cmp_ne_u32"):
    A(f"s_mov_b32 s33, {SPIN_MAX}")
    A(f"s_mov_b64 exec, {mask_sgpr_pair}")
    A.label(label)
    A(f"global_load_dword v{vtmp}, v{vaddr}, {sbase} sc1")
    A("s_waitcnt vmcnt(0)")
    A(f"{cmp} vcc, {want}, v{vtmp}")
    A("s_cmp_eq_u64 vcc, exec")
    A(f"s_cbranch_scc1 {label}_OK")
    A("s_sleep 1")
    A("s_sub_u32 s33, s33, 1")
    A("s_cmp_lg_u32 s33, 0")
    A(f"s_cbranch_scc1 {label}")
    A.label(label + "_OK")
    A("s_mov_b64 exec, -1")


def gen_main(A, cfg):
    name = NAME + "_kernel"
    NT = " nt" if cfg.get("nt", 0) else ""
    NTW = " nt" if cfg.get("ntw", 1) else ""
    NTG = " nt" if cfg.get("ntg", 0) else ""
    NTX = " nt" if cfg.get("ntx", 0) else ""
    kernel_begin(A, name)
    A("s_cmp_ge_u32 s2, 256")
    A("s_cbranch_scc1 K1_END")
    if cfg.get("cpf", 1):
        A("s_getpc_b64 s[34:35]")
        A("s_and_b32 s34, s34, 0xffffff00")
        A("s_lshr_b32 s33, s2, 3")
        A("s_lshl_b32 s33, s33, 12")
        A("v_lshl_add_u32 v2, v0, 4, s33")
        A(f"v_min_u32 v2, (K1_END-{name}-16)&0xfffffff0, v2")
        A("global_load_dwordx4 v[60:63], v2, s[34:35]")
    ST = Stamps(A, cfg.get("stamp", 0))
    ST()
    A("s_load_dwordx2 s[60:61], s[0:1], 0")
    A("s_load_dwordx4 s[44:47], s[0:1], 24")
    A("s_load_dwordx4 s[48:51], s[0:1], 48")
    A("s_load_dwordx4 s[40:43], s[0:1], 8")
    A("s_load_dwordx2 s[58:59], s[0:1], 64")
    A("s_load_dwordx2 s[62:63], s[0:1], 72")
    A("s_load_dwordx2 s[64:65], s[0:1], 80")
    A("s_load_dwordx2 s[52:53], s[0:1], 88")
    A("v_lshrrev_b32 v1, 6, v0")
    A("v_and_b32 v0, 63, v0")
    A("v_readfirstlane_b32 s28, v1")
    A("s_and_b32 s31, s2, 6")
    A("s_lshl_b32 s31, s31, 2")
    A("s_bfe_u32 s33, s2, 0x30003")
    A("s_add_u32 s31, s31, s33")
    A("s_and_b32 s32, s2, 1")
    A("s_lshl_b32 s32, s32, 2")
    A("s_lshr_b32 s33, s2, 6")
    A("s_add_u32 s32, s32, s33")
    A("s_mul_i32 s29, s28, 3072")
    XD, XR, WD, GD, CQ, CG, CC = 14, 16, 18, 21, 24, 26, 27
    XT = 24
    A("v_lshrrev_b32 v36, 3, v0")
    A("v_mul_u32_u24 v37, 1280, v36")
    A("v_lshrrev_b32 v38, 4, v0")
    A("v_and_b32 v39, 7, v0")
    A("v_xor_b32 v39, v39, v38")
    A(f"v_lshl_add_u32 v{XD}, v39, 4, v37")
    A("v_xor_b32 v39, 4, v39")
    A(f"v_lshl_add_u32 v{XD+1}, v39, 4, v37")
    A(f"v_add_u32 v{XD+1}, 10240, v{XD+1}")
    for n in range(3):
        A(f"v_add_u32 v40, {64*n}, v0")
        A(f"v_mul_u32_u24 v{44+n}, 2731, v40")
        A(f"v_lshrrev_b32 v{44+n}, 16, v{44+n}")
        A(f"v_mul_u32_u24 v41, 24, v{44+n}")
        A("v_sub_u32 v41, v40, v41")
        A(f"v_and_b32 v42, 2, v{44+n}")
        A("v_lshlrev_b32 v42, 1, v42")
        A("v_xor_b32 v41, v41, v42")
        A("s_lshl_b32 s33, s28, 4")
        A(f"v_add_u32 v42, s33, v{44+n}")
        A("v_mul_u32_u24 v42, 12288, v42")
        A("v_lshl_add_u32 v42, v41, 4, v42")
        A(f"v_subrev_u32 v{WD+n}, {1024*n}, v42")
        A("v_mul_u32_u24 v41, 10923, v40")
        A("v_lshrrev_b32 v41, 16, v41")
        A("v_mul_u32_u24 v42, 6, v41")
        A("v_sub_u32 v42, v40, v42")
        A("s_and_b32 s33, s31, 1")
        A("s_lshl_b32 s33, s33, 1")
        A("v_add_u32 v42, s33, v42")
        A("v_subrev_u32 v43, 6, v42")
        A("v_min_u32 v42, v42, v43")
        A("s_and_b32 s33, s28, 1")
        A("s_lshl_b32 s33, s33, 5")
        A("v_add_u32 v41, s33, v41")
        A("v_mul_u32_u24 v41, 3072, v41")
        A("v_lshl_add_u32 v41, v42, 4, v41")
        A(f"v_subrev_u32 v{GD+n}, {1024*n}, v41")
    rot = cfg.get("rot", 0)
    if rot == 0:
        A("s_mov_b32 s39, 0")
    elif rot == 1:
        A("s_add_u32 s39, s31, s32")
        A("s_and_b32 s39, s39, 1")
        A("s_mul_i32 s39, s39, 5")
    elif rot == 2:
        A("s_and_b32 s39, s2, 1")
        A("s_mul_i32 s39, s39, 5")
    else:
        A("s_add_u32 s39, s31, s32")
        A("s_and_b32 s39, s39, 3")
        A("s_mul_i32 s39, s39, 5")
        A("s_lshr_b32 s39, s39, 1")
    A("s_lshl_b32 s36, s39, 7")
    A(f"s_mul_i32 s38, s39, {64*3072}")
    A("s_lshl_b32 s37, s38, 2")
    A("s_mov_b32 s39, 0")
    A("s_lshl_b32 s57, s28, 13")
    A(f"s_add_u32 s57, s57, {XREG}")
    A("s_lshl_b32 s33, s32, 2")
    A("s_add_u32 s33, s33, s28")
    A(f"s_mul_i32 s56, s33, {64*1280}")
    A("s_waitcnt lgkmcnt(0)")
    ST(3)
    srd(A, 4, 60, off_sgpr=56, size=64*1280)
    A("s_mul_i32 s34, s31, 384")
    A(f"s_sub_u32 s35, {640*12288}, s34")
    srd(A, 8, 44, off_sgpr=34, size_sgpr=35)
    A("s_cmp_lt_u32 s28, 2")
    A("s_cselect_b32 s44, s48, s50")
    A("s_cselect_b32 s45, s49, s51")
    A("s_mul_i32 s34, s31, 96")
    A(f"s_sub_u32 s35, {640*3072}, s34")
    srd(A, 12, 44, off_sgpr=34, size_sgpr=35)

    GA, SUM, GRM, CAC, ONE, WF, CF, XF = 0, 96, 112, 128, 148, 152, 176, 192
    QA = 64
    SLOT = 36864

    def qacc(t, qt):
        return QA + ((t >> 1)*4 + qt)*8 + (t & 1)*4

    def x_dma(n):
        return [("s", f"s_add_u32 m0, s57, {1024*n}"), ("s", f"s_add_u32 s35, s36, {20480*(n>>1)}"),
                ("d", f"buffer_load_dwordx4 v{XD+(n&1)}, s[4:7], s35 offen{NTX} lds")]
    xadv = [("s", "s_add_u32 s36, s36, 128")]
    if rot:
        xadv.append(("s2", "s_cmp_eq_u32 s36, 1280", "s_cselect_b32 s36, 0, s36"))

    def x_read(st, k2, qt):
        return f"ds_read_b128 {ar(XF+st*32+(k2*4+qt)*4, 4)}, v{XR+k2} offset:{qt*2048}"

    def w_dma():
        L = []
        L.append(("s", "s_lshl_b32 s34, s29, 1"))
        L.append(("s", "s_add_u32 m0, s39, s34"))
        for n in range(3):
            L.append(("d", f"buffer_load_dwordx4 v{WD+n}, s[8:11], s37 offen offset:{1024*n}{NTW} lds"))
        L.append(("s", "s_add_u32 m0, m0, 3072"))
        L.append(("s", f"s_add_u32 s35, s37, {8*12288}"))
        for n in range(3):
            L.append(("d", f"buffer_load_dwordx4 v{WD+n}, s[8:11], s35 offen offset:{1024*n}{NTW} lds"))
        L.append(("s", "s_add_u32 s34, s29, 24576"))
        L.append(("s", "s_add_u32 m0, s39, s34"))
        for n in range(3):
            L.append(("d", f"buffer_load_dwordx4 v{GD+n}, s[12:15], s38 offen offset:{1024*n}{NTG} lds"))
        L.append(("s", f"s_add_u32 s38, s38, {64*3072}"))
        if rot:
            L.append(("s2", f"s_cmp_eq_u32 s38, {640*3072}", "s_cselect_b32 s38, 0, s38"))
        L.append(("s", "s_lshl_b32 s37, s38, 2"))
        L.append(("s", f"s_add_u32 s39, s39, {SLOT}"))
        L.append(("s2", f"s_cmp_eq_u32 s39, {3*SLOT}", "s_cselect_b32 s39, 0, s39"))
        return L

    def kv_dma(kind, i):
        L = [("s", f"s_add_u32 m0, s29, {(KREG if kind == 'K' else VREG) + i*12288}")]
        if kind == "K" and i == 0:
            for n in range(3):
                L.append(("s", f"v_subrev_u32 v{60+n}, 12288, v{DK+n}"))
            for n in range(3):
                L.append(("d", f"buffer_load_dwordx4 v{60+n}, s[16:19], 0 offen offset:{1024*n}{NT} lds"))
        elif kind == "K":
            L.append(("s", f"s_mov_b32 s30, {(i-1)*12288}"))
            for n in range(3):
                L.append(("d", f"buffer_load_dwordx4 v{DK+n}, s[16:19], s30 offen offset:{1024*n}{NT} lds"))
        else:
            L.append(("s", f"s_mov_b32 s30, {i*12288}"))
            for n in range(3):
                L.append(("d", f"buffer_load_dwordx4 v{DV+n}, s[20:23], s30 offen offset:{1024*n}{NT} lds"))
        return L

    def w_reads(t):
        L = []
        for k2 in range(2):
            for rd in range(2):
                d = ar(WF + (t % 3)*8 + k2*4 + 2*rd, 2)
                if t < 12:
                    u, par = t >> 1, t & 1
                    L.append(f"ds_read_b64_tr_b16 {d}, v{CQ+(u&1)} offset:{k2*32*384+rd*4*384+128*(u>>1)+8*par}")
                else:
                    tt = t - 12
                    L.append(f"ds_read_b64_tr_b16 {d}, v{CG} offset:{24576+(tt//3)*6144+k2*32*96+rd*4*96+32*(tt%3)}")
        return L

    def c_reads(p):
        L = []
        for k2 in range(2):
            for rd in range(2):
                d = ar(CF + k2*4 + 2*rd, 2)
                if p < 3:
                    L.append(f"ds_read_b64_tr_b16 {d}, v{CC} offset:{k2*32*384+rd*4*384+128*p}")
                else:
                    L.append(f"ds_read_b64_tr_b16 {d}, v{CC+p-2} offset:{24576+k2*32*96+rd*4*96}")
        return L

    A0 = A
    A = Asm()
    A("s_lshl_b32 s34, s33, 7")
    A("s_lshl_b32 s35, s31, 2")
    A("s_add_u32 s34, s34, s35")
    A("s_and_b32 s35, s2, 1")
    A("s_lshl_b32 s35, s35, 5")
    A("s_lshr_b32 s56, s2, 3")
    A("s_add_u32 s35, s35, s56")
    A("s_lshl_b32 s35, s35, 2")
    A("s_add_u32 s35, s35, s28")
    A("s_lshl_b32 s35, s35, 2")
    A("s_bfe_u32 s56, s2, 0x20001")
    A("s_add_u32 s35, s35, s56")
    A("s_lshl_b32 s35, s35, 2")
    A("s_add_u32 s35, s35, 0x1000")
    A(f"s_add_u32 s34, s34, {FLG_OFF}")
    A(f"s_add_u32 s35, s35, {FLG_OFF}")
    A("v_mov_b32 v1, s34")
    A("v_mov_b32 v40, s35")
    A("v_cmp_eq_u32 vcc, 1, v0")
    A("v_mov_b32 v41, 0")
    A("s_nop 0")
    A("v_cndmask_b32 v1, v1, v40, vcc")
    A("s_mul_i32 s34, s31, 786432")
    srd(A, 16, 40, off_sgpr=34, size=786432)
    srd(A, 20, 42, off_sgpr=34, size=786432)
    A("s_cmp_ge_u32 s2, 192")
    A("s_cselect_b32 s44, s58, s46")
    A("s_cselect_b32 s45, s59, s47")
    A("s_cselect_b32 s34, 192, 0")
    A("s_sub_u32 s34, s2, s34")
    A("s_mul_i32 s34, s34, 40960")
    A("s_cmp_lt_u32 s2, 240")
    A("s_cselect_b32 s35, 40960, 0")
    A("s_cselect_b32 s34, s34, 0")
    srd(A, 40, 44, off_sgpr=34, size_sgpr=35)
    A("s_lshl_b32 s34, s2, 2")
    A("s_add_u32 s34, s34, s28")
    A("s_mul_i32 s34, s34, 10240")
    A("s_lshr_b32 s35, s35, 2")
    srd(A, 48, 52, off_sgpr=34, off_imm=WP_OFF, size_sgpr=35)
    A("s_and_b32 s34, s2, 1")
    A("s_lshl_b32 s34, s34, 5")
    A("s_lshr_b32 s35, s2, 3")
    A("s_add_u32 s34, s34, s35")
    A("s_lshl_b32 s34, s34, 2")
    A("s_bfe_u32 s35, s2, 0x20001")
    A("s_add_u32 s34, s34, s35")
    A("s_lshl_b32 s34, s34, 2")
    A("s_add_u32 s34, s34, s28")
    A("s_mul_i32 s34, s34, 15360")
    srd(A, 44, 52, off_sgpr=34, off_imm=XCH_OFF, size=7680)
    A("v_bfe_u32 v39, v0, 2, 2")
    A("v_and_b32 v40, 3, v0")
    A("v_and_b32 v41, 15, v0")
    for n in range(3):
        A("s_lshl_b32 s34, s28, 3")
        A(f"v_add_u32 v42, s34, v{44+n}")
        A("v_bfe_u32 v43, v42, 1, 3")
        A("v_xor_b32 v43, v43, v0")
        A("v_lshlrev_b32 v43, 4, v43")
        A("v_add_u32 v43, s29, v43")
        A(f"v_add_u32 v{DK+n}, 12288, v43")
        A("v_and_b32 v43, 6, v42")
        A("v_xor_b32 v43, v43, v0")
        A("v_lshlrev_b32 v43, 4, v43")
        A(f"v_add_u32 v{DV+n}, s29, v43")
    A("v_lshl_add_u32 v42, v38, 3, v39")
    A("v_mul_u32_u24 v43, 384, v42")
    A("v_lshl_add_u32 v43, v40, 4, v43")
    A("v_lshrrev_b32 v44, 1, v39")
    A(f"v_lshl_add_u32 v{CQ}, v44, 6, v43")
    A("v_xor_b32 v45, 1, v44")
    A(f"v_lshl_add_u32 v{CQ+1}, v45, 6, v43")
    A("s_lshr_b32 s34, s28, 1")
    A("v_xor_b32 v45, s34, v44")
    A(f"v_lshl_add_u32 v{CC}, v45, 6, v43")
    A("s_and_b32 s35, s28, 1")
    A("s_lshl_b32 s34, s35, 3")
    A(f"v_add_u32 v{CC}, s34, v{CC}")
    A("v_mul_u32_u24 v43, 96, v42")
    A(f"v_lshl_add_u32 v{CG}, v40, 3, v43")
    A("s_lshl_b32 s34, s28, 5")
    A("s_cmp_eq_u32 s28, 3")
    A("s_cselect_b32 s34, 6144, s34")
    A(f"v_add_u32 v{CC+1}, s34, v{CG}")
    A("s_lshl_b32 s34, s35, 5")
    A(f"s_add_u32 s34, s34, {6144+32}")
    A(f"v_add_u32 v{CC+2}, s34, v{CG}")
    A("v_bfe_u32 v44, v41, 1, 3")
    A("v_xor_b32 v44, v44, v38")
    A("v_xor_b32 v45, 4, v44")
    A("v_lshlrev_b32 v43, 7, v41")
    A("v_add_u32 v43, s57, v43")
    A(f"v_lshl_add_u32 v{XR}, v44, 4, v43")
    A(f"v_lshl_add_u32 v{XR+1}, v45, 4, v43")
    A("v_mul_u32_u24 v43, 384, v41")
    A(f"v_add_u32 v43, {KREG}, v43")
    A(f"v_lshl_add_u32 v{VK}, v44, 4, v43")
    A(f"v_lshl_add_u32 v{VK+1}, v45, 4, v43")
    A("v_lshrrev_b32 v42, 2, v0")
    A("v_mul_u32_u24 v43, 384, v42")
    A(f"v_add_u32 v43, {VREG}, v43")
    A("v_and_b32 v44, 1, v40")
    A("v_lshl_add_u32 v43, v44, 3, v43")
    A("v_and_b32 v44, 6, v42")
    A("v_lshrrev_b32 v45, 1, v40")
    A("v_xor_b32 v44, v44, v45")
    for j in range(4):
        A(f"v_xor_b32 v45, {2*j}, v44")
        A(f"v_lshl_add_u32 v{VV+j}, v45, 4, v43")
    PD = 30
    A("s_mul_i32 s34, s28, 320")
    for n in range(5):
        A(f"v_add_u32 v43, {64*n}, v0")
        A("v_mul_u32_u24 v44, 3277, v43")
        A("v_lshrrev_b32 v44, 16, v44")
        A("v_mul_u32_u24 v45, 20, v44")
        A("v_sub_u32 v45, v43, v45")
        A("v_mul_u32_u24 v44, 1280, v44")
        A("v_lshl_add_u32 v44, v45, 4, v44")
        A(f"v_add_u32 v{PD+n}, s34, v44")
    PR, PS = 35, 39
    A("v_mul_u32_u24 v43, 320, v42")
    A("v_lshl_add_u32 v43, v40, 3, v43")
    A("s_mul_i32 s58, s28, 10240")
    A("s_cmp_eq_u32 s28, 3")
    A("s_cselect_b32 s58, 135168, s58")
    A(f"v_add_u32 v{PR}, s58, v43")
    A("v_lshlrev_b32 v36, 4, v38")
    A(f"v_add_u32 v36, {CREG}, v36")
    A("s_lshl_b32 s34, s28, 6")
    A("v_add_u32 v56, s34, v36")
    A("s_and_b32 s34, s34, 64")
    A("v_add_u32 v57, s34, v36")
    A("v_mov_b32 v43, 0x3f803f80")
    for i in range(4):
        A(f"v_accvgpr_write_b32 a{ONE+i}, v43")
    su = [l.strip().replace("s34", "s66").replace("s35", "s67") for l in A.L]
    A = A0
    per = (len(su) + 16) // 17
    prev = None
    for e in sum((x_dma(n) for n in range(8)), []) + xadv + w_dma():
        if e[0] == "d" and "m0" in prev:
            A("s_nop 0")
        for s_ in e[1:]:
            A(s_)
        prev = e[-1]
        if e[0] == "d":
            k = 0
            while su and (k < per or su[0].startswith(("s_cselect", "s_addc", "global_store", "s_mov_b64 exec"))):
                A(su.pop(0))
                k += 1
    assert not su
    ST(3)
    w1in = cfg.get("w1in", 0)
    if not w1in:
        emit_plain(A, w_dma())
    ST(3)
    A(f"s_waitcnt vmcnt({9 if w1in else 18})")
    ST(3)
    for k2 in range(2):
        for qt in range(4):
            A(x_read(0, k2, qt))
    A(f"s_waitcnt vmcnt({0 if w1in else 9}) lgkmcnt(0)")
    ST(3)
    A("s_barrier")
    ST()
    ST(3)
    ST(4)
    for s in w_reads(0) + w_reads(1):
        A(s)

    PA, PB = 14, 40
    G0, TT = 48, 52

    def stats_ops():
        B = Asm()
        for qt in range(4):
            B(f"v_accvgpr_read_b32 v{G0+qt}, a{GRM+4*qt}")
        B("v_and_b32 v58, 3, v0")
        for r in range(1, 4):
            B(f"v_cmp_eq_u32 vcc, {r}, v58")
            for qt in range(4):
                B(f"v_accvgpr_read_b32 v{TT+qt}, a{GRM+4*qt+r}")
            for qt in range(4):
                B(f"v_cndmask_b32 v{G0+qt}, v{G0+qt}, v{TT+qt}, vcc")
        B("v_bfe_u32 v58, v0, 2, 2")
        B("v_lshrrev_b32 v59, 4, v0")
        B("v_cmp_eq_u32 vcc, v58, v59")
        B(f"s_mov_b32 s34, {hex(f2u(1.0/640))}")
        B("s_nop 0")
        for qt in range(4):
            B(f"v_cndmask_b32 v{G0+qt}, 0, v{G0+qt}, vcc")
        xlane_reduce(B, "v_add_f32", [G0+q for q in range(4)], TT)
        for qt in range(4):
            B(f"v_accvgpr_read_b32 v{TT+qt}, a{SUM+4*qt}")
        for qt in range(4):
            B(f"v_mul_f32 v{TT+qt}, s34, v{TT+qt}")
            B(f"v_mul_f32 v{G0+qt}, s34, v{G0+qt}")
        for qt in range(4):
            B(f"v_fma_f32 v{G0+qt}, -v{TT+qt}, v{TT+qt}, v{G0+qt}")
        for qt in range(4):
            B(f"v_max_f32 v{G0+qt}, 0, v{G0+qt}")
        for qt in range(4):
            B(f"v_cvt_pk_bf16_f32 v{G0+qt}, v{TT+qt}, v{G0+qt}")
        for qt in range(4):
            B(f"v_lshlrev_b32 v{TT+qt}, 16, v{G0+qt}")
            B(f"v_and_b32 v{G0+qt}, 0xffff0000, v{G0+qt}")
        for qt in range(4):
            B(f"v_sub_f32 v{PA+2*qt}, 0, v{TT+qt}")
            B(f"v_add_f32 v{G0+qt}, {hex(f2u(1e-5))}, v{G0+qt}")
        for qt in range(4):
            B(f"v_cvt_pk_bf16_f32 v{G0+qt}, v{G0+qt}, v{G0+qt}")
        for qt in range(4):
            B(f"v_lshlrev_b32 v{G0+qt}, 16, v{G0+qt}")
        for qt in range(4):
            B(f"v_sqrt_f32 v{G0+qt}, v{G0+qt}")
        for qt in range(4):
            B(f"v_cvt_pk_bf16_f32 v{G0+qt}, v{G0+qt}, v{G0+qt}")
        for qt in range(4):
            B(f"v_lshlrev_b32 v{G0+qt}, 16, v{G0+qt}")
        for qt in range(4):
            B(f"v_rcp_f32 v{TT+qt}, v{G0+qt}")
        for qt in range(4):
            B(f"v_mul_f32 v{PB+2*qt+1}, v{G0+qt}, v{G0+qt}")
        for qt in range(4):
            B(f"v_mul_f32 v{PA+2*qt+1}, {hex(f2u(LOG2E * 192 ** -0.5))}, v{TT+qt}")
            B(f"v_mul_f32 v{PB+2*qt}, {hex(f2u(-LOG2E))}, v{TT+qt}")
        return [l.strip() for l in B.L]

    def superstep(st, mode, side=None):
        z0 = mode == "first"
        M = []
        blk = []
        xf = lambda k2, qt: ar(XF+st*32+(k2*4+qt)*4, 4)
        stat_blocks = [0, 1, 3, 4, 6, 7, 9, 10] if mode != "last" else [0, 0, 1, 1, 3, 3, 4, 4]
        for t in range(18):
            blk.append(len(M))
            gsn = cfg.get("gsn", 2)
            for qi in range(4):
                qt = qi if (gsn < 2 or t % 2 == 0) else 3 - qi
                acc = vr(qacc(t, qt), 4) if t < 12 else ar(GA + ((t-12)*4+qt)*4, 4)
                for ki in range(2):
                    k2 = ki if (gsn == 0 or qi % 2 == 0) else 1 - ki
                    M.append((mfma(acc, ar(WF+(t % 3)*8+k2*4, 4), xf(k2, qt), "0" if z0 and ki == 0 else acc), [f"w{t}"]))
            if t % 3 == 2 and t < 15:
                p = t // 3
                for k2 in range(2):
                    M.append((mfma(ar(CAC+4*p, 4), ar(CF+k2*4, 4), ar(ONE, 4), "0" if z0 and k2 == 0 else ar(CAC+4*p, 4)), [f"c{p}"]))
            for i, sb_ in enumerate(stat_blocks):
                if sb_ == t:
                    k2, qt = i >> 2, i & 3
                    M.append((mfma(ar(SUM+4*qt, 4), ar(ONE, 4), xf(k2, qt), "0" if z0 and k2 == 0 else ar(SUM+4*qt, 4)), []))
                    M.append((mfma(ar(GRM+4*qt, 4), xf(k2, qt), xf(k2, qt), "0" if z0 and k2 == 0 else ar(GRM+4*qt, 4)), []))
        NG = len(M)
        blk.append(NG)
        front = [None]*NG
        back = [[] for _ in range(NG)]
        resv = set(b - 1 for b in blk[1:])

        def room(g):
            return 2 - (front[g] is not None) - len(back[g]) - (g in resv)

        def put_front(g, e):
            while front[g] is not None or room(g) < 1:
                g += 1
            front[g] = e
            return g

        def put_back(g, ss):
            while room(g) < len(ss):
                g += 1
            back[g] += ss
            return g
        for t in range(18):
            if mode == "last" and t >= 16:
                continue
            for k, s_ in enumerate(w_reads((t+2) % 18)):
                front[blk[t]+k] = ("l", s_, f"w{(t+2) % 18}" + ("n" if t >= 16 else ""), None)
        for p in range(5):
            for k, s_ in enumerate(c_reads(p)):
                front[blk[3*p]+4+k] = ("l", s_, f"c{p}", None)
        if mode != "last":
            for qt in range(4):
                g = blk[(5+2*qt) if not z0 else (9+qt)] + 4
                for k2 in range(2):
                    g = put_front(g, ("l", x_read(st ^ 1, k2, qt), f"x{qt}", ("vm", f"X{qt}")))
        dl = {"loop": w_dma(), "first": w_dma(), "pre": kv_dma("K", 0) + kv_dma("K", 1) + kv_dma("K", 2),
              "last": kv_dma("V", 0) + kv_dma("K", 3) + kv_dma("V", 1)}[mode]
        g = 0
        last_d = -10
        nd = 0
        if z0:
            pre = [(e, f"X{n>>1}") for n in range(8) for e in x_dma(n)] + [(e, None) for e in xadv]
            if w1in:
                pre = [(e, "W8") for e in w_dma()] + pre
            for e, tg in pre:
                if e[0] == "d":
                    g = put_front(max(g + 1, last_d + (3 if w1in else 4)), ("d", e[1], tg, None))
                    last_d = g
                else:
                    g = put_back(g, list(e[1:]))
        for e in dl:
            if e[0] == "d":
                g = put_front(max(g + 1, last_d + (7 if not z0 else 3)), ("d", e[1], f"W{nd}", None))
                last_d = g
                nd += 1
            else:
                g = put_back(g, list(e[1:]))
        if mode in ("loop", "first"):
            assert g < blk[9] or z0, (g, blk)
            for n in range(8):
                g = max(g, blk[(8 + 2*(n >> 1)) if not z0 else (12 + (n >> 1))])
                for e in x_dma(n):
                    if e[0] == "d":
                        g = put_front(max(g + 1, last_d + (5 if not z0 else 3)), ("d", e[1], f"X{n>>1}", ("lg", f"x{n>>1}")))
                        last_d = g
                    else:
                        g = put_back(g, list(e[1:]))
            for e in xadv:
                g = put_back(g, list(e[1:]))
        gb = blk[16] - 1
        rest = []
        if mode != "last":
            g = put_back(blk[1], [f"s_add_u32 s33, s33, {SLOT}"])
            g = put_back(g + 1, [f"s_cmp_eq_u32 s33, {3*SLOT}", "s_cselect_b32 s59, s56, s55"])
            g = put_back(g + 1, [f"s_cmp_eq_u32 s33, {3*SLOT}", "s_cselect_b32 s33, 0, s33"])
            assert g < blk[7]
            for r_, after in ((CC, 7), (CQ, 10), (CQ+1, 10), (CC+1, 10), (CC+2, 13), (CG, 16)):
                g_ = put_back(blk[after], [f"v_add_u32 v{r_}, s59, v{r_}"])
                assert r_ != CQ or g_ < gb
        if side:
            g = blk[2]
            for blk_ in side:
                while room(g) < 1:
                    g += 1
                back[g] += blk_
                g += 1
        if mode != "last":
            pass
        else:
            for p in range(5):
                front[blk[16]+p] = ("l", f"ds_write_b128 v{56 if p < 4 else 57}, {ar(CAC+4*p, 4)} offset:{256*p}", "cw", None)
            g = blk[6]
            ops = stats_ops()
            while ops and g < NG:
                cost = 2 if ops[0].startswith(("v_sqrt", "v_rcp")) else 1
                if room(g) >= cost and not any(b_.startswith(("v_sqrt", "v_rcp")) for b_ in back[g]):
                    back[g].append(ops.pop(0))
                else:
                    g += 1
            rest = ops
        LG = Track("lgkm", ["w0"]*4 + ["w1"]*4)
        VM = Track("vm", [f"W{i}" for i in range(9)] + [f"X{i>>1}" for i in range(8)] if not z0 else ([] if w1in else ["W8"]*9))
        for g in range(NG):
            txt, needs = M[g]
            if needs:
                n_ = LG.need(needs)
                if n_ is not None:
                    A(f"s_waitcnt lgkmcnt({n_})")
            if not (cfg.get("nostat") and not needs and mode != "first") and not (cfg.get("noc") and needs and needs[0][0] == "c" and mode != "first"):
                A(txt)
            if front[g] is not None and cfg.get("noc") and front[g][2][0] == "c" and front[g][2] != "cw" and mode != "first":
                LG.issue(front[g][2])
                A("ds_read_b32 v63, v0")
            elif front[g] is not None:
                kind, s_, tag, nd_ = front[g]
                if nd_:
                    n_ = (VM if nd_[0] == "vm" else LG).need([nd_[1]])
                    if n_ is not None:
                        A(f"s_waitcnt {'vmcnt' if nd_[0] == 'vm' else 'lgkmcnt'}({n_})")
                A(s_)
                (LG if kind == "l" else VM).issue(tag)
            for s_ in back[g]:
                A(s_)
            if g == gb and mode != "last":
                assert VM.done > 8
                A("s_waitcnt lgkmcnt(0)")
                LG.drain()
                A("s_barrier")
        if mode in ("loop", "first"):
            assert [t for t in VM.q[17:]] == [f"W{i}" for i in range(9)] + [f"X{i>>1}" for i in range(8)], VM.q
        for s_ in rest:
            A(s_)

    A("s_mov_b32 s54, 4")
    A("s_mov_b32 s33, 0")
    A(f"s_mov_b32 s55, {SLOT}")
    A(f"s_mov_b32 s56, {-2*SLOT & 0xffffffff}")
    superstep(0, "first")
    if cfg.get("stamp") == 4:
        for k in range(1, 8):
            ST(4)
            superstep(k & 1, "loop")
        ST(4)
        A("s_branch K1_GEMM_END")
    A("s_branch K1_GEMM1")
    A.raw(".p2align 5")
    A.label("K1_GEMM")
    superstep(0, "loop")
    A.label("K1_GEMM1")
    superstep(1, "loop")
    A("s_sub_u32 s54, s54, 1")
    A("s_cmp_lg_u32 s54, 0")
    A("s_cbranch_scc1 K1_GEMM")
    A.label("K1_GEMM_END")
    ST(3)
    B = Asm()
    B("s_lshl_b32 s66, s32, 2")
    B("s_add_u32 s66, s66, s28")
    B(f"s_mul_i32 s67, s66, {4*RT_STRIDE}")
    srd(B, 24, 52, off_sgpr=67, off_imm=OF_OFF, size=4*RT_STRIDE)
    B("s_bfe_u32 s66, s2, 0x20003")
    B("s_mul_i32 s66, s66, 10240")
    B(f"s_sub_u32 s67, {240*40960}, s66")
    srd(B, 8, 52, off_sgpr=66, off_imm=WP_OFF, size_sgpr=67)
    B("s_and_b32 s66, s2, 1")
    B("s_lshl_b32 s66, s66, 5")
    B("s_lshr_b32 s67, s2, 3")
    B("s_add_u32 s66, s66, s67")
    B("s_mul_i32 s67, s66, 245760")
    srd(B, 4, 52, off_sgpr=67, off_imm=XCH_OFF, size=245760)
    B("s_lshr_b32 s66, s66, 2")
    B(f"s_mul_i32 s66, s66, {8*RT_STRIDE}")
    srd(B, 12, 52, off_sgpr=66, off_imm=OF_OFF, size=8*RT_STRIDE)
    B("s_mul_i32 s35, s31, 3")
    B("s_add_u32 s36, s35, 1")
    B("s_lshr_b32 s36, s36, 1")
    B("s_add_u32 s36, s36, 192")
    B("s_lshl_b32 s37, s36, 10")
    B("s_lshr_b32 s35, s35, 1")
    B("s_add_u32 s35, s35, 193")
    B("s_and_b32 s36, s31, 1")
    B("s_sub_u32 s35, s35, s36")
    B("s_lshl_b32 s35, s35, 10")
    B("s_lshl_b32 s36, s36, 9")
    B("s_add_u32 s38, s35, s36")
    B(f"s_mov_b32 s39, {16*1280}")
    B(f"v_lshlrev_b32 v{PS}, 4, v0")
    B("v_lshlrev_b32 v37, 3, v0")
    side = []
    for l in B.L:
        l = l.strip()
        if l.startswith("s_addc"):
            side[-1].append(l)
        else:
            side.append([l])
    superstep(0, "pre", side=side)
    ST(3)
    ST(4)
    superstep(1, "last")
    ST()
    ST(4)
    A("s_waitcnt vmcnt(9) lgkmcnt(0)")
    A("s_barrier")
    ST(3)
    CT = 48
    for i in range(4):
        A(f"ds_read_b128 v[{CT+4*i}:{CT+4*i+3}], v36 offset:{64*(11-(i^1))}")
    npk = 0
    for u in range(5, -1, -1):
        cb_ = CT + 8*((5-u) & 1)
        A("s_waitcnt lgkmcnt(2)" if u > 0 else "s_waitcnt lgkmcnt(0)")
        for qt in range(3, -1, -1):
            B = QA + (u*4+qt)*8
            pa = vr(PA+2*qt, 2)
            if npk < 10:
                A(f"s_add_u32 m0, s58, {1024*npk}")
            for p in range(4):
                A(f"v_pk_fma_f32 {vr(B+2*p, 2)}, {pa}, {vr(cb_+2*p, 2)}, {vr(B+2*p, 2)} op_sel_hi:[0,1,1]")
            for p in range(4):
                A(f"v_pk_mul_f32 {vr(B+2*p, 2)}, {pa}, {vr(B+2*p, 2)} op_sel:[1,0]")
            for p in range(3, -1, -1):
                A(f"v_cvt_pk_bf16_f32 v{QF+(u*4+qt)*4+p}, v{B+2*p}, v{B+2*p+1}")
            if npk < 10:
                A(f"buffer_load_dwordx4 v{PD+npk%5}, s[40:43], {'0' if npk < 5 else 's39'} offen nt lds")
                npk += 1
        if u >= 2:
            for i in range(2):
                A(f"ds_read_b128 v[{cb_+4*i}:{cb_+4*i+3}], v36 offset:{64*(2*(u-2)+i)}")
    ST(3)
    HC = 64
    SO = 37
    for t in range(6):
        A(f"ds_read_b128 v[{HC+4*t}:{HC+4*t+3}], v36 offset:{64*(12+t)}")
    for u in range(6):
        A(k_read(0, 0, u))
    A("s_waitcnt lgkmcnt(6)")
    for u in range(6):
        A(k_read(0, 1, u))
    cnt = 0
    for qt in range(4):
        HP = 148 + 6*(qt & 1)
        for t in range(3):
            G = 96 + (cnt % 4)*12
            U, T0 = G + 4, G + 8
            cnt += 1
            pa, pb = vr(PA+2*qt, 2), vr(PB+2*qt, 2)
            for r in range(4):
                A(f"v_accvgpr_read_b32 v{G+r}, a{GA+(t*4+qt)*4+r}")
            for r in range(4):
                A(f"v_accvgpr_read_b32 v{U+r}, a{GA+((t+3)*4+qt)*4+r}")
            for p in range(2):
                A(f"v_pk_fma_f32 {vr(G+2*p, 2)}, {pa}, {vr(HC+4*t+2*p, 2)}, {vr(G+2*p, 2)} op_sel_hi:[0,1,1]")
            for p in range(2):
                A(f"v_pk_fma_f32 {vr(U+2*p, 2)}, {pa}, {vr(HC+4*(t+3)+2*p, 2)}, {vr(U+2*p, 2)} op_sel_hi:[0,1,1]")
            for p in range(2):
                A(f"v_pk_mul_f32 {vr(T0+2*p, 2)}, {pb}, {vr(G+2*p, 2)} op_sel_hi:[0,1]")
            for r in range(4):
                A(f"v_exp_f32 v{T0+r}, v{T0+r}")
            for p in range(2):
                A(f"v_pk_mul_f32 {vr(G+2*p, 2)}, {vr(G+2*p, 2)}, {vr(U+2*p, 2)}")
            for p in range(2):
                A(f"v_pk_fma_f32 {vr(T0+2*p, 2)}, {vr(T0+2*p, 2)}, {pb}, {pb} op_sel:[0,1,1]")
            for r in range(4):
                A(f"v_rcp_f32 v{T0+r}, v{T0+r}")
            A("s_nop 0")
            for p in range(2):
                A(f"v_pk_mul_f32 {vr(G+2*p, 2)}, {vr(G+2*p, 2)}, {vr(T0+2*p, 2)}")
            for p in range(2):
                A(f"v_cvt_pk_bf16_f32 v{HP+2*t+p}, v{G+2*p}, v{G+2*p+1}")
            if t == 1:
                A(f"buffer_store_dwordx4 {vr(HP, 4)}, v{PS}, s[24:27], s37 offen sc1")
                A(f"s_add_u32 s37, s37, {RT_STRIDE}")
            if t == 2:
                A(f"buffer_store_dwordx2 {vr(HP+4, 2)}, v{SO}, s[24:27], s38 offen sc1")
                A(f"s_add_u32 s38, s38, {RT_STRIDE}")
    ST()
    B = Asm()
    B("s_mov_b32 s55, 0")
    B(f"s_mov_b32 s30, {3*12288}")
    B("s_cmp_eq_u32 s28, 0")
    B("s_cselect_b32 s59, 5, 1")
    B("s_mov_b32 s56, 0")
    B("s_mov_b32 s57, 0")
    B(f"s_mul_i32 s33, s28, {2*RT_STRIDE}")
    B(f"v_add_u32 v{PV}, s33, v{PS}")
    B(f"v_add_u32 v{PV+1}, {RT_STRIDE-2048}, v{PV}")
    B("s_lshr_b32 s33, s28, 1")
    B("s_mul_i32 s33, s33, 40960")
    B("s_and_b32 s35, s28, 1")
    B("s_mul_i32 s35, s35, 5120")
    B("s_add_u32 s33, s33, s35")
    B(f"v_add_u32 v{PV+2}, s33, v{PS}")
    B(f"v_add_u32 v{PV+3}, 4096, v{PV+2}")
    B("s_bfe_u32 s33, s2, 0x20001")
    B("s_mul_i32 s40, s33, 12")
    B("s_add_u32 s40, s40, 192")
    B("s_mul_i32 s43, s33, 48")
    B("s_lshl_b32 s41, s28, 12")
    B("s_mul_i32 s42, s28, 5120")
    B("s_add_u32 s42, s42, 16384")
    for i in range(4):
        B(f"v_mov_b32 v{18+i}, -1")
    B("v_and_b32 v25, 7, v0")
    B("v_lshlrev_b32 v25, 2, v25")
    B("v_mov_b32 v23, 0")
    B("s_mov_b64 exec, 3")
    B("global_store_dword v1, v23, s[52:53] sc1")
    B("s_mov_b64 exec, -1")
    for i in range(8):
        B(f"v_mov_b32 v{LS+i}, 0")
    f0 = [l.strip() for l in B.L]
    B = Asm()
    for qt in range(4):
        b = sreg(0, qt, 0)
        B(f"v_max3_f32 v{30+qt}, v{b}, v{b+1}, v{b+2}")
        B(f"v_max_f32 v{30+qt}, v{30+qt}, v{b+3}")
    xlane_reduce(B, "v_max_f32", [30, 31, 32, 33], 14)
    for qt in range(4):
        for r in range(4):
            B(f"v_sub_f32 v{NM+qt*4+r}, 0, v{30+qt}")
    for kt in range(2):
        for qt in range(4):
            for e in range(4):
                B(f"v_sub_f32 v{sreg(0, qt, kt)+e}, v{sreg(0, qt, kt)+e}, v{30+qt}")
    f1 = [l.strip() for l in B.L]
    A("s_waitcnt lgkmcnt(0)")
    A("s_nop 1")
    for g, m_ in enumerate(qk_mfmas(0, zero=True)):
        A(m_)
        src = f0 if g < 24 else f1
        if g == 24:
            assert not f0
            A("s_waitcnt vmcnt(19)")
            A("s_barrier")
        elif 24 < g < 30:
            A(k_read(1, 1, g - 25))
            if g == 29:
                A(k_read(1, 1, 5))
        else:
            for _ in range(2):
                if src:
                    if src[0] == "s_mov_b64 exec, 3":
                        A(src.pop(0))
                        A(src.pop(0))
                    A(src.pop(0))
    for u in range(6):
        A(k_read(1, 0, u))
    assert len(f1) >= 24
    for l in f1:
        A(l)
    A.label("K1_SKIPMAX")
    ST(3)
    E, S = softmax_ops(0, (0,))
    for e in E:
        A(e)
    A("s_nop 0")
    for _, s in S:
        A(s)
    gaps = [[[], [], []] for _ in range(48)]
    gaps[1][2].append(f"s_add_u32 m0, s29, {KREG}")
    for n in range(3):
        gaps[3+6*n][0].append(f"buffer_load_dwordx4 v{DK+n}, s[16:19], s30 offen offset:{1024*n} lds")
    gaps[15][2].append("s_sub_u32 s30, s30, 12288")
    E, S = softmax_ops(0, (1, 2, 3))
    fill_valu(gaps, 0, 48, E, S)
    A("s_waitcnt lgkmcnt(0)")
    for g, m_ in enumerate(qk_mfmas(1)):
        A(m_)
        for s in gaps[g][0] + gaps[g][1] + gaps[g][2]:
            A(s)
    for u in range(6):
        A(k_read(2, 0, u))
    E, S = softmax_ops(1, (0, 1))
    for e in E:
        A(e)
    A("s_nop 0")
    for _, s in S:
        A(s)
    ST()
    A("s_mov_b32 s54, 15")
    A("s_waitcnt lgkmcnt(0)")
    gen_stage(A, 0, first=True)
    gen_stage(A, 1, first=True)
    A("s_branch K1_LOOP2")
    A.raw(".p2align 6")
    A.label("K1_LOOP")
    gen_stage(A, 0, extra=[(90, "s_sub_u32 s54, s54, 1")])
    gen_stage(A, 1, extra=[(93, "s_cmp_eq_u32 s54, 0")])
    A("s_cbranch_scc1 K1_TAIL")
    A.label("K1_LOOP2")
    gen_stage(A, 2)
    gen_stage(A, 3, extra=[(93, "s_cmp_lg_u32 s54, s59")])
    A("s_cbranch_scc1 K1_LOOP")
    A("s_cmp_eq_u32 s54, 1")
    A("s_cbranch_scc0 K1_REPORT")
    A("global_load_dword v23, v25, s[64:65] sc1")
    A("s_branch K1_LOOP")
    A.label("K1_REPORT")
    A("s_mov_b32 s59, 1")
    A("s_and_b32 s33, s2, 7")
    A("s_lshl_b32 s33, s33, 2")
    A("v_mov_b32 v14, 1")
    A("v_mov_b32 v16, s33")
    A("s_mov_b64 exec, 1")
    A("global_atomic_add v16, v14, s[64:65] sc1")
    A("s_mov_b64 exec, -1")
    A("s_branch K1_LOOP")
    A.label("K1_TAIL")
    gen_tail(A)
    ST()
    A("s_andn2_b32 s34, s34, s55" if not cfg.get("abl", 0) else "s_and_b32 s34, 0, s34")
    A("s_cbranch_scc0 K1_EPI")
    A("s_mov_b32 s55, 1")
    A("v_and_b32 v34, 15, v0")
    A("v_mul_u32_u24 v34, 384, v34")
    A("v_lshrrev_b32 v35, 4, v0")
    A("v_lshl_add_u32 v34, v35, 4, v34")
    for qt in range(4):
        A(f"v_mov_b32 v{30+qt}, 0xff800000")
    A("s_mov_b32 s34, 0")
    A.label("K1_MAXLOOP")
    for u in range(6):
        A(f"buffer_load_dwordx4 {ar(KF+u*4, 4)}, v34, s[16:19], s34 offen offset:{64*u}")
    A("s_waitcnt vmcnt(0)")
    for qt in range(4):
        d = vr(sreg(0, qt, 0), 4)
        for u in range(6):
            A(mfma(d, ar(KF+u*4, 4), qf(qt, u), "0" if u == 0 else d))
    A("s_nop 15")
    for qt in range(4):
        b = sreg(0, qt, 0)
        A(f"v_max3_f32 v{30+qt}, v{30+qt}, v{b}, v{b+1}")
        A(f"v_max3_f32 v{30+qt}, v{30+qt}, v{b+2}, v{b+3}")
    A("s_add_u32 s34, s34, 6144")
    A("s_cmp_lt_u32 s34, 786432")
    A("s_cbranch_scc1 K1_MAXLOOP")
    xlane_reduce(A, "v_max_f32", [30, 31, 32, 33], 34)
    for qt in range(4):
        for r in range(4):
            A(f"v_sub_f32 v{NM+qt*4+r}, 0, v{30+qt}")
    A("s_mov_b32 s46, 0")
    A("s_mov_b32 s50, 0")
    A("v_mov_b32 v35, 0")
    A("s_barrier")
    for kind, i in [("K", 0), ("K", 1), ("V", 0), ("K", 2), ("V", 1), ("K", 3)]:
        emit_plain(A, kv_dma(kind, i))
    A(f"s_mov_b32 s30, {3*12288}")
    for i in range(8):
        A(f"v_mov_b32 v{LS+i}, 0")
    A("s_waitcnt vmcnt(0)")
    A("s_barrier")
    for kt in range(2):
        for u in range(6):
            A(k_read(0, kt, u))
    A("s_waitcnt lgkmcnt(0)")
    for m_ in qk_mfmas(0):
        A(m_)
    A("s_barrier")
    for kt in range(2):
        for u in range(6):
            A(k_read(1, kt, u))
    A("s_nop 7")
    A("s_branch K1_SKIPMAX")
    A.label("K1_EPI")
    gen_proj(A, cfg, ST)
    ST.dump(28)
    A.label("K1_END")
    A("s_endpgm")
    kernel_desc(A, name, 512, 102 if ST.on else 72, 256)


PSLOT = 36864


def p_fill_b(ffn=True):
    L = [("s", "s_lshl_b32 s37, s36, 10"), ("s", "s_add_u32 m0, s39, s41")]
    for i in range(4):
        L.append(("d", f"buffer_load_dwordx4 v{PV+(i>>1)}, s[12:15], s37 offen offset:{1024*i} sc1 lds"))
    return L


def p_fill_a():
    L = [("s", "s_mul_i32 s38, s36, 40960"), ("s", "s_add_u32 m0, s39, s42")]
    for i in range(4):
        L.append(("d", f"buffer_load_dwordx4 v{PV+2}, s[8:11], s38 offen offset:{1024*i} sc1 lds"))
    L.append(("s", "s_add_u32 m0, m0, 4096"))
    L.append(("d", f"buffer_load_dwordx4 v{PV+3}, s[8:11], s38 offen sc1 lds"))
    return L


def p_at(m):
    return [("s", f"s_add_u32 s36, s40, {2*m}" if m < 6 else f"s_add_u32 s36, s43, {2*(m-6)}"),
            ("s", f"s_mov_b32 s39, {(m % 4)*PSLOT}")]


def tagd(L, tag):
    return [e if e[0] != "d" else (e[0], e[1], tag) for e in L]


NTAILF = 3
SEL = 104
PV = 26


def gen_proj(A, cfg, ST):
    FA, SA, OS, TM = 32, 112, 160, 192
    RB = 4
    L16, L8 = 16, 17
    VM = Track("vm", ["G0"]*9 + ["G1"]*9 + ["G2"]*9)

    def send(P, t, kind, tag):
        L = [("s", f"s_add_u32 s34, s{44+t}, {kind*7680 + (t-1)*2560}")]
        L.append(("d", f"buffer_store_dwordx4 {vr(P, 4)}, v{L16}, s[4:7], s34 offen sc1", tag))
        L.append(("d", f"buffer_store_dwordx4 {vr(P+4, 4)}, v{L16}, s[4:7], s34 offen offset:1024 sc1", tag))
        L.append(("d", f"buffer_store_dwordx2 {vr(P+8, 2)}, v{L8}, s[4:7], s34 offen offset:2048 sc1", tag))
        return L

    RC = 30
    A("s_mul_i32 s33, s31, 6144")
    for qt in range(4):
        A(f"s_add_u32 s{16+2*qt}, s33, {qt*RT_STRIDE}")
        A(f"s_add_u32 s{17+2*qt}, s33, {qt*RT_STRIDE+4096}")
    def o_store(qt, u):
        so, im = (16+2*qt, 1024*u) if u < 4 else (17+2*qt, 1024*(u-4))
        A(f"buffer_store_dwordx4 {vr(OS+(qt*6+u)*4, 4)}, v{L16}, s[24:27], s{so} offen offset:{im} sc1")
        VM.issue("O")
    g3e = cfg.get("g3e", 0)
    g2 = tagd(p_at(3) + p_fill_b() + p_fill_a(), "G3") if g3e else []
    stores = []
    units = [(u, pr, h) for u in range(6) for pr in range(2) for h in range(2)]

    def finish(k):
        u, pr, h = units[k]
        D = 112 + (k % 2)*8
        for i in range(2):
            for p in range(2):
                A(f"v_cvt_pk_bf16_f32 v{OS+((2*pr+i)*6+u)*4+2*h+p}, v{D+4*i+2*p}, v{D+4*i+2*p+1}")
            if h == 1:
                o_store(2*pr+i, u)
    for k, (u, pr, h) in enumerate(units):
        T0, X, D = 48 + (k % 2)*8, 96 + (k % 2)*4, 112 + (k % 2)*8
        if g2:
            while g2[0][0] != "d":
                A(g2.pop(0)[1])
        for e in range(8):
            A(f"v_accvgpr_read_b32 v{T0+e}, a{oacc(2*u+h, 2*pr+(e>>2))+(e&3)}")
        if g2:
            e = g2.pop(0)
            A(e[1])
            VM.issue(e[2])
        for p in range(4):
            A(f"v_pk_mul_f32 {vr(T0+2*p, 2)}, {vr(NM+8*pr+2*p, 2)}, {vr(T0+2*p, 2)}")
        for p in range(4):
            A(f"v_cvt_pk_bf16_f32 v{X+p}, v{T0+2*p}, v{T0+2*p+1}")
        if k:
            finish(k - 1)
        else:
            A("s_nop 1")
        A(mfma(vr(D, 4), vr(X, 4), vr(SEL+2, 4), "0"))
        A(mfma(vr(D+4, 4), vr(X, 4), vr(SEL, 4), "0"))
    A("s_nop 7")
    finish(23)
    assert not g2
    A("s_bfe_u32 s29, s2, 0x20001")
    A("s_and_b32 s30, s2, 1")
    A("s_lshl_b32 s30, s30, 3")
    A("s_lshr_b32 s33, s2, 5")
    A("s_add_u32 s30, s30, s33")
    A("s_lshr_b32 s33, s28, 1")
    A("s_lshl_b32 s33, s33, 2")
    A("s_mul_i32 s35, s28, 15360")
    for t in range(4):
        A(f"s_add_u32 s34, s29, {t}")
        A("s_and_b32 s34, s34, 3")
        A(f"s_mul_i32 s{44+t}, s34, 61440")
        A(f"s_add_u32 s{44+t}, s{44+t}, s35")
        A("s_add_u32 s34, s34, s33")
        A("s_lshl_b32 s34, s34, 11")
        A(f"v_add_u32 v{RB+t}, s34, v{L16}")
        A(f"v_add_u32 v{RB+5+t}, s34, v{L8}")
    A("s_and_b32 s34, s28, 1")
    A("s_mul_i32 s34, s34, 5120")
    A("s_add_u32 s34, s34, 16384")
    A(f"v_add_u32 v{RB+4}, s34, v{L16}")
    A("s_lshl_b32 s34, s30, 3")
    A("s_add_u32 s34, s34, s33")
    A("s_add_u32 s34, s34, s29")
    A("s_lshl_b32 s34, s34, 4")
    A("v_and_b32 v3, 15, v0")
    A("v_add_u32 v3, s34, v3")
    A("v_mul_u32_u24 v3, 1280, v3")
    A("v_lshrrev_b32 v2, 4, v0")
    A("v_lshl_add_u32 v3, v2, 3, v3")
    A("s_bfe_u32 s34, s2, 0x20003")
    A("s_lshl_b32 s34, s34, 1")
    A("s_and_b32 s35, s28, 1")
    A("s_add_u32 s34, s34, s35")
    A("s_mul_i32 s34, s34, 160")
    A("v_add_u32 v3, s34, v3")
    A("s_lshl_b32 s34, s30, 1")
    A("s_lshr_b32 s35, s28, 1")
    A("s_add_u32 s34, s34, s35")
    A("s_lshl_b32 s34, s34, 7")
    A("s_lshl_b32 s35, s29, 5")
    A("s_add_u32 s34, s34, s35")
    A(f"s_add_u32 s34, s34, {FLG_OFF}")
    A("v_and_b32 v2, 7, v0")
    A("v_lshl_add_u32 v2, v2, 2, s34")
    A(f"s_mov_b32 s48, {PSLOT}")
    A(f"s_mov_b32 s49, {-3*PSLOT & 0xffffffff}")
    ST()

    def reads(n, k2):
        L = []
        split = n is not None and n < 12 and n % 3 == 1
        order = [("A", 0), ("B", 0), ("B", 1), ("B", 2), ("B", 3), ("A", 1), ("A", 2), ("A", 3), ("A", 4)]
        for kind, i in order:
            if kind == "B" and split:
                L.append(f"ds_read2_b64 {ar(36*k2+4*i, 4)}, v{RB+5+i} offset0:{128*k2} offset1:{128*k2+64}")
            elif kind == "B":
                L.append(f"ds_read_b128 {ar(36*k2+4*i, 4)}, v{RB+i} offset:{1024*k2}")
            else:
                L.append(f"ds_read_b128 {ar(36*k2+16+4*i, 4)}, v{RB+4} offset:{10240*k2+1024*i}")
        return L

    def half(k2, acc0, gaps, zero=False):
        for g in range(20):
            if cfg.get("psn", 1) == 2:
                t, c = divmod(g, 5)
                if t % 2:
                    c = 4 - c
                t = 3 - t
            else:
                c, t = divmod(g, 4)
                if cfg.get("psn", 1) and c % 2:
                    t = 3 - t
            acc = vr(acc0 + 20*t + 4*c, 4)
            A(mfma(acc, ar(36*k2+16+4*c, 4), ar(36*k2+4*t, 4), "0" if zero else acc))
            for e in gaps[g]:
                if callable(e):
                    e()
                elif isinstance(e, tuple):
                    A(e[0])
                    VM.issue(e[1])
                else:
                    A(e)

    RP = [0, 1, 3, 4, 5, 7, 8, 9, 11]

    def place(gaps, L, pos):
        pos = list(pos)
        pend = []
        for e in L:
            if e[0] != "d":
                pend.append(e[1])
                continue
            g = pos.pop(0)
            for k, s_ in enumerate(pend):
                gaps[max(0, g - 1 - (len(pend) - 1 - k) // 2)].append(s_)
            pend = []
            gaps[g].insert(0, (e[1], e[2]))
        assert not pend

    def spread(n, lo=2, hi=38):
        cand = [g for g in range(lo, hi + 1) if (g % 20) not in RP]
        assert n <= len(cand), (n, len(cand))
        return [cand[(k*len(cand))//n] for k in range(n)]

    def base_adv(gaps, m, wide):
        d = PSLOT if (m + 1) % 4 else -3*PSLOT
        regs = list(range(RB, RB+5)) + (list(range(RB+5, RB+9)) if wide else [])
        g = len(gaps) - 8
        for i, r in enumerate(regs):
            gaps[g + (i*7)//len(regs)].append(f"v_add_u32 v{r}, s{48 if d > 0 else 49}, v{r}")

    def set_flag(lane, tag):
        def fn():
            n_ = VM.need([tag])
            if n_ is not None:
                A(f"s_waitcnt vmcnt({n_})")
            A("v_mov_b32 v14, 1")
            A(f"s_mov_b64 exec, {1 << lane}")
            A("global_store_dword v1, v14, s[52:53] sc1")
            A("s_mov_b64 exec, -1")
            VM.issue("flag")
        return fn

    def check_flags(label, vaddr, flush=None):
        if flush is None:
            n_ = VM.need(["poll" + label])
            if n_ is not None:
                A(f"s_waitcnt vmcnt({n_})")
        A("v_cmp_ne_u32 vcc, 0, v15")
        A("s_cmp_eq_u64 vcc, exec")
        A(f"s_cbranch_scc1 {label}_OK")
        if flush is not None:
            for e in flush:
                A(e[1])
            A("s_mov_b32 s26, 0")
            A("v_mov_b32 v14, 1")
            A("s_waitcnt vmcnt(0)")
            A("s_mov_b64 exec, 1")
            A("global_store_dword v1, v14, s[52:53] sc1")
        poll(A, label, vaddr, 15, "s[52:53]", "-1", "0")

    def sbody(m, ops, extra=None):
        gaps = [[] for _ in range(40)]
        for k, s_ in enumerate(reads(2*m+2, 0)):
            gaps[RP[k]].append(s_)
        for k, s_ in enumerate(reads(2*m+3, 1)):
            gaps[20+RP[k]].append(s_)
        nd = sum(e[0] == "d" for e in ops)
        place(gaps, ops, spread(nd) if nd else [])
        gaps[19].append("s_waitcnt lgkmcnt(0)")
        base_adv(gaps, m + 1, m + 1 < 5)
        for g, e in (extra or []):
            gaps[g].append(e)
        n_ = VM.need([f"G{m+1}"])
        A("s_waitcnt lgkmcnt(0)" + (f" vmcnt({n_})" if n_ is not None else ""))
        A("s_barrier")
        half(1, FA if 2*m+1 < 12 else SA, gaps[:20])
        half(0, FA if 2*m+2 < 12 else SA, gaps[20:], zero=(2*m+2 == 12))
        if m < 12:
            ST(2)

    def full(m):
        return tagd(p_at(m) + p_fill_b(m < 6) + p_fill_a(), f"G{m}")

    def only_a(m):
        return tagd(p_at(m) + p_fill_a(), f"G{m}")

    def only_b(m):
        return tagd(p_at(m) + p_fill_b(m < 6), f"G{m}")

    def mix(*lists):
        pos = []
        for gi, L in enumerate(lists):
            g, cur = [], []
            for e in L:
                cur.append(e)
                if e[0] == "d":
                    g.append(cur)
                    cur = []
            for k, e in enumerate(g):
                pos.append(((k + 0.5) / len(g), gi, e))
        pos.sort(key=lambda x: (x[0], x[1]))
        return [e for _, _, grp in pos for e in grp]

    ST(2)
    n_ = VM.need(["G0"])
    A(f"s_waitcnt vmcnt({n_})")
    A("s_barrier")
    for s_ in reads(0, 0):
        A(s_)
    A("s_waitcnt lgkmcnt(0)")
    gaps = [[] for _ in range(20)]
    for k, s_ in enumerate(reads(1, 1)):
        gaps[RP[k]].append(s_)
    fl, pl = cfg.get("fl", -1), cfg.get("pl", 2)
    nrest = len(stores)
    take = lambda n: [stores.pop(0) for _ in range(min(n, len(stores)))]
    ops = mix(only_a(3) if not g3e else [], take((nrest + 4) // 5 if fl >= 1 else (nrest + 2) // 3 if fl == 0 else nrest))
    if ops:
        place(gaps, ops, spread(sum(e[0] == "d" for e in ops), 2, 18))
    if fl == -1:
        gaps[19].append(set_flag(0, "O"))
    base_adv(gaps, 0, True)
    half(0, FA, gaps, zero=True)
    pend_b = []
    for m in range(5):
        ops = (only_b(3) if m == 0 and not g3e else [])
        if m + 4 < 6 or m > pl:
            ops += pend_b + full(m + 4)
            pend_b = []
        else:
            ops += only_a(m + 4)
            pend_b += only_b(m + 4)
        st_ = take((len(stores) + 1) // 2 if (m == 0 and fl >= 1) else len(stores))
        ex_ = []
        if m == fl:
            ex_.append((39, set_flag(0, "O")))
        if m == pl:
            ex_.append((cfg.get("pollat", 6), ("global_load_dword v15, v2, s[52:53] sc1", "pollK2_PO")))
        sbody(m, (st_ + ops if cfg.get("stfirst") else mix(ops, st_)) if st_ else ops, extra=ex_)
        if m == pl:
            ST()
            check_flags("K2_PO", 2)
            ST()
    assert not pend_b and not stores and fl < pl
    cv = []
    for t in range(1, 4):
        for q in range(10):
            cv.append(f"v_cvt_pk_bf16_f32 v{TM+10*(t-1)+q}, v{FA+20*t+2*q}, v{FA+20*t+2*q+1}")
    sbody(5, full(9), extra=[(28 + k // 2, c_) for k, c_ in enumerate(cv[:20])])
    fs = [send(TM+10*(t-1), t, 1, "F") for t in range(1, 4)]
    if cfg.get("nofsc"):
        fs = [[(e[0], e[1].replace(" sc1", "")) + tuple(e[2:]) for e in f] for f in fs]
    sbody(6, mix(full(10), fs[0]), extra=[(k, c_) for k, c_ in enumerate(cv[20:])])
    sbody(7, mix(full(11), fs[1]))
    sbody(8, mix(full(12), fs[2]))
    sbody(9, full(13))
    sbody(10, full(14))
    sbody(11, full(15), extra=[(0, set_flag(1, "F"))])
    ST()
    assert [t for t in VM.q if t != "pf"][-19:] == ["G14"]*9 + ["flag"] + ["G15"]*9, VM.q[-30:]
    A(f"s_add_u32 s36, s43, {2*(16-6)}")
    A(f"s_mov_b32 s39, {(16 % 4)*PSLOT}")
    A(f"s_mov_b32 s35, {(13 % 4)*PSLOT}")
    A("s_mov_b32 s54, 14")
    DP = [2, 6, 10, 14, 18, 22, 26, 30, 34]
    gaps = [[] for _ in range(40)]
    for k, s_ in enumerate(reads(None, 0)):
        gaps[RP[k]].append(s_)
    for k, s_ in enumerate(reads(None, 1)):
        gaps[20+RP[k]].append(s_)
    g, nd = 0, 0
    for e in p_fill_b(False) + p_fill_a():
        if e[0] == "d":
            g = DP[nd]
            nd += 1
            gaps[g].append(e[1])
        else:
            gaps[g] += list(e[1:])
            g += 1
    gaps[16] += ["s_add_u32 s36, s36, 2", f"s_add_u32 s39, s39, {PSLOT}"]
    gaps[17] += [f"s_cmp_eq_u32 s39, {4*PSLOT}", "s_cselect_b32 s39, 0, s39"]
    gaps[19] += ["s_waitcnt lgkmcnt(0)"]
    gaps[12] += [f"s_add_u32 s35, s35, {PSLOT}", "s_sub_u32 s54, s54, 1"]
    gaps[13] += [f"s_cmp_eq_u32 s35, {4*PSLOT}", "s_cselect_b32 s50, s49, s48"]
    gaps[32] += [f"s_cmp_eq_u32 s35, {4*PSLOT}", "s_cselect_b32 s35, 0, s35"]
    for i, g_ in enumerate((33, 33, 35, 35, 37)):
        gaps[g_].append(f"v_add_u32 v{RB+i}, s50, v{RB+i}")
    gaps[38] += ["s_cmp_lg_u32 s54, 0"]
    pa_ = cfg.get("pabl", 0)
    gaps = [[e for e in g if not ((pa_ & 1 and e.startswith("buffer_load")) or (pa_ & 2 and e.startswith("ds_read")))] for g in gaps]
    A.label("K2_LOOP")
    A("s_waitcnt vmcnt(18) lgkmcnt(0)")
    if not pa_ & 4:
        A("s_barrier")
    half(1, SA, gaps[:20])
    half(0, SA, gaps[20:])
    A("s_cbranch_scc1 K2_LOOP")
    ST()
    VM.q, VM.done = ["G27"]*9 + ["G28"]*9 + ["G29"]*9, 0
    RF, RS, T, XR, XF_ = 52, 82, 192, 222, 232
    FS = FA

    def recv(P, off, tag):
        return [("s", f"s_add_u32 s34, s44, {off}"),
                ("d", f"buffer_load_dwordx4 {vr(P, 4)}, v{L16}, s[4:7], s34 offen sc1", tag),
                ("d", f"buffer_load_dwordx4 {vr(P+4, 4)}, v{L16}, s[4:7], s34 offen offset:1024 sc1", tag),
                ("d", f"buffer_load_dwordx2 {vr(P+8, 2)}, v{L8}, s[4:7], s34 offen offset:2048 sc1", tag)]
    B = Asm()
    B("s_lshr_b32 s33, s2, 3")
    B("s_and_b32 s34, s2, 1")
    B("s_lshl_b32 s34, s34, 5")
    B("s_add_u32 s33, s33, s34")
    B("s_lshl_b32 s33, s33, 2")
    B("s_add_u32 s33, s33, s28")
    B("s_lshl_b32 s33, s33, 4")
    B(f"s_add_u32 s33, s33, {FLG_OFF + 0x1000}")
    B("v_and_b32 v2, 3, v0")
    B("v_lshl_add_u32 v2, v2, 2, s33")
    srd(B, 20, 60, size=2621440)
    srd(B, 16, 62, size=2621440)
    ex_ = [(k, l.strip()) for k, l in enumerate(B.L)]
    ex_.append((19, ("global_load_dword v15, v2, s[52:53] sc1", "pollK2_PF")))
    for c in range(5):
        ex_.append((22 + 3*c, (f"buffer_load_dwordx2 v[{XR+2*c}:{XR+2*c+1}], v3, s[20:23], 0 offen offset:{32*c}", "x")))
    sbody(26, [], extra=ex_)
    sbody(27, [])
    check_flags("K2_PF", 2)
    sbody(28, sum((recv(RF+10*d, 7680+2560*d, f"RF{d}") for d in range(3)), []))
    A("s_waitcnt lgkmcnt(0)")
    gaps = [[] for _ in range(20)]
    place(gaps, sum((recv(RS+10*d, 2560*d, "RS") for d in range(3)), []), [2*k+1 for k in range(9)])
    half(1, SA, gaps)
    ST()
    A("s_nop 7")
    for t in range(1, 4):
        P = SA + 20*t
        for q in range(10):
            A(f"v_cvt_pk_bf16_f32 v{P+q}, v{P+2*q}, v{P+2*q+1}")
        for e in send(P, t, 0, "S"):
            A(e[1])
            if e[0] == "d":
                VM.issue(e[2])
    for d in range(3):
        A(f"s_waitcnt vmcnt({VM.need([f'RF{d}'])})")
        for q in range(10):
            A(f"v_lshlrev_b32 v{T+2*q}, 16, v{RF+10*d+q}")
            A(f"v_and_b32 v{T+2*q+1}, 0xffff0000, v{RF+10*d+q}")
        for q in range(10):
            A(f"v_pk_add_f32 {vr(FS+2*q, 2)}, {vr(FS+2*q, 2)}, {vr(T+2*q, 2)}")
    A(f"s_mov_b32 s33, {hex(f2u(-LOG2E))}")
    for q in range(10):
        A(f"v_cvt_pk_bf16_f32 v{T+q}, v{FS+2*q}, v{FS+2*q+1}")
    for q in range(10):
        A(f"v_lshlrev_b32 v{FS+2*q}, 16, v{T+q}")
        A(f"v_and_b32 v{FS+2*q+1}, 0xffff0000, v{T+q}")
    for q in range(20):
        A(f"v_mul_f32 v{T+q}, s33, v{FS+q}")
    for q in range(20):
        A(f"v_exp_f32 v{T+q}, v{T+q}")
    for q in range(20):
        A(f"v_add_f32 v{T+q}, 1.0, v{T+q}")
    for q in range(20):
        A(f"v_rcp_f32 v{T+q}, v{T+q}")
    for q in range(10):
        A(f"v_pk_mul_f32 {vr(FS+2*q, 2)}, {vr(FS+2*q, 2)}, {vr(T+2*q, 2)}")
    for q in range(10):
        A(f"v_cvt_pk_bf16_f32 v{T+q}, v{FS+2*q}, v{FS+2*q+1}")
    for q in range(10):
        A(f"v_lshlrev_b32 v{FS+2*q}, 16, v{T+q}")
        A(f"v_and_b32 v{FS+2*q+1}, 0xffff0000, v{T+q}")
        A(f"v_lshlrev_b32 v{XF_+2*q}, 16, v{XR+q}")
        A(f"v_and_b32 v{XF_+2*q+1}, 0xffff0000, v{XR+q}")
    ST()
    A(f"s_mov_b32 s35, {SPIN_MAX if not cfg.get('sabl') else 1}")
    A(f"s_waitcnt vmcnt({VM.need(['RS'])})")
    A.label("K2_PS")
    A(f"v_max3_u32 v12, v{RS}, v{RS+1}, v{RS+2}")
    A(f"v_max3_u32 v13, v{RS+3}, v{RS+4}, v{RS+5}")
    for q in range(6, 30, 4):
        A(f"v_max3_u32 v12, v12, v{RS+q}, v{RS+q+1}")
        A(f"v_max3_u32 v13, v13, v{RS+q+2}, v{RS+q+3}")
    A("v_max_u32 v12, v12, v13")
    A("v_cmp_eq_u32 vcc, -1, v12")
    A("s_cmp_eq_u64 vcc, 0")
    A("s_cbranch_scc1 K2_PS_OK")
    A("s_sub_u32 s35, s35, 1")
    A("s_cmp_eq_u32 s35, 0")
    A("s_cbranch_scc1 K2_PS_OK")
    pm = cfg.get("pm", 0)
    if pm == 1:
        A(f"s_sleep {cfg.get('psl', 8)}")
    elif pm == 2:
        A("v_min_u32 v12, 2, v0")
        A("v_mul_u32_u24 v12, 2560, v12")
        A("v_add_u32 v12, 2556, v12")
        A.label("K2_PI")
        A("buffer_load_dword v13, v12, s[4:7], s44 offen sc1")
        A("s_waitcnt vmcnt(0)")
        A("v_cmp_eq_u32 vcc, -1, v13")
        A("s_cmp_eq_u64 vcc, 0")
        A("s_cbranch_scc1 K2_PI_OK")
        A(f"s_sleep {cfg.get('psl', 2)}")
        A("s_sub_u32 s35, s35, 1")
        A("s_cmp_gt_u32 s35, 1")
        A("s_cbranch_scc1 K2_PI")
        A.label("K2_PI_OK")
    for d in range(3):
        for e in recv(RS + 10*d, 2560*d, "RS"):
            A(e[1])
    A("s_waitcnt vmcnt(0)")
    A("s_branch K2_PS")
    A.label("K2_PS_OK")
    ST()
    for d in range(3):
        for q in range(10):
            A(f"v_lshlrev_b32 v{T+2*q}, 16, v{RS+10*d+q}")
            A(f"v_and_b32 v{T+2*q+1}, 0xffff0000, v{RS+10*d+q}")
        for q in range(10):
            A(f"v_pk_add_f32 {vr(SA+2*q, 2)}, {vr(SA+2*q, 2)}, {vr(T+2*q, 2)}")
    for q in range(10):
        A(f"v_cvt_pk_bf16_f32 v{T+q}, v{SA+2*q}, v{SA+2*q+1}")
    for q in range(10):
        A(f"v_lshlrev_b32 v{SA+2*q}, 16, v{T+q}")
        A(f"v_and_b32 v{SA+2*q+1}, 0xffff0000, v{T+q}")
    for q in range(10):
        A(f"v_pk_mul_f32 {vr(SA+2*q, 2)}, {vr(SA+2*q, 2)}, {vr(FS+2*q, 2)}")
    for q in range(10):
        A(f"v_cvt_pk_bf16_f32 v{T+q}, v{SA+2*q}, v{SA+2*q+1}")
    for q in range(10):
        A(f"v_lshlrev_b32 v{SA+2*q}, 16, v{T+q}")
        A(f"v_and_b32 v{SA+2*q+1}, 0xffff0000, v{T+q}")
    for q in range(10):
        A(f"v_pk_add_f32 {vr(SA+2*q, 2)}, {vr(SA+2*q, 2)}, {vr(XF_+2*q, 2)}")
    for q in range(10):
        A(f"v_cvt_pk_bf16_f32 v{XR+q}, v{SA+2*q}, v{SA+2*q+1}")
    for c in range(5):
        A(f"buffer_store_dwordx2 v[{XR+2*c}:{XR+2*c+1}], v3, s[16:19], 0 offen offset:{32*c}")
    ST()


HEADER = """; Kernarg layout for this problem (96 bytes, ptrs only, base s[0:1]):
;   offset  72: d_out     shape=(1, 2048, 640) dtype=bfloat16
"""


CFG = {}


def generate(cfg):
    CFG.clear()
    CFG.update(cfg)
    A = Asm()
    A.raw(HEADER.rstrip())
    A.raw(f"; @launch grid=(256,1,1) block=(256,1,1) lds={K1_LDS}")
    A.raw('.amdgcn_target "amdgcn-amd-amdhsa--gfx950"')
    gen_main(A, cfg)
    return A.text()


if __name__ == "__main__":
    for x in range(192):
        assert (x * 2731) >> 16 == x // 24 and (x * 10923) >> 16 == x // 6
    for x in range(320):
        assert (x * 3277) >> 16 == x // 20
    cfg = {}
    out = f"cdna_kernels/{NAME}.s"
    for a in sys.argv[1:]:
        if "=" in a:
            k, v = a.split("=")
            if k == "out":
                out = v
            else:
                cfg[k] = int(v)
    open(out, "w").write(generate(cfg))
    print("wrote", out)
```

```python
import sys, math, struct

NAME = "recurrent_scan__mha_block_cached__swiglu_ffn__prompt"
XN_OFF = 0
WP_OFF = 0x400000
OF_OFF = 0x1000000
RT_STRIDE = 240 * 1024
LOG2E = 1.4426950408889634


def f2u(x):
    return struct.unpack("<I", struct.pack("<f", x))[0]


class Asm:
    def __init__(self):
        self.L = []

    def __call__(self, s):
        self.L.append("    " + s)

    def label(self, s):
        self.L.append(s + ":")

    def raw(self, s):
        self.L.append(s)

    def text(self):
        return "\n".join(self.L) + "\n"


def vr(b, n=1):
    return f"v{b}" if n == 1 else f"v[{b}:{b+n-1}]"


def ar(b, n=1):
    return f"a{b}" if n == 1 else f"a[{b}:{b+n-1}]"


def sr(b, n=1):
    return f"s{b}" if n == 1 else f"s[{b}:{b+n-1}]"


def kernel_begin(A, name):
    A.raw(".text")
    A.raw(f".globl {name}")
    A.raw(".p2align 8")
    A.raw(f".type {name},@function")
    A.label(name)


def kernel_desc(A, name, nv, ns, ao):
    A.raw('.section .rodata,"a"')
    A.raw(".p2align 6")
    A.raw(f".amdhsa_kernel {name}")
    A.raw(f"  .amdhsa_next_free_vgpr {nv}")
    A.raw(f"  .amdhsa_next_free_sgpr {ns}")
    A.raw(f"  .amdhsa_accum_offset {ao}")
    A.raw("  .amdhsa_group_segment_fixed_size 0")
    A.raw("  .amdhsa_kernarg_size 96")
    A.raw("  .amdhsa_user_sgpr_count 2")
    A.raw("  .amdhsa_user_sgpr_kernarg_segment_ptr 1")
    A.raw("  .amdhsa_system_sgpr_workgroup_id_x 1")
    A.raw(".end_amdhsa_kernel")


def srd(A, d, ptr, off_sgpr=None, off_imm=0, size=None, size_sgpr=None):
    if off_sgpr is not None:
        A(f"s_add_u32 s{d}, s{ptr}, s{off_sgpr}")
        A(f"s_addc_u32 s{d+1}, s{ptr+1}, 0")
        if off_imm:
            A(f"s_add_u32 s{d}, s{d}, {off_imm}")
            A(f"s_addc_u32 s{d+1}, s{d+1}, 0")
    elif off_imm:
        A(f"s_add_u32 s{d}, s{ptr}, {off_imm}")
        A(f"s_addc_u32 s{d+1}, s{ptr+1}, 0")
    else:
        A(f"s_mov_b32 s{d}, s{ptr}")
        A(f"s_mov_b32 s{d+1}, s{ptr+1}")
    if size_sgpr is not None:
        A(f"s_mov_b32 s{d+2}, s{size_sgpr}")
    else:
        A(f"s_mov_b32 s{d+2}, {size}")
    A(f"s_mov_b32 s{d+3}, 0x00020000")


STAMP_OFF = 0x8000000


class Stamps:
    def __init__(self, A, on):
        self.A, self.on, self.n = A, on, 0

    def __call__(self, lvl=1):
        if not self.on or (lvl != self.on and self.n > 0 and lvl != 9):
            return
        A = self.A
        A("s_memtime s[66:67]")
        A("s_memrealtime s[68:69]")
        A("s_waitcnt lgkmcnt(0)")
        A(f"s_mov_b32 s{70+2*self.n}, s66")
        A(f"s_mov_b32 s{71+2*self.n}, s68")
        self.n += 1
        assert self.n <= 16

    def dump(self, wave_sgpr):
        if not self.on:
            return
        A = self.A
        A("s_waitcnt vmcnt(0)")
        self(9)
        A("s_lshl_b32 s33, s2, 2")
        A(f"s_add_u32 s33, s33, s{wave_sgpr}")
        A("s_lshl_b32 s33, s33, 7")
        A(f"s_add_u32 s33, s33, {STAMP_OFF}")
        A("s_add_u32 s34, s52, s33")
        A("s_addc_u32 s35, s53, 0")
        A("v_mov_b32 v1, 0")
        for i in range(self.n):
            A(f"v_mov_b32 v2, s{70+2*i}")
            A(f"v_mov_b32 v3, s{71+2*i}")
            A(f"global_store_dwordx2 v1, v[2:3], s[34:35] offset:{8*i}")
        A("s_waitcnt vmcnt(0)")


def mfma(d, a, b, c):
    return f"v_mfma_f32_16x16x32_bf16 {d}, {a}, {b}, {c}"


XCH_OFF = 0x4000000
K2_LDS = 4 * 36864


QF = 160
SB = 96
NM = 80
VF = 48
LS = 40
VK, VV, DK, DV = 2, 4, 8, 11
KF = 192
KREG, VREG = 36864, 86016


def qf(qt, u):
    return vr(QF + (u*4+qt)*4, 4)


def sreg(t, qt, kt):
    return (96 + 16*(t & 3) if kt == 0 else 48 + 16*(t & 1)) + 4*qt


def oacc(dt, qt):
    return (dt*4 + qt) * 4


def kfr(t, kt, u):
    return ar(KF + ((t + kt) & 1)*24 + u*4, 4)


def k_read(t, kt, u):
    return f"ds_read_b128 {kfr(t, kt, u)}, v{VK+(u&1)} offset:{(t & 3)*12288+kt*6144+128*(u>>1)}"


def v_read(reg, t, dt, rd):
    return f"ds_read_b64_tr_b16 {ar(reg+2*rd, 2)}, v{VV+(dt&3)} offset:{(t & 3)*12288+rd*6144+128*(dt>>2)}"


def qk_mfmas(t, zero=False):
    M = []
    for kt in range(2):
        for qt in range(4):
            d = vr(sreg(t, qt, kt), 4)
            for k in range(6):
                u = k if qt % 2 == 0 else 5 - k
                M.append(mfma(d, kfr(t, kt, u), qf(qt, u), ("0" if zero else vr(NM+qt*4, 4)) if k == 0 else d))
    return M


def softmax_ops(t, qts):
    E, S = [], []
    for qt in qts:
        for p in range(4):
            b = sreg(t, qt, p >> 1) + 2*(p & 1)
            e0 = len(E)
            E.append(f"v_exp_f32 v{b}, v{b}")
            E.append(f"v_exp_f32 v{b+1}, v{b+1}")
            S.append((e0, f"v_add_f32 v{LS+2*qt}, v{LS+2*qt}, v{b}"))
            S.append((e0+1, f"v_add_f32 v{LS+2*qt+1}, v{LS+2*qt+1}, v{b+1}"))
            S.append((e0+1, f"v_cvt_pk_bf16_f32 v{sreg(t, qt, 0)+p}, v{b}, v{b+1}"))
    return E, S


def fill_valu(gaps, lo, hi, E, S):
    ei, si = 0, 0
    epos = {}
    n_empty = sum(1 for g in range(lo, hi) if not gaps[g][0] and not gaps[g][2])
    assert n_empty >= len(E), (n_empty, len(E))
    for g in range(lo, hi):
        used = len(gaps[g][0]) + len(gaps[g][2])
        avail = [k for k in range(si, len(S)) if S[k][0] in epos and epos[S[k][0]] < g]
        navail = 0
        for k in range(si, len(S)):
            if S[k][0] in epos and epos[S[k][0]] < g:
                navail += 1
            else:
                break
        if used == 0:
            empty_left = sum(1 for q in range(g, hi) if not gaps[q][0] and not gaps[q][2])
            must_exp = empty_left <= len(E) - ei
            if ei < len(E) and (must_exp or navail < 4):
                gaps[g][1].append(E[ei])
                epos[ei] = g
                ei += 1
                continue
        free = 2 - used
        while free > 0 and navail > 0:
            gaps[g][1].append(S[si][1])
            si += 1
            navail -= 1
            free -= 1
    assert ei == len(E) and si == len(S), (ei, len(E), si, len(S))


def early_fill(sg):
    reg, srd_, base, t0 = (DK, "s[16:19]", KREG, sg) if sg & 1 else (DV, "s[20:23]", VREG, sg + 2)
    return ([f"s_add_u32 m0, s29, {base + (t0 & 3)*12288}"] +
            [f"buffer_load_dwordx4 v{reg+n}, {srd_}, s30 offen offset:{1024*n}{' nt' if CFG.get('ntl') else ''} lds" for n in range(3)] +
            ["s_add_u32 s30, s30, 12288"])


def gen_stage(A, sg, extra=None, first=False):
    M = qk_mfmas(sg + 2)
    ta = sg & 2
    ring = [KF + 48 + 4*k for k in range(4)] + [KF + (sg & 1)*24 + 4*k for k in range(6)]
    vreg = lambda j: ring[j % 10]
    for d in range(6):
        dt = 6*(sg & 1) + d
        for qi in range(4):
            qt = qi if d % 2 == 0 else 3 - qi
            o = ar(oacc(dt, qt), 4)
            for ki in range(2):
                k = ki if qi % 2 == 0 else 1 - ki
                M.append(mfma(o, vr(sreg(ta + k, qt, 0), 4), ar(vreg(2*d + k), 4), "0" if first and ki == 0 else o))
    gaps = [[[], [], []] for _ in range(96)]
    for u in range(6):
        gaps[1+3*u][0].append(k_read(sg + 2, 1, u))
    gaps[23][2].append("s_waitcnt lgkmcnt(0)")
    for r in range(24):
        j = r >> 1
        gaps[26+2*r][0].append(v_read(vreg(j), ta + (j & 1), 6*(sg & 1) + (j >> 1), r & 1))
    for g in (47, 63):
        gaps[g][2].append("s_waitcnt lgkmcnt(3)")
    sit = CFG.get('sit', 0)
    ex = [0, 1, 0 if sit else 1, 0]
    b2 = CFG.get("b2", 0)
    if not b2:
        if first and CFG.get("pkl", 1):
            gaps[79][2].append("s_waitcnt vmcnt(16) lgkmcnt(0)" if sg else "s_waitcnt lgkmcnt(0)")
            for n, g in enumerate((21, 33, 45, 57, 69)):
                gaps[g-1][2].append(f"s_add_u32 m0, s58, {1024*(5*sg+n)}")
                gaps[g][0].append(f"buffer_load_dwordx4 v{30+n}, s[40:43], {'s39' if sg else '0'} offen nt lds")
        else:
            gaps[79][2].append(f"s_waitcnt vmcnt({(6 if sg & 1 else 9) + ex[sg] + ex[sg-1]}) lgkmcnt(0)")
        gaps[79][2].append("s_barrier")
    elif sg & 1:
        gaps[79][2].append(f"s_waitcnt vmcnt({1 if sg == 1 else 1}) lgkmcnt(0)")
        gaps[79][2].append("s_barrier")
    else:
        gaps[79][2].append("s_waitcnt vmcnt(21) lgkmcnt(0)" if first else "s_waitcnt lgkmcnt(0)")
    if sg == 1 and first and CFG.get("pkl", 1):
        pass
    elif sg == 1:
        gaps[18][0].append("ds_read_b64_tr_b16 v[14:15], v35")
        gaps[19][0].append(f"ds_read_b64_tr_b16 v[16:17], v35 offset:{16*320}")
        gaps[39][0].append("buffer_store_dwordx4 v[14:17], v39, s[48:51], s56 offen sc1")
        gaps[75][2].append("v_add_u32 v35, 32, v35")
        gaps[75][2].append("s_add_u32 s56, s56, 1024")
    elif sg == (3 if b2 else 2) and not sit:
        gaps[39][0].append("buffer_store_dwordx4 v[18:21], v39, s[44:47], s57 offen sc1")
        gaps[75][2].append("s_add_u32 s57, s57, 1024")
    for u in range(6):
        gaps[81+u][0].append(k_read(sg + 3, 0, u))
    gaps[95][2].append("s_waitcnt lgkmcnt(0)")
    de = CFG.get("de", 2)
    if not b2 and de == 2:
        reg, srd_, base, t0 = (DK, "s[16:19]", KREG, sg) if sg & 1 else (DV, "s[20:23]", VREG, sg + 2)
        gaps[1][2].append(f"s_add_u32 m0, s29, {base + ((t0+1) & 3)*12288}")
        for n, g in enumerate((3, 8, 12)):
            gaps[g][0].append(f"buffer_load_dwordx4 v{reg+n}, {srd_}, s30 offen offset:{1024*n}{' nt' if CFG.get('ntl') else ''} lds")
        gaps[13][2].append("s_sub_u32 s30, s30, 12288" if sg & 1 else "s_add_u32 s30, s30, 12288")
        for g, s_ in zip((78, 80, 88, 93, 93), early_fill(sg + 1)):
            gaps[g][0 if s_.startswith("buffer") else 2].append(s_)
    elif not b2:
        P = [3, 9, 15, 21, 27, 33] if de == 0 else [2, 6, 11, 15, 20, 24]
        reg, srd_, base, t0 = (DK, "s[16:19]", KREG, sg) if sg & 1 else (DV, "s[20:23]", VREG, sg + 2)
        gaps[1][2].append(f"s_add_u32 m0, s29, {base + (t0 & 3)*12288}")
        for n in range(6):
            gaps[P[n]][0].append(f"buffer_load_dwordx4 v{reg+n%3}, {srd_}, s30 offen offset:{1024*(n%3)} lds")
        gaps[P[2]][2].append("s_add_u32 s30, s30, 12288")
        gaps[16 if de == 0 else 13][2].append(f"s_add_u32 m0, s29, {base + ((t0+1) & 3)*12288}")
        gaps[36][2].append("s_sub_u32 s30, s30, 12288" if sg & 1 else "s_add_u32 s30, s30, 12288")
    elif not sg & 1:
        P = [2, 6, 11, 15, 20, 24, 29, 35, 41, 49, 55, 61]
        lst = [(DV, "s[20:23]", VREG, sg + 2), (DV, "s[20:23]", VREG, sg + 3), (DK, "s[16:19]", KREG, sg), (DK, "s[16:19]", KREG, sg + 1)]
        for k, (reg, srd_, base, t0) in enumerate(lst):
            gaps[1 if k == 0 else P[3*k-1]][2].append(f"s_add_u32 m0, s29, {base + (t0 & 3)*12288}")
            for n in range(3):
                gaps[P[3*k+n]][0].append(f"buffer_load_dwordx4 v{reg+n}, {srd_}, s30 offen offset:{1024*n}{' nt' if CFG.get('ntl') else ''} lds")
        gaps[13][2].append("s_add_u32 s30, s30, 12288")
        gaps[42][2].append("s_add_u32 s30, s30, 12288")
    if extra:
        for g, s in extra:
            gaps[g][2].append(s)
    E, S = softmax_ops(sg + 1, (2, 3))
    fill_valu(gaps, 0, 47, E, S)
    E, S = softmax_ops(sg + 2, (0, 1))
    fill_valu(gaps, 48, 96, E, S)
    abl = CFG.get("abl", 0) if not first else 0
    for g in range(96):
        A(M[g])
        for s in gaps[g][0] + gaps[g][1] + gaps[g][2]:
            if (abl & 1 and s.startswith("buffer_load")) or (abl & 2 and s.startswith("s_barrier")) or (abl & 4 and s.startswith("buffer_store")):
                continue
            if abl & 16 and "s30, s30" in s:
                s = "s_nop 0"
            if abl & 32 and s.startswith("ds_read_b128"):
                continue
            if abl & 64 and s.startswith("ds_read_b64_tr_b16 a"):
                continue
            if abl & 128 and s.startswith("v_add_f32"):
                continue
            if abl & 256 and s.startswith("v_exp"):
                s = s.replace("v_exp_f32", "v_mov_b32")
            if abl & 8 and "vmcnt" in s:
                s = "s_waitcnt lgkmcnt(0)"
            A(s)


def gen_tail(A):
    LG = Track("lg")
    rd = [(j, r) for j in range(24) for r in range(2)]

    def next_read():
        j, r = rd.pop(0)
        A(v_read(KF + 4*(j % 16), 2 + (j & 1), j >> 1, r))
        LG.issue(f"v{j}")
    for _ in range(12):
        next_read()
    A("s_waitcnt vmcnt(0)")
    A("s_barrier")
    A("s_bfe_u32 s33, s2, 0x20001")
    A("s_mul_i32 s40, s33, 12")
    A("s_add_u32 s40, s40, 192")
    A("s_mul_i32 s43, s33, 48")
    A("s_lshl_b32 s41, s28, 12")
    A("s_mul_i32 s42, s28, 5120")
    A("s_add_u32 s42, s42, 16384")
    A(f"s_mov_b32 s33, {SPIN_MAX}")
    A.label("K2_PP")
    A("v_cmp_le_u32 vcc, 0x20000000, v23")
    A("s_cmp_eq_u64 vcc, exec")
    A("s_cbranch_scc1 K2_PP_OK")
    A("s_sleep 1")
    A("global_load_dwordx2 v[22:23], v25, s[64:65] sc1")
    A("s_waitcnt vmcnt(0)")
    A("s_sub_u32 s33, s33, 1")
    A("s_cmp_lg_u32 s33, 0")
    A("s_cbranch_scc1 K2_PP")
    A.label("K2_PP_OK")
    W = sum((p_at(m) + p_fill_b() + p_fill_a() for m in range(NTAILF)), [])

    def next_fill():
        while W:
            e = W.pop(0)
            if e[0] == "d":
                A(e[1])
                while W and W[0][0] != "d":
                    A(W.pop(0)[1])
                return
            A(e[1])
            if W[0][0] == "d":
                A("s_nop 0")
    E, S = softmax_ops(3, (2, 3))
    for k, e in enumerate(E):
        if k % 6 == 0:
            next_fill()
        A(e)
    B = Asm()
    for qt in range(4):
        B(f"v_add_f32 v{30+qt}, v{LS+2*qt}, v{LS+2*qt+1}")
    B("v_mov_b32 v14, 1.0")
    B("v_bfe_u32 v16, v0, 2, 2")
    B("v_lshrrev_b32 v15, 4, v0")
    for qt in range(4):
        B(f"v_mfma_f32_16x16x4_f32 {vr(NM+4*qt, 4)}, v{30+qt}, v14, 0")
    B("v_cmp_eq_u32 vcc, v16, v15")
    B("v_and_b32 v16, 1, v0")
    B("v_lshlrev_b32 v16, 4, v16")
    B("v_mov_b32 v15, 0x3f80")
    B("v_lshlrev_b32 v15, v16, v15")
    B("v_cndmask_b32 v15, 0, v15, vcc")
    B("v_and_b32 v16, 2, v0")
    B("v_cmp_eq_u32 vcc, 0, v16")
    for i in (0, 1, 4, 5):
        B(f"v_mov_b32 v{SEL+i}, 0")
    B(f"v_cndmask_b32 v{SEL+2}, 0, v15, vcc")
    B(f"v_cndmask_b32 v{SEL+3}, v15, v{SEL}, vcc")
    B(f"v_add_f32 v14, v{NM}, v{NM+1}")
    B(f"v_add_f32 v15, v{NM+2}, v{NM+3}")
    for i in range(4, 16):
        B(f"v_add_f32 v{14+(i&1)}, v{14+(i&1)}, v{NM+i}")
    B("v_add_f32 v14, v14, v15")
    B("s_lshl_b32 s35, s28, 2|"f"s_add_u32 s35, s35, {FREG}")
    B(f"v_cmp_ngt_f32 vcc, {hex(f2u(2.0**60))}, v14")
    B("v_mov_b32 v15, s35")
    B("s_cmp_lg_u64 vcc, 0|s_cselect_b32 s34, 1, 0")
    B("v_mov_b32 v14, s34")
    B("ds_write_b32 v15, v14|"f"v_mov_b32 v16, {FREG}")
    f0 = [l.strip() for l in B.L]
    B = Asm()
    B("ds_read_b128 v[40:43], v16")
    for i in range(10):
        B(f"v_rcp_f32 v{NM+i}, v{NM+i}")
    B("s_waitcnt lgkmcnt(0)|v_or_b32 v40, v40, v41")
    B("v_or3_b32 v40, v40, v42, v43|v_lshlrev_b32 v16, 4, v0")
    B("v_readfirstlane_b32 s34, v40|v_lshlrev_b32 v17, 3, v0")
    for i in range(10, 16):
        B(f"v_rcp_f32 v{NM+i}, v{NM+i}")
    f1 = [l.strip() for l in B.L]
    seq = []
    for qs in ((0, 1), (2, 3)):
        for dt in range(6):
            seq += [(dt, q) for q in (qs if dt % 2 == 0 else qs[::-1])]
    for dt in range(6, 12):
        seq += [(dt, q if dt % 2 == 0 else 3 - q) for q in range(4)]
    sm = [x[1] for x in S]
    g = 0
    for n_, (dt, qt) in enumerate(seq):
        o = ar(oacc(dt, qt), 4)
        for ki in range(2):
            k = ki if n_ % 2 == 0 else 1 - ki
            w_ = LG.need([f"v{2*dt}", f"v{2*dt+1}"])
            if w_ is not None:
                A(f"s_waitcnt lgkmcnt({min(w_, 15)})")
            if g == 24:
                assert not sm
                A("s_nop 1")
            if g == 76:
                assert not f0 and not rd, (f0, rd)
                A("s_waitcnt lgkmcnt(0)")
                LG.drain()
                A("s_barrier")
            A(mfma(o, vr(sreg(2 + k, qt, 0), 4), ar(KF + 4*((2*dt + k) % 16), 4), o))
            n = 2
            if g % 4 == 3:
                next_fill()
                n = 1
            elif rd and (rd[0][0] < 16 or g >= 24 + 4*((rd[0][0] - 16) >> 1) + 3):
                next_read()
                n = 1
            src = sm if g < 24 else f0 if g < 76 else f1
            if g >= 76:
                n = 1
            for _ in range(n):
                if src:
                    for l in src.pop(0).split("|"):
                        A(l)
                        if l.startswith("ds_write"):
                            LG.issue("fl")
            g += 1
    assert not W and not f1, (W, f1)


def xlane_reduce(A, op, regs, tmp):
    for swap in ("v_permlane32_swap_b32", "v_permlane16_swap_b32"):
        for i, r in enumerate(regs):
            A(f"v_mov_b32 v{tmp+i}, v{r}")
        A("s_nop 1")
        for i, r in enumerate(regs):
            A(f"{swap} v{tmp+i}, v{r}")
        A("s_nop 1")
        for i, r in enumerate(regs):
            A(f"{op} v{r}, v{r}, v{tmp+i}")


class Track:
    def __init__(self, name, init=()):
        self.name, self.q, self.done = name, list(init), 0

    def issue(self, tag):
        self.q.append(tag)

    def need(self, tags):
        idx = max((len(self.q) - 1 - self.q[::-1].index(t)) for t in tags)
        if idx < self.done:
            return None
        self.done = idx + 1
        return len(self.q) - 1 - idx

    def drain(self):
        self.done = len(self.q)


XREG = 110592
CREG = 147456
FREG = 148608
K1_LDS = 148672 + 1088
FLG_OFF = 0x7000000
SPIN_MAX = 1 << 22


def emit_plain(A, L):
    prev = None
    for e in L:
        if e[0] == "d" and prev is not None and "m0" in prev:
            A("s_nop 0")
        for s_ in e[1:]:
            A(s_)
        prev = e[-1]


def poll(A, label, vaddr, vtmp, sbase, mask_sgpr_pair, want, cmp="v_cmp_ne_u32"):
    A(f"s_mov_b32 s33, {SPIN_MAX}")
    A(f"s_mov_b64 exec, {mask_sgpr_pair}")
    A.label(label)
    A(f"global_load_dword v{vtmp}, v{vaddr}, {sbase} sc1")
    A("s_waitcnt vmcnt(0)")
    A(f"{cmp} vcc, {want}, v{vtmp}")
    A("s_cmp_eq_u64 vcc, exec")
    A(f"s_cbranch_scc1 {label}_OK")
    A("s_sleep 1")
    A("s_sub_u32 s33, s33, 1")
    A("s_cmp_lg_u32 s33, 0")
    A(f"s_cbranch_scc1 {label}")
    A.label(label + "_OK")
    A("s_mov_b64 exec, -1")


def gen_main(A, cfg):
    name = NAME + "_kernel"
    NT = " nt" if cfg.get("nt", 0) else ""
    NTW = " nt" if cfg.get("ntw", 1) else ""
    NTG = " nt" if cfg.get("ntg", 0) else ""
    NTX = " nt" if cfg.get("ntx", 0) else ""
    kernel_begin(A, name)
    A("s_cmp_ge_u32 s2, 256")
    A("s_cbranch_scc1 K1_END")
    if cfg.get("cpf", 1):
        A("s_getpc_b64 s[34:35]")
        A("s_and_b32 s34, s34, 0xffffff00")
        A("s_lshr_b32 s33, s2, 3")
        A("s_lshl_b32 s33, s33, 12")
        A("v_lshl_add_u32 v2, v0, 4, s33")
        A(f"v_min_u32 v2, (K1_END-{name}-16)&0xfffffff0, v2")
        A("global_load_dwordx4 v[60:63], v2, s[34:35]")
    if cfg.get("mix", 1):
        A("s_bfe_u32 s33, s2, 0x10001")
        A("s_xor_b32 s2, s2, s33")
    ST = Stamps(A, cfg.get("stamp", 0))
    ST()
    A("s_load_dwordx2 s[60:61], s[0:1], 0")
    A("s_load_dwordx4 s[44:47], s[0:1], 24")
    A("s_load_dwordx4 s[48:51], s[0:1], 48")
    A("s_load_dwordx4 s[40:43], s[0:1], 8")
    A("s_load_dwordx2 s[58:59], s[0:1], 64")
    A("s_load_dwordx2 s[62:63], s[0:1], 72")
    A("s_load_dwordx2 s[64:65], s[0:1], 80")
    A("s_load_dwordx2 s[52:53], s[0:1], 88")
    A("v_lshrrev_b32 v1, 6, v0")
    A("v_and_b32 v0, 63, v0")
    A("v_readfirstlane_b32 s28, v1")
    if cfg.get("map", 1):
        A("s_and_b32 s31, s2, 6")
        A("s_lshl_b32 s31, s31, 2")
        A("s_bfe_u32 s33, s2, 0x30003")
        A("s_add_u32 s31, s31, s33")
        A("s_and_b32 s32, s2, 1")
        A("s_lshl_b32 s32, s32, 2")
        A("s_lshr_b32 s33, s2, 6")
        A("s_add_u32 s32, s32, s33")
    else:
        A("s_and_b32 s31, s2, 7")
        A("s_lshl_b32 s31, s31, 2")
        A("s_bfe_u32 s33, s2, 0x20003")
        A("s_add_u32 s31, s31, s33")
        A("s_lshr_b32 s32, s2, 5")
    A("s_mul_i32 s29, s28, 3072")
    XD, XR, WD, GD, CQ, CG, CC = 14, 16, 18, 21, 24, 26, 27
    XT = 24
    A("v_lshrrev_b32 v36, 3, v0")
    A("v_mul_u32_u24 v37, 1280, v36")
    A("v_lshrrev_b32 v38, 4, v0")
    A("v_and_b32 v39, 7, v0")
    A("v_xor_b32 v39, v39, v38")
    A(f"v_lshl_add_u32 v{XD}, v39, 4, v37")
    A("v_xor_b32 v39, 4, v39")
    A(f"v_lshl_add_u32 v{XD+1}, v39, 4, v37")
    A(f"v_add_u32 v{XD+1}, 10240, v{XD+1}")
    for n in range(3):
        A(f"v_add_u32 v40, {64*n}, v0")
        A(f"v_mul_u32_u24 v{44+n}, 2731, v40")
        A(f"v_lshrrev_b32 v{44+n}, 16, v{44+n}")
        A(f"v_mul_u32_u24 v41, 24, v{44+n}")
        A("v_sub_u32 v41, v40, v41")
        A(f"v_and_b32 v42, 2, v{44+n}")
        A("v_lshlrev_b32 v42, 1, v42")
        A("v_xor_b32 v41, v41, v42")
        A("s_lshl_b32 s33, s28, 4")
        A(f"v_add_u32 v42, s33, v{44+n}")
        A("v_mul_u32_u24 v42, 12288, v42")
        A("v_lshl_add_u32 v42, v41, 4, v42")
        A(f"v_subrev_u32 v{WD+n}, {1024*n}, v42")
        A("v_mul_u32_u24 v41, 10923, v40")
        A("v_lshrrev_b32 v41, 16, v41")
        A("v_mul_u32_u24 v42, 6, v41")
        A("v_sub_u32 v42, v40, v42")
        A("s_and_b32 s33, s31, 1")
        A("s_lshl_b32 s33, s33, 1")
        A("v_add_u32 v42, s33, v42")
        A("v_subrev_u32 v43, 6, v42")
        A("v_min_u32 v42, v42, v43")
        A("s_and_b32 s33, s28, 1")
        A("s_lshl_b32 s33, s33, 5")
        A("v_add_u32 v41, s33, v41")
        A("v_mul_u32_u24 v41, 3072, v41")
        A("v_lshl_add_u32 v41, v42, 4, v41")
        A(f"v_subrev_u32 v{GD+n}, {1024*n}, v41")
    rot = cfg.get("rot", 4)
    if rot == 0:
        A("s_mov_b32 s39, 0")
    elif rot == 1:
        A("s_add_u32 s39, s31, s32")
        A("s_and_b32 s39, s39, 1")
        A("s_mul_i32 s39, s39, 5")
    elif rot == 4:
        A("s_add_u32 s39, s31, s32")
        A("s_and_b32 s39, s39, 1")
        A("s_mov_b32 s24, s39")
        A("s_mov_b32 s25, 0")
        A("s_mov_b32 s26, 0")
    elif rot == 2:
        A("s_and_b32 s39, s2, 1")
        A("s_mul_i32 s39, s39, 5")
    else:
        A("s_add_u32 s39, s31, s32")
        A("s_and_b32 s39, s39, 3")
        A("s_mul_i32 s39, s39, 5")
        A("s_lshr_b32 s39, s39, 1")
    A("s_lshl_b32 s36, s39, 7")
    A(f"s_mul_i32 s38, s39, {64*3072}")
    A("s_lshl_b32 s37, s38, 2")
    A("s_mov_b32 s39, 0")
    A("s_lshl_b32 s57, s28, 13")
    A(f"s_add_u32 s57, s57, {XREG}")
    A("s_lshl_b32 s33, s32, 2")
    A("s_add_u32 s33, s33, s28")
    A(f"s_mul_i32 s56, s33, {64*1280}")
    A("s_waitcnt lgkmcnt(0)")
    ST(3)
    srd(A, 4, 60, off_sgpr=56, size=64*1280)
    A("s_mul_i32 s34, s31, 384")
    A(f"s_sub_u32 s35, {640*12288}, s34")
    srd(A, 8, 44, off_sgpr=34, size_sgpr=35)
    A("s_cmp_lt_u32 s28, 2")
    A("s_cselect_b32 s44, s48, s50")
    A("s_cselect_b32 s45, s49, s51")
    A("s_mul_i32 s34, s31, 96")
    if cfg.get("gual"):
        A("s_and_b32 s34, s34, 0xffffff80")
    A(f"s_sub_u32 s35, {640*3072}, s34")
    srd(A, 12, 44, off_sgpr=34, size_sgpr=35)

    GA, SUM, GRM, CAC, ONE, WF, CF, XF = 0, 96, 112, 128, 148, 152, 176, 192
    ONC = 184
    QA = 64
    SLOT = 36864

    def qacc(t, qt):
        return QA + ((t >> 1)*4 + qt)*8 + (t & 1)*4

    def x_dma(n):
        return [("s", f"s_add_u32 m0, s57, {1024*n}"), ("s", f"s_add_u32 s35, s36, {20480*(n>>1)}"),
                ("d", f"buffer_load_dwordx4 v{XD+(n&1)}, s[4:7], s35 offen{NTX} lds")]
    xadv = [("s", "s_add_u32 s36, s36, 128")]
    if rot == 4:
        xadv = [("s", "s_add_u32 s25, s25, 1"), ("s", "s_xor_b32 s36, s25, s24"), ("s", "s_lshl_b32 s36, s36, 7")]
    elif rot:
        xadv.append(("s2", "s_cmp_eq_u32 s36, 1280", "s_cselect_b32 s36, 0, s36"))

    def x_read(st, k2, qt):
        return f"ds_read_b128 {ar(XF+st*32+(k2*4+qt)*4, 4)}, v{XR+k2} offset:{qt*2048}"

    def w_dma():
        L = []
        L.append(("s", "s_lshl_b32 s34, s29, 1"))
        L.append(("s", "s_add_u32 m0, s39, s34"))
        for n in range(3):
            L.append(("d", f"buffer_load_dwordx4 v{WD+n}, s[8:11], s37 offen offset:{1024*n}{NTW} lds"))
        L.append(("s", "s_add_u32 m0, m0, 3072"))
        L.append(("s", f"s_add_u32 s35, s37, {8*12288}"))
        for n in range(3):
            L.append(("d", f"buffer_load_dwordx4 v{WD+n}, s[8:11], s35 offen offset:{1024*n}{NTW} lds"))
        L.append(("s", "s_add_u32 s34, s29, 24576"))
        L.append(("s", "s_add_u32 m0, s39, s34"))
        for n in range(3):
            L.append(("d", f"buffer_load_dwordx4 v{GD+n}, s[12:15], s38 offen offset:{1024*n}{NTG} lds"))
        if rot == 4:
            L += [("s", "s_add_u32 s26, s26, 1"), ("s", "s_xor_b32 s38, s26, s24"), ("s", f"s_mul_i32 s38, s38, {64*3072}")]
        else:
            L.append(("s", f"s_add_u32 s38, s38, {64*3072}"))
        if rot and rot != 4:
            L.append(("s2", f"s_cmp_eq_u32 s38, {640*3072}", "s_cselect_b32 s38, 0, s38"))
        L.append(("s", "s_lshl_b32 s37, s38, 2"))
        L.append(("s", f"s_add_u32 s39, s39, {SLOT}"))
        L.append(("s2", f"s_cmp_eq_u32 s39, {3*SLOT}", "s_cselect_b32 s39, 0, s39"))
        return L

    def kv_dma(kind, i):
        L = [("s", f"s_add_u32 m0, s29, {(KREG if kind == 'K' else VREG) + i*12288}")]
        if kind == "K" and i == 0:
            for n in range(3):
                L.append(("s", f"v_subrev_u32 v{60+n}, 12288, v{DK+n}"))
            for n in range(3):
                L.append(("d", f"buffer_load_dwordx4 v{60+n}, s[16:19], 0 offen offset:{1024*n}{NT} lds"))
        elif kind == "K":
            L.append(("s", f"s_mov_b32 s30, {(i-1)*12288}"))
            for n in range(3):
                L.append(("d", f"buffer_load_dwordx4 v{DK+n}, s[16:19], s30 offen offset:{1024*n}{NT} lds"))
        else:
            L.append(("s", f"s_mov_b32 s30, {i*12288}"))
            for n in range(3):
                L.append(("d", f"buffer_load_dwordx4 v{DV+n}, s[20:23], s30 offen offset:{1024*n}{NT} lds"))
        return L

    def w_reads(t):
        L = []
        for k2 in range(2):
            for rd in range(2):
                d = ar(WF + (t % 3)*8 + k2*4 + 2*rd, 2)
                if t < 12:
                    u, par = t >> 1, t & 1
                    L.append(f"ds_read_b64_tr_b16 {d}, v{CQ+(u&1)} offset:{k2*32*384+rd*4*384+128*(u>>1)+8*par}")
                else:
                    tt = t - 12
                    L.append(f"ds_read_b64_tr_b16 {d}, v{CG} offset:{24576+(tt//3)*6144+k2*32*96+rd*4*96+32*(tt%3)}")
        return L

    def c_reads(p):
        L = []
        for k2 in range(2):
            for rd in range(2):
                d = ar(CF + k2*4 + 2*rd, 2)
                if p < 3:
                    L.append(f"ds_read_b64_tr_b16 {d}, v{CC} offset:{k2*32*384+rd*4*384+128*p}")
                else:
                    L.append(f"ds_read_b64_tr_b16 {d}, v{CC+p-2} offset:{24576+k2*32*96+rd*4*96}")
        return L

    A0 = A
    A = Asm()
    A("s_lshl_b32 s34, s33, 7")
    A("s_lshl_b32 s35, s31, 2")
    A("s_add_u32 s34, s34, s35")
    A("s_and_b32 s35, s2, 1")
    A("s_lshl_b32 s35, s35, 5")
    A("s_lshr_b32 s56, s2, 3")
    A("s_add_u32 s35, s35, s56")
    A("s_lshl_b32 s35, s35, 2")
    A("s_add_u32 s35, s35, s28")
    A("s_lshl_b32 s35, s35, 2")
    A("s_bfe_u32 s56, s2, 0x20001")
    A("s_add_u32 s35, s35, s56")
    A("s_lshl_b32 s35, s35, 2")
    A("s_add_u32 s35, s35, 0x1000")
    A(f"s_add_u32 s34, s34, {FLG_OFF}")
    A(f"s_add_u32 s35, s35, {FLG_OFF}")
    A("v_mov_b32 v1, s34")
    A("v_mov_b32 v40, s35")
    A("v_cmp_eq_u32 vcc, 1, v0")
    A("v_mov_b32 v41, 0")
    A("s_nop 0")
    A("v_cndmask_b32 v1, v1, v40, vcc")
    A("s_mul_i32 s34, s31, 786432")
    srd(A, 16, 40, off_sgpr=34, size=786432)
    srd(A, 20, 42, off_sgpr=34, size=786432)
    A("s_cmp_ge_u32 s2, 192")
    A("s_cselect_b32 s44, s58, s46")
    A("s_cselect_b32 s45, s59, s47")
    A("s_cselect_b32 s34, 192, 0")
    A("s_sub_u32 s34, s2, s34")
    A("s_mul_i32 s34, s34, 40960")
    A("s_cmp_lt_u32 s2, 240")
    A("s_cselect_b32 s35, 40960, 0")
    A("s_cselect_b32 s34, s34, 0")
    srd(A, 40, 44, off_sgpr=34, size_sgpr=35)
    A("s_lshl_b32 s34, s2, 2")
    A("s_add_u32 s34, s34, s28")
    A("s_mul_i32 s34, s34, 10240")
    A("s_lshr_b32 s35, s35, 2")
    srd(A, 48, 52, off_sgpr=34, off_imm=WP_OFF, size_sgpr=35)
    A("s_and_b32 s34, s2, 1")
    A("s_lshl_b32 s34, s34, 5")
    A("s_lshr_b32 s35, s2, 3")
    A("s_add_u32 s34, s34, s35")
    A("s_lshl_b32 s34, s34, 2")
    A("s_bfe_u32 s35, s2, 0x20001")
    A("s_add_u32 s34, s34, s35")
    A("s_lshl_b32 s34, s34, 2")
    A("s_add_u32 s34, s34, s28")
    A("s_mul_i32 s34, s34, 15360")
    srd(A, 44, 52, off_sgpr=34, off_imm=XCH_OFF, size=7680)
    A("v_bfe_u32 v39, v0, 2, 2")
    A("v_and_b32 v40, 3, v0")
    A("v_and_b32 v41, 15, v0")
    for n in range(3):
        A("s_lshl_b32 s34, s28, 3")
        A(f"v_add_u32 v42, s34, v{44+n}")
        A("v_bfe_u32 v43, v42, 1, 3")
        A("v_xor_b32 v43, v43, v0")
        A("v_lshlrev_b32 v43, 4, v43")
        A("v_add_u32 v43, s29, v43")
        A(f"v_add_u32 v{DK+n}, 12288, v43")
        A("v_and_b32 v43, 6, v42")
        A("v_xor_b32 v43, v43, v0")
        A("v_lshlrev_b32 v43, 4, v43")
        A(f"v_add_u32 v{DV+n}, s29, v43")
    A("v_lshl_add_u32 v42, v38, 3, v39")
    A("v_mul_u32_u24 v43, 384, v42")
    A("v_lshl_add_u32 v43, v40, 4, v43" if not cfg.get("nocf") else "v_lshl_add_u32 v43, v40, 3, v43")
    if cfg.get("nocf"):
        A("v_and_b32 v47, 1, v38")
        A("v_lshl_add_u32 v43, v47, 5, v43")
    A("v_lshrrev_b32 v44, 1, v39")
    A(f"v_lshl_add_u32 v{CQ}, v44, 6, v43")
    A("v_xor_b32 v45, 1, v44")
    A(f"v_lshl_add_u32 v{CQ+1}, v45, 6, v43")
    A("s_lshr_b32 s34, s28, 1")
    A("v_xor_b32 v45, s34, v44")
    A(f"v_lshl_add_u32 v{CC}, v45, 6, v43")
    A("s_and_b32 s35, s28, 1")
    A("s_lshl_b32 s34, s35, 3")
    A(f"v_add_u32 v{CC}, s34, v{CC}")
    A("v_mul_u32_u24 v43, 96, v42")
    A(f"v_lshl_add_u32 v{CG}, v40, 3, v43")
    A("s_lshl_b32 s34, s28, 5")
    A("s_cmp_eq_u32 s28, 3")
    A("s_cselect_b32 s34, 6144, s34")
    A(f"v_add_u32 v{CC+1}, s34, v{CG}")
    A("s_lshl_b32 s34, s35, 5")
    A(f"s_add_u32 s34, s34, {6144+32}")
    A(f"v_add_u32 v{CC+2}, s34, v{CG}")
    A("v_bfe_u32 v44, v41, 1, 3")
    A("v_xor_b32 v44, v44, v38")
    A("v_xor_b32 v45, 4, v44")
    A("v_lshlrev_b32 v43, 7, v41")
    A("v_add_u32 v43, s57, v43")
    A(f"v_lshl_add_u32 v{XR}, v44, 4, v43")
    A(f"v_lshl_add_u32 v{XR+1}, v45, 4, v43")
    A("v_mul_u32_u24 v43, 384, v41")
    A(f"v_add_u32 v43, {KREG}, v43")
    A(f"v_lshl_add_u32 v{VK}, v44, 4, v43")
    A(f"v_lshl_add_u32 v{VK+1}, v45, 4, v43")
    A("v_lshrrev_b32 v42, 2, v0")
    A("v_mul_u32_u24 v43, 384, v42")
    A(f"v_add_u32 v43, {VREG}, v43")
    A("v_and_b32 v44, 1, v40")
    A("v_lshl_add_u32 v43, v44, 3, v43")
    A("v_and_b32 v44, 6, v42")
    A("v_lshrrev_b32 v45, 1, v40")
    A("v_xor_b32 v44, v44, v45")
    for j in range(4):
        A(f"v_xor_b32 v45, {2*j}, v44")
        A(f"v_lshl_add_u32 v{VV+j}, v45, 4, v43")
    PD = 30
    A("s_mul_i32 s34, s28, 320")
    for n in range(5):
        A(f"v_add_u32 v43, {64*n}, v0")
        A("v_mul_u32_u24 v44, 3277, v43")
        A("v_lshrrev_b32 v44, 16, v44")
        A("v_mul_u32_u24 v45, 20, v44")
        A("v_sub_u32 v45, v43, v45")
        A("v_mul_u32_u24 v44, 1280, v44")
        A("v_lshl_add_u32 v44, v45, 4, v44")
        A(f"v_add_u32 v{PD+n}, s34, v44")
    PR, PS = 35, 39
    A("v_mul_u32_u24 v43, 320, v42")
    A("v_lshl_add_u32 v43, v40, 3, v43")
    A("s_mul_i32 s58, s28, 10240")
    A("s_cmp_eq_u32 s28, 3")
    A("s_cselect_b32 s58, 135168, s58")
    A(f"v_add_u32 v{PR}, s58, v43")
    A("v_lshlrev_b32 v36, 4, v38")
    A(f"v_add_u32 v36, {CREG}, v36")
    A("s_lshl_b32 s34, s28, 6")
    A("v_add_u32 v56, s34, v36")
    A("s_and_b32 s34, s34, 64")
    A("v_add_u32 v57, s34, v36")
    A("v_mov_b32 v43, 0x3f803f80")
    if cfg.get("spo", 1):
        A("v_cmp_eq_u32 vcc, 0, v40")
        A(f"v_mov_b32 v45, {FREG + 64}")
        A("s_nop 0")
        A("v_cndmask_b32 v44, 0, v43, vcc")
        A("v_cmp_eq_u32 vcc, 0, v41")
        for i in range(4):
            A(f"v_accvgpr_write_b32 a{ONE+i}, v44")
        A("v_cndmask_b32 v44, 0, v43, vcc")
        A("v_cndmask_b32 v56, v45, v56, vcc")
        A("v_cndmask_b32 v57, v45, v57, vcc")
        for i in range(4):
            A(f"v_accvgpr_write_b32 a{ONC+i}, v44")
    else:
        for i in range(4):
            A(f"v_accvgpr_write_b32 a{ONE+i}, v43")
            A(f"v_accvgpr_write_b32 a{ONC+i}, v43")
    su = [l.strip().replace("s34", "s66").replace("s35", "s67") for l in A.L]
    A = A0
    per = (len(su) + 16) // 17
    prev = None
    for e in sum((x_dma(n) for n in range(8)), []) + xadv + w_dma():
        if e[0] == "d" and "m0" in prev:
            A("s_nop 0")
        for s_ in e[1:]:
            A(s_)
        prev = e[-1]
        if e[0] == "d":
            k = 0
            while su and (k < per or su[0].startswith(("s_cselect", "s_addc", "global_store", "s_mov_b64 exec"))):
                A(su.pop(0))
                k += 1
    assert not su
    ST(3)
    w1in = cfg.get("w1in", 0)
    mpf = cfg.get("mpf", 0)

    def mall_pf():
        A("s_load_dwordx2 s[66:67], s[0:1], 24")
        A("s_load_dwordx4 s[24:27], s[0:1], 48")
        A("s_lshl_b32 s68, s2, 2")
        A("s_add_u32 s68, s68, s28")
        A("s_lshl_b32 s68, s68, 6")
        A("v_add_u32 v47, s68, v0")
        A("v_lshlrev_b32 v46, 7, v47")
        A(f"v_add_u32 v46, {mpf*64*12288}, v46")
        A(f"v_min_u32 v46, {640*12288-128}, v46")
        A("v_and_b32 v45, 0x3fff, v47")
        A("v_lshlrev_b32 v45, 7, v45")
        A(f"v_add_u32 v45, {mpf*64*3072}, v45")
        A(f"v_min_u32 v45, {640*3072-128}, v45")
        A("s_waitcnt lgkmcnt(0)")
        A("global_load_dword v60, v46, s[66:67]")
        A("s_cmp_lt_u32 s2, 64")
        A("s_cselect_b32 s24, s24, s26")
        A("s_cselect_b32 s25, s25, s27")
        A("s_cmp_lt_u32 s2, 128")
        A("s_cselect_b32 s24, s24, s60")
        A("s_cselect_b32 s25, s25, s61")
        A("v_subrev_u32 v46, 0x8000, v47")
        A("v_lshlrev_b32 v46, 7, v46")
        A(f"v_min_u32 v46, {2621440-128}, v46")
        A("s_cselect_b64 vcc, -1, 0")
        A("v_cndmask_b32 v45, v46, v45, vcc")
        A("global_load_dword v61, v45, s[24:25]")
    if mpf and cfg.get("mpfe", 0):
        mall_pf()
    if not w1in:
        emit_plain(A, w_dma())
    if mpf and not cfg.get("mpfe", 0):
        mall_pf()
    ST(3)
    A(f"s_waitcnt vmcnt({(9 if w1in else 18) + (2 if mpf else 0)})")
    ST(3)
    for k2 in range(2):
        for qt in range(4):
            A(x_read(0, k2, qt))
    A(f"s_waitcnt vmcnt({(0 if w1in else 9) + (2 if mpf else 0)}) lgkmcnt(0)")
    ST(3)
    A("s_barrier")
    ST()
    ST(3)
    ST(4)
    for s in w_reads(0) + w_reads(1):
        A(s)

    PA, PB = 14, 40
    G0, TT = 48, 52

    def stats_ops():
        B = Asm()
        for qt in range(4):
            B(f"v_accvgpr_read_b32 v{G0+qt}, a{GRM+4*qt}")
        B("v_and_b32 v58, 3, v0")
        for r in range(1, 4):
            B(f"v_cmp_eq_u32 vcc, {r}, v58")
            for qt in range(4):
                B(f"v_accvgpr_read_b32 v{TT+qt}, a{GRM+4*qt+r}")
            for qt in range(4):
                B(f"v_cndmask_b32 v{G0+qt}, v{G0+qt}, v{TT+qt}, vcc")
        B("v_bfe_u32 v58, v0, 2, 2")
        B("v_lshrrev_b32 v59, 4, v0")
        B("v_cmp_eq_u32 vcc, v58, v59")
        B(f"s_mov_b32 s34, {hex(f2u(1.0/640))}")
        B("s_nop 0")
        if not cfg.get("g44", 0):
            for qt in range(4):
                B(f"v_cndmask_b32 v{G0+qt}, 0, v{G0+qt}, vcc")
        xlane_reduce(B, "v_add_f32", [G0+q for q in range(4)], TT)
        for qt in range(4):
            B(f"v_accvgpr_read_b32 v{TT+qt}, a{SUM+4*qt}")
        for qt in range(4):
            B(f"v_mul_f32 v{TT+qt}, s34, v{TT+qt}")
            B(f"v_mul_f32 v{G0+qt}, s34, v{G0+qt}")
        for qt in range(4):
            B(f"v_fma_f32 v{G0+qt}, -v{TT+qt}, v{TT+qt}, v{G0+qt}")
        for qt in range(4):
            B(f"v_max_f32 v{G0+qt}, 0, v{G0+qt}")
        for qt in range(4):
            B(f"v_cvt_pk_bf16_f32 v{G0+qt}, v{TT+qt}, v{G0+qt}")
        for qt in range(4):
            B(f"v_lshlrev_b32 v{TT+qt}, 16, v{G0+qt}")
            B(f"v_and_b32 v{G0+qt}, 0xffff0000, v{G0+qt}")
        for qt in range(4):
            B(f"v_sub_f32 v{PA+2*qt}, 0, v{TT+qt}")
            B(f"v_add_f32 v{G0+qt}, {hex(f2u(1e-5))}, v{G0+qt}")
        for qt in range(4):
            B(f"v_cvt_pk_bf16_f32 v{G0+qt}, v{G0+qt}, v{G0+qt}")
        for qt in range(4):
            B(f"v_lshlrev_b32 v{G0+qt}, 16, v{G0+qt}")
        for qt in range(4):
            B(f"v_sqrt_f32 v{G0+qt}, v{G0+qt}")
        for qt in range(4):
            B(f"v_cvt_pk_bf16_f32 v{G0+qt}, v{G0+qt}, v{G0+qt}")
        for qt in range(4):
            B(f"v_lshlrev_b32 v{G0+qt}, 16, v{G0+qt}")
        for qt in range(4):
            B(f"v_rcp_f32 v{TT+qt}, v{G0+qt}")
        for qt in range(4):
            B(f"v_mul_f32 v{PB+2*qt+1}, v{G0+qt}, v{G0+qt}")
        for qt in range(4):
            B(f"v_mul_f32 v{PA+2*qt+1}, {hex(f2u(LOG2E * 192 ** -0.5))}, v{TT+qt}")
            B(f"v_mul_f32 v{PB+2*qt}, {hex(f2u(-LOG2E))}, v{TT+qt}")
        return [l.strip() for l in B.L]

    def superstep(st, mode, side=None):
        z0 = mode == "first"
        M = []
        blk = []
        xf = lambda k2, qt: ar(XF+st*32+(k2*4+qt)*4, 4)
        stat_blocks = [0, 1, 3, 4, 6, 7, 9, 10] if mode != "last" else [0, 0, 1, 1, 3, 3, 4, 4]
        for t in range(18):
            blk.append(len(M))
            gsn = cfg.get("gsn", 2)
            for qi in range(4):
                qt = qi if (gsn < 2 or t % 2 == 0) else 3 - qi
                acc = vr(qacc(t, qt), 4) if t < 12 else ar(GA + ((t-12)*4+qt)*4, 4)
                for ki in range(2):
                    k2 = ki if (gsn == 0 or qi % 2 == 0) else 1 - ki
                    M.append((mfma(acc, ar(WF+(t % 3)*8+k2*4, 4), xf(k2, qt), "0" if z0 and ki == 0 else acc), [f"w{t}"]))
            if t % 3 == 2 and t < 15:
                p = t // 3
                for k2 in range(2):
                    M.append((mfma(ar(CAC+4*p, 4), ar(CF+k2*4, 4), ar(ONC, 4), "0" if z0 and k2 == 0 else ar(CAC+4*p, 4)), [f"c{p}"]))
            for i, sb_ in enumerate(stat_blocks):
                if sb_ == t:
                    k2, qt = i >> 2, i & 3
                    sm_ = mfma(ar(SUM+4*qt, 4), ar(ONE, 4), xf(k2, qt), "0" if z0 and k2 == 0 else ar(SUM+4*qt, 4))
                    if cfg.get("g44", 0):
                        xb = XF+st*32+(k2*4+qt)*4
                        gm = ar(GRM+4*qt, 4)
                        lo = f"v_mfma_f32_4x4x4_16b_bf16 {gm}, {ar(xb, 2)}, {ar(xb, 2)}, {'0' if z0 and k2 == 0 else gm}"
                        hi = f"v_mfma_f32_4x4x4_16b_bf16 {gm}, {ar(xb+2, 2)}, {ar(xb+2, 2)}, {gm}"
                        M[-2] = (lo + "\n    " + M[-2][0], M[-2][1])
                        M.append((hi + "\n    " + sm_, []))
                    else:
                        M.append((sm_, []))
                        M.append((mfma(ar(GRM+4*qt, 4), xf(k2, qt), xf(k2, qt), "0" if z0 and k2 == 0 else ar(GRM+4*qt, 4)), []))
        NG = len(M)
        blk.append(NG)
        front = [None]*NG
        back = [[] for _ in range(NG)]
        resv = set(b - 1 for b in blk[1:])

        def room(g):
            return 2 - (front[g] is not None) - len(back[g]) - (g in resv)

        def put_front(g, e):
            while front[g] is not None or room(g) < 1:
                g += 1
            front[g] = e
            return g

        def put_back(g, ss):
            while g < NG - 1 and room(g) < len(ss):
                g += 1
            back[g] += ss
            return g
        for t in range(18):
            if mode == "last" and t >= 16:
                continue
            for k, s_ in enumerate(w_reads((t+2) % 18)):
                front[blk[t]+k] = ("l", s_, f"w{(t+2) % 18}" + ("n" if t >= 16 else ""), None)
        for p in range(5):
            for k, s_ in enumerate(c_reads(p)):
                front[blk[3*p]+4+k] = ("l", s_, f"c{p}", None)
        if mode != "last":
            for qt in range(4):
                g = blk[(5+2*qt) if not z0 else (9+qt)] + 4
                for k2 in range(2):
                    g = put_front(g, ("l", x_read(st ^ 1, k2, qt), f"x{qt}", ("vm", f"X{qt}")))
        dl = {"loop": w_dma(), "first": w_dma(), "pre": kv_dma("K", 0) + kv_dma("K", 1) + kv_dma("K", 2),
              "last": kv_dma("V", 0) + kv_dma("K", 3) + kv_dma("V", 1)}[mode]
        g = 0
        last_d = -10
        nd = 0
        if z0:
            pre = [(e, f"X{n>>1}") for n in range(8) for e in x_dma(n)] + [(e, None) for e in xadv]
            if w1in:
                pre = [(e, "W8") for e in w_dma()] + pre
            for e, tg in pre:
                if e[0] == "d":
                    g = put_front(max(g + 1, last_d + (3 if w1in else 4)), ("d", e[1], tg, None))
                    last_d = g
                else:
                    g = put_back(g, list(e[1:]))
        for e in dl:
            if e[0] == "d":
                g = put_front(max(g + 1, last_d + (7 if not z0 else 3)), ("d", e[1], f"W{nd}", None))
                last_d = g
                nd += 1
            else:
                g = put_back(g, list(e[1:]))
        if mode in ("loop", "first"):
            assert g < blk[10] or z0, (g, blk)
            for n in range(8):
                g = max(g, blk[(8 + 2*(n >> 1)) if not z0 else (12 + (n >> 1))])
                for e in x_dma(n):
                    if e[0] == "d":
                        g = put_front(max(g + 1, last_d + (5 if not z0 else 3)), ("d", e[1], f"X{n>>1}", ("lg", f"x{n>>1}")))
                        last_d = g
                    else:
                        g = put_back(g, list(e[1:]))
            for e in xadv:
                g = put_back(g, list(e[1:]))
        gb = blk[16] - 1
        rest = []
        if mode != "last":
            g = put_back(blk[1], [f"s_add_u32 s33, s33, {SLOT}"])
            g = put_back(g + 1, [f"s_cmp_eq_u32 s33, {3*SLOT}", "s_cselect_b32 s59, s56, s55"])
            g = put_back(g + 1, [f"s_cmp_eq_u32 s33, {3*SLOT}", "s_cselect_b32 s33, 0, s33"])
            assert g < blk[7]
            for r_, after in ((CC, 7), (CQ, 10), (CQ+1, 10), (CC+1, 10), (CC+2, 13), (CG, 16)):
                g_ = put_back(blk[after], [f"v_add_u32 v{r_}, s59, v{r_}"])
                assert r_ != CQ or g_ < gb
        if side:
            g = blk[2]
            for blk_ in side:
                while room(g) < 1:
                    g += 1
                back[g] += blk_
                g += 1
        if mode != "last":
            pass
        else:
            for p in range(5):
                front[blk[16]+p] = ("l", f"ds_write_b128 v{56 if p < 4 else 57}, {ar(CAC+4*p, 4)} offset:{256*p}", "cw", None)
            g = blk[6]
            ops = stats_ops()
            while ops and g < NG:
                cost = 2 if ops[0].startswith(("v_sqrt", "v_rcp")) else 1
                if room(g) >= cost and not any(b_.startswith(("v_sqrt", "v_rcp")) for b_ in back[g]):
                    back[g].append(ops.pop(0))
                else:
                    g += 1
            rest = ops
        LG = Track("lgkm", ["w0"]*4 + ["w1"]*4)
        VM = Track("vm", [f"W{i}" for i in range(9)] + [f"X{i>>1}" for i in range(8)] if not z0 else ([] if w1in else ["W8"]*9))
        for g in range(NG):
            txt, needs = M[g]
            if needs:
                n_ = LG.need(needs)
                if n_ is not None:
                    A(f"s_waitcnt lgkmcnt({n_})")
            if not (cfg.get("nostat") and not needs and mode != "first") and not (cfg.get("noc") and needs and needs[0][0] == "c" and mode != "first"):
                A(txt)
            if front[g] is not None and cfg.get("noc") and front[g][2][0] == "c" and front[g][2] != "cw" and mode != "first":
                LG.issue(front[g][2])
                A("ds_read_b32 v63, v36")
            elif front[g] is not None:
                kind, s_, tag, nd_ = front[g]
                if nd_:
                    n_ = (VM if nd_[0] == "vm" else LG).need([nd_[1]])
                    if n_ is not None:
                        A(f"s_waitcnt {'vmcnt' if nd_[0] == 'vm' else 'lgkmcnt'}({n_})")
                A(s_)
                (LG if kind == "l" else VM).issue(tag)
            for s_ in back[g]:
                A(s_)
            if g == gb and mode != "last":
                assert VM.done > 8
                A("s_waitcnt lgkmcnt(0)")
                LG.drain()
                A("s_barrier")
        if mode in ("loop", "first"):
            assert [t for t in VM.q[17:]] == [f"W{i}" for i in range(9)] + [f"X{i>>1}" for i in range(8)], VM.q
        for s_ in rest:
            A(s_)

    A("s_mov_b32 s54, 4")
    A("s_mov_b32 s33, 0")
    A(f"s_mov_b32 s55, {SLOT}")
    A(f"s_mov_b32 s56, {-2*SLOT & 0xffffffff}")
    superstep(0, "first")
    if cfg.get("stamp") == 4:
        for k in range(1, 8):
            ST(4)
            superstep(k & 1, "loop")
        ST(4)
        A("s_branch K1_GEMM_END")
    A("s_branch K1_GEMM1")
    A.raw(".p2align 5")
    A.label("K1_GEMM")
    superstep(0, "loop")
    A.label("K1_GEMM1")
    superstep(1, "loop")
    A("s_sub_u32 s54, s54, 1")
    A("s_cmp_lg_u32 s54, 0")
    A("s_cbranch_scc1 K1_GEMM")
    A.label("K1_GEMM_END")
    ST(3)
    B = Asm()
    B("s_lshl_b32 s66, s32, 2")
    B("s_add_u32 s66, s66, s28")
    B(f"s_mul_i32 s67, s66, {4*RT_STRIDE}")
    srd(B, 24, 52, off_sgpr=67, off_imm=OF_OFF, size=4*RT_STRIDE)
    B("s_bfe_u32 s66, s2, 0x20003")
    B("s_mul_i32 s66, s66, 10240")
    B(f"s_sub_u32 s67, {240*40960}, s66")
    srd(B, 8, 52, off_sgpr=66, off_imm=WP_OFF, size_sgpr=67)
    B("s_and_b32 s66, s2, 1")
    B("s_lshl_b32 s66, s66, 5")
    B("s_lshr_b32 s67, s2, 3")
    B("s_add_u32 s66, s66, s67")
    B("s_mul_i32 s67, s66, 245760")
    srd(B, 4, 52, off_sgpr=67, off_imm=XCH_OFF, size=245760)
    B("s_lshr_b32 s66, s66, 2")
    B(f"s_mul_i32 s66, s66, {8*RT_STRIDE}")
    srd(B, 12, 52, off_sgpr=66, off_imm=OF_OFF, size=8*RT_STRIDE)
    B("s_mul_i32 s35, s31, 3")
    B("s_add_u32 s36, s35, 1")
    B("s_lshr_b32 s36, s36, 1")
    B("s_add_u32 s36, s36, 192")
    B("s_lshl_b32 s37, s36, 10")
    B("s_lshr_b32 s35, s35, 1")
    B("s_add_u32 s35, s35, 193")
    B("s_and_b32 s36, s31, 1")
    B("s_sub_u32 s35, s35, s36")
    B("s_lshl_b32 s35, s35, 10")
    B("s_lshl_b32 s36, s36, 9")
    B("s_add_u32 s38, s35, s36")
    B(f"s_mov_b32 s39, {16*1280}")
    B(f"v_lshlrev_b32 v{PS}, 4, v0")
    B("v_lshlrev_b32 v37, 3, v0")
    side = []
    for l in B.L:
        l = l.strip()
        if l.startswith("s_addc"):
            side[-1].append(l)
        else:
            side.append([l])
    superstep(0, "pre", side=side)
    ST(3)
    ST(4)
    superstep(1, "last")
    ST()
    ST(4)
    A("s_waitcnt vmcnt(9) lgkmcnt(0)")
    A("s_barrier")
    ST(3)
    CT = 48
    for i in range(4):
        A(f"ds_read_b128 v[{CT+4*i}:{CT+4*i+3}], v36 offset:{64*(11-(i^1))}")
    npk = 0 if not cfg.get('pkl', 1) else 10
    for u in range(5, -1, -1):
        cb_ = CT + 8*((5-u) & 1)
        A("s_waitcnt lgkmcnt(2)" if u > 0 else "s_waitcnt lgkmcnt(0)")
        for qt in range(3, -1, -1):
            B = QA + (u*4+qt)*8
            pa = vr(PA+2*qt, 2)
            if npk < 10:
                A(f"s_add_u32 m0, s58, {1024*npk}")
            for p in range(4):
                A(f"v_pk_fma_f32 {vr(B+2*p, 2)}, {pa}, {vr(cb_+2*p, 2)}, {vr(B+2*p, 2)} op_sel_hi:[0,1,1]")
            for p in range(4):
                A(f"v_pk_mul_f32 {vr(B+2*p, 2)}, {pa}, {vr(B+2*p, 2)} op_sel:[1,0]")
            for p in range(3, -1, -1):
                A(f"v_cvt_pk_bf16_f32 v{QF+(u*4+qt)*4+p}, v{B+2*p}, v{B+2*p+1}")
            if npk < 10:
                A(f"buffer_load_dwordx4 v{PD+npk%5}, s[40:43], {'0' if npk < 5 else 's39'} offen nt lds")
                npk += 1
        if u >= 2:
            for i in range(2):
                A(f"ds_read_b128 v[{cb_+4*i}:{cb_+4*i+3}], v36 offset:{64*(2*(u-2)+i)}")
    ST(3)
    HC = 64
    SO = 37
    for t in range(6):
        A(f"ds_read_b128 v[{HC+4*t}:{HC+4*t+3}], v36 offset:{64*(12+t)}")
    for u in range(6):
        A(k_read(0, 0, u))
    A("s_waitcnt lgkmcnt(6)")
    for u in range(6):
        A(k_read(0, 1, u))
    cnt = 0
    for qt in range(4):
        HP = 148 + 6*(qt & 1)
        for t in range(3):
            G = 96 + (cnt % 4)*12
            U, T0 = G + 4, G + 8
            cnt += 1
            pa, pb = vr(PA+2*qt, 2), vr(PB+2*qt, 2)
            for r in range(4):
                A(f"v_accvgpr_read_b32 v{G+r}, a{GA+(t*4+qt)*4+r}")
            for r in range(4):
                A(f"v_accvgpr_read_b32 v{U+r}, a{GA+((t+3)*4+qt)*4+r}")
            for p in range(2):
                A(f"v_pk_fma_f32 {vr(G+2*p, 2)}, {pa}, {vr(HC+4*t+2*p, 2)}, {vr(G+2*p, 2)} op_sel_hi:[0,1,1]")
            for p in range(2):
                A(f"v_pk_fma_f32 {vr(U+2*p, 2)}, {pa}, {vr(HC+4*(t+3)+2*p, 2)}, {vr(U+2*p, 2)} op_sel_hi:[0,1,1]")
            for p in range(2):
                A(f"v_pk_mul_f32 {vr(T0+2*p, 2)}, {pb}, {vr(G+2*p, 2)} op_sel_hi:[0,1]")
            for r in range(4):
                A(f"v_exp_f32 v{T0+r}, v{T0+r}")
            for p in range(2):
                A(f"v_pk_mul_f32 {vr(G+2*p, 2)}, {vr(G+2*p, 2)}, {vr(U+2*p, 2)}")
            for p in range(2):
                A(f"v_pk_fma_f32 {vr(T0+2*p, 2)}, {vr(T0+2*p, 2)}, {pb}, {pb} op_sel:[0,1,1]")
            for r in range(4):
                A(f"v_rcp_f32 v{T0+r}, v{T0+r}")
            A("s_nop 0")
            for p in range(2):
                A(f"v_pk_mul_f32 {vr(G+2*p, 2)}, {vr(G+2*p, 2)}, {vr(T0+2*p, 2)}")
            for p in range(2):
                A(f"v_cvt_pk_bf16_f32 v{HP+2*t+p}, v{G+2*p}, v{G+2*p+1}")
            if cfg.get("sit", 0) and t != 1:
                k_ = 2*qt + (t >> 1)
                if k_ == 0:
                    for i in range(4):
                        A(f"v_mov_b32 v{60+i}, -1")
                    A("s_mov_b32 s57, 4096")
                A(f"buffer_store_dwordx4 v[60:63], v{PS}, s[44:47], {'0' if k_ < 4 else 's57'} offen offset:{1024*(k_ % 4)} sc1")
            if t == 1:
                A(f"buffer_store_dwordx4 {vr(HP, 4)}, v{PS}, s[24:27], s37 offen sc1")
                A(f"s_add_u32 s37, s37, {RT_STRIDE}")
            if t == 2:
                A(f"buffer_store_dwordx2 {vr(HP+4, 2)}, v{SO}, s[24:27], s38 offen sc1")
                A(f"s_add_u32 s38, s38, {RT_STRIDE}")
    ST()
    B = Asm()
    B("s_mov_b32 s55, 0")
    B(f"s_mov_b32 s30, {3*12288}")
    B("s_cmp_eq_u32 s28, 0")
    B(f"s_cselect_b32 s59, {4 if cfg.get('pkl', 1) else 5}, 1")
    B("s_mov_b32 s56, 0")
    B("s_mov_b32 s57, 0")
    B(f"s_mul_i32 s33, s28, {2*RT_STRIDE}")
    B(f"v_add_u32 v{PV}, s33, v{PS}")
    B(f"v_add_u32 v{PV+1}, {RT_STRIDE-2048}, v{PV}")
    B("s_lshr_b32 s33, s28, 1")
    B("s_mul_i32 s33, s33, 40960")
    B("s_and_b32 s35, s28, 1")
    B("s_mul_i32 s35, s35, 5120")
    B("s_add_u32 s33, s33, s35")
    B(f"v_add_u32 v{PV+2}, s33, v{PS}")
    B(f"v_add_u32 v{PV+3}, 4096, v{PV+2}")
    for i in range(4):
        B(f"v_mov_b32 v{18+i}, -1")
    B("v_and_b32 v25, 7, v0")
    B("v_lshlrev_b32 v25, 3, v25")
    B("v_mov_b32 v23, 0")
    B("s_mov_b64 exec, 3")
    B("global_store_dword v1, v23, s[52:53] sc1")
    B("s_mov_b64 exec, -1")
    for i in range(8):
        B(f"v_mov_b32 v{LS+i}, 0")
    f0 = [l.strip() for l in B.L]
    B = Asm()
    MX = [22, 24, 36, 38]
    for qt in range(4):
        b = sreg(0, qt, 0)
        B(f"v_max3_f32 v{MX[qt]}, v{b}, v{b+1}, v{b+2}")
        B(f"v_max_f32 v{MX[qt]}, v{MX[qt]}, v{b+3}")
    xlane_reduce(B, "v_max_f32", MX, 14)
    for qt in range(4):
        for r in range(4):
            B(f"v_sub_f32 v{NM+qt*4+r}, 0, v{MX[qt]}")
    for kt in range(2):
        for qt in range(4):
            for e in range(4):
                B(f"v_sub_f32 v{sreg(0, qt, kt)+e}, v{sreg(0, qt, kt)+e}, v{MX[qt]}")
    f1 = [l.strip() for l in B.L]
    A("s_waitcnt lgkmcnt(0)")
    A("s_nop 1")
    for g, m_ in enumerate(qk_mfmas(0, zero=True)):
        A(m_)
        src = f0 if g < 24 else f1
        if g == 24:
            assert not f0
            A(f"s_waitcnt vmcnt({(27 if cfg.get('sit', 0) else 19) - (10 if cfg.get('pkl', 1) else 0)})")
            A("s_barrier")
        elif 24 < g < 30:
            A(k_read(1, 1, g - 25))
            if g == 29:
                A(k_read(1, 1, 5))
        else:
            for _ in range(2):
                if src:
                    if src[0] == "s_mov_b64 exec, 3":
                        A(src.pop(0))
                        A(src.pop(0))
                    A(src.pop(0))
    for u in range(6):
        A(k_read(1, 0, u))
    assert len(f1) >= 24
    for l in f1:
        A(l)
    A.label("K1_SKIPMAX")
    ST(3)
    E, S = softmax_ops(0, (0,))
    for e in E:
        A(e)
    A("s_nop 0")
    for _, s in S:
        A(s)
    gaps = [[[], [], []] for _ in range(48)]
    if not cfg.get("b2", 0):
        gaps[1][2].append(f"s_add_u32 m0, s29, {KREG}")
        for n in range(3):
            gaps[3+6*n][0].append(f"buffer_load_dwordx4 v{DK+n}, s[16:19], s30 offen offset:{1024*n} lds")
    else:
        gaps[20][2].append("s_barrier")
    gaps[15][2].append("s_sub_u32 s30, s30, 12288")
    if cfg.get("de", 2) == 2:
        for g, s_ in zip((20, 21, 27, 33, 33), early_fill(0)):
            gaps[g][0 if s_.startswith("buffer") else 2].append(s_)
    E, S = softmax_ops(0, (1, 2, 3))
    fill_valu(gaps, 0, 48, E, S)
    A("s_waitcnt lgkmcnt(0)")
    for g, m_ in enumerate(qk_mfmas(1)):
        A(m_)
        for s in gaps[g][0] + gaps[g][1] + gaps[g][2]:
            A(s)
    for u in range(6):
        A(k_read(2, 0, u))
    E, S = softmax_ops(1, (0, 1))
    for e in E:
        A(e)
    A("s_nop 0")
    for _, s in S:
        A(s)
    ST()
    A("s_mov_b32 s54, 15")
    A("s_waitcnt lgkmcnt(0)")
    ST(5)
    gen_stage(A, 0, first=True)
    ST(5)
    gen_stage(A, 1, first=True)
    ST(5)
    A("s_branch K1_LOOP2")
    A.raw(".p2align 6")
    A.label("K1_LOOP")
    gen_stage(A, 0, extra=[(90, "s_sub_u32 s54, s54, 1")])
    gen_stage(A, 1, extra=[(94, "s_cmp_eq_u32 s54, 0")])
    A("s_cbranch_scc1 K1_TAIL")
    A.label("K1_LOOP2")
    gen_stage(A, 2)
    gen_stage(A, 3, extra=[(94, "s_cmp_lg_u32 s54, s59")])
    A("s_cbranch_scc1 K1_LOOP")
    A("s_cmp_eq_u32 s54, 1")
    A("s_cbranch_scc0 K1_REPORT")
    A("global_load_dwordx2 v[22:23], v25, s[64:65] sc1")
    A("s_branch K1_LOOP")
    A.label("K1_REPORT")
    A("s_mov_b32 s59, 1")
    A("s_memrealtime s[34:35]")
    A("s_and_b32 s33, s2, 7")
    A("s_lshl_b32 s33, s33, 3")
    A("v_mov_b32 v15, 0x01000000")
    A("v_mov_b32 v16, s33")
    A("s_waitcnt lgkmcnt(0)")
    A("v_mov_b32 v14, s34")
    A("s_mov_b64 exec, 1")
    A("global_atomic_add_x2 v16, v[14:15], s[64:65] sc1")
    A("s_mov_b64 exec, -1")
    A("s_branch K1_LOOP")
    A.label("K1_TAIL")
    ST(5)
    gen_tail(A)
    ST(5)
    ST()
    A("s_andn2_b32 s34, s34, s55" if not cfg.get("abl", 0) else "s_and_b32 s34, 0, s34")
    A("s_cbranch_scc0 K1_EPI")
    A("s_mov_b32 s55, 1")
    A("v_and_b32 v34, 15, v0")
    A("v_mul_u32_u24 v34, 384, v34")
    A("v_lshrrev_b32 v35, 4, v0")
    A("v_lshl_add_u32 v34, v35, 4, v34")
    for qt in range(4):
        A(f"v_mov_b32 v{30+qt}, 0xff800000")
    A("s_mov_b32 s34, 0")
    A.label("K1_MAXLOOP")
    for u in range(6):
        A(f"buffer_load_dwordx4 {ar(KF+u*4, 4)}, v34, s[16:19], s34 offen offset:{64*u}")
    A("s_waitcnt vmcnt(0)")
    for qt in range(4):
        d = vr(sreg(0, qt, 0), 4)
        for u in range(6):
            A(mfma(d, ar(KF+u*4, 4), qf(qt, u), "0" if u == 0 else d))
    A("s_nop 15")
    for qt in range(4):
        b = sreg(0, qt, 0)
        A(f"v_max3_f32 v{30+qt}, v{30+qt}, v{b}, v{b+1}")
        A(f"v_max3_f32 v{30+qt}, v{30+qt}, v{b+2}, v{b+3}")
    A("s_add_u32 s34, s34, 6144")
    A("s_cmp_lt_u32 s34, 786432")
    A("s_cbranch_scc1 K1_MAXLOOP")
    xlane_reduce(A, "v_max_f32", [30, 31, 32, 33], 34)
    for qt in range(4):
        for r in range(4):
            A(f"v_sub_f32 v{NM+qt*4+r}, 0, v{30+qt}")
    srd(A, 40, 52, size=0)
    A("s_mov_b32 s39, 0")
    A("s_mov_b32 s46, 0")
    A("s_mov_b32 s50, 0")
    A("v_mov_b32 v35, 0")
    A("s_barrier")
    for kind, i in [("K", 0), ("K", 1), ("V", 0), ("K", 2), ("V", 1), ("K", 3)]:
        emit_plain(A, kv_dma(kind, i))
    A(f"s_mov_b32 s30, {3*12288}")
    for i in range(8):
        A(f"v_mov_b32 v{LS+i}, 0")
    A("s_waitcnt vmcnt(0)")
    A("s_barrier")
    for kt in range(2):
        for u in range(6):
            A(k_read(0, kt, u))
    A("s_waitcnt lgkmcnt(0)")
    for m_ in qk_mfmas(0):
        A(m_)
    A("s_barrier")
    for kt in range(2):
        for u in range(6):
            A(k_read(1, kt, u))
    A("s_nop 7")
    A("s_branch K1_SKIPMAX")
    A.label("K1_EPI")
    gen_proj(A, cfg, ST)
    ST.dump(28)
    A.label("K1_END")
    A("s_endpgm")
    kernel_desc(A, name, 512, 102 if ST.on else 72, 256)


PSLOT = 36864


def p_fill_b(ffn=True):
    L = [("s", "s_lshl_b32 s37, s36, 10"), ("s", "s_add_u32 m0, s39, s41")]
    for i in range(4):
        L.append(("d", f"buffer_load_dwordx4 v{PV+(i>>1)}, s[12:15], s37 offen offset:{1024*i} sc1 lds"))
    return L


def p_fill_a():
    L = [("s", "s_mul_i32 s38, s36, 40960"), ("s", "s_add_u32 m0, s39, s42")]
    for i in range(4):
        L.append(("d", f"buffer_load_dwordx4 v{PV+2}, s[8:11], s38 offen offset:{1024*i} sc1 lds"))
    L.append(("s", "s_add_u32 m0, m0, 4096"))
    L.append(("d", f"buffer_load_dwordx4 v{PV+3}, s[8:11], s38 offen sc1 lds"))
    return L


def p_at(m):
    L = [("s", f"s_add_u32 s36, s40, {2*m}" if m < 6 else f"s_add_u32 s36, s43, {2*(m-6)}")]
    if CFG.get("pw", 4) and m >= 6:
        L.append(("s", "s_xor_b32 s36, s36, s58"))
    return L + [("s", f"s_mov_b32 s39, {(m % 4)*PSLOT}")]


def tagd(L, tag):
    return [e if e[0] != "d" else (e[0], e[1], tag) for e in L]


NTAILF = 3
SEL = 104
PV = 26


def gen_proj(A, cfg, ST):
    FA, SA, OS, TM = 32, 112, 160, 192
    RB = 4
    L16, L8 = 16, 17
    VM = Track("vm", ["G0"]*9 + ["G1"]*9 + ["G2"]*9)

    def send(P, t, kind, tag):
        L = [("s", f"s_add_u32 s34, s{44+t}, {kind*7680 + (t-1)*2560}")]
        L.append(("d", f"buffer_store_dwordx4 {vr(P, 4)}, v{L16}, s[4:7], s34 offen sc1", tag))
        L.append(("d", f"buffer_store_dwordx4 {vr(P+4, 4)}, v{L16}, s[4:7], s34 offen offset:1024 sc1", tag))
        L.append(("d", f"buffer_store_dwordx2 {vr(P+8, 2)}, v{L8}, s[4:7], s34 offen offset:2048 sc1", tag))
        return L

    RC = 30
    A("s_mul_i32 s33, s31, 6144")
    for qt in range(4):
        A(f"s_add_u32 s{16+2*qt}, s33, {qt*RT_STRIDE}")
        A(f"s_add_u32 s{17+2*qt}, s33, {qt*RT_STRIDE+4096}")
    def o_store(qt, u):
        so, im = (16+2*qt, 1024*u) if u < 4 else (17+2*qt, 1024*(u-4))
        A(f"buffer_store_dwordx4 {vr(OS+(qt*6+u)*4, 4)}, v{L16}, s[24:27], s{so} offen offset:{im} sc1")
        VM.issue("O")
    g3e = cfg.get("g3e", 0)
    g2 = tagd(p_at(3) + p_fill_b() + p_fill_a(), "G3") if g3e else []
    stores = []
    units = [(u, pr, h) for u in range(6) for pr in range(2) for h in range(2)]

    def finish(k):
        u, pr, h = units[k]
        D = 112 + (k % 2)*8
        for i in range(2):
            for p in range(2):
                A(f"v_cvt_pk_bf16_f32 v{OS+((2*pr+i)*6+u)*4+2*h+p}, v{D+4*i+2*p}, v{D+4*i+2*p+1}")
            if h == 1:
                o_store(2*pr+i, u)
    for k, (u, pr, h) in enumerate(units):
        T0, X, D = 48 + (k % 2)*8, 96 + (k % 2)*4, 112 + (k % 2)*8
        if g2:
            while g2[0][0] != "d":
                A(g2.pop(0)[1])
        for e in range(8):
            A(f"v_accvgpr_read_b32 v{T0+e}, a{oacc(2*u+h, 2*pr+(e>>2))+(e&3)}")
        if g2:
            e = g2.pop(0)
            A(e[1])
            VM.issue(e[2])
        for p in range(4):
            A(f"v_pk_mul_f32 {vr(T0+2*p, 2)}, {vr(NM+8*pr+2*p, 2)}, {vr(T0+2*p, 2)}")
        for p in range(4):
            A(f"v_cvt_pk_bf16_f32 v{X+p}, v{T0+2*p}, v{T0+2*p+1}")
        if k:
            finish(k - 1)
        else:
            A("s_nop 1")
        A(mfma(vr(D, 4), vr(X, 4), vr(SEL+2, 4), "0"))
        A(mfma(vr(D+4, 4), vr(X, 4), vr(SEL, 4), "0"))
    A("s_nop 7")
    finish(23)
    assert not g2
    A("s_bfe_u32 s29, s2, 0x20001")
    A("s_and_b32 s30, s2, 1")
    A("s_lshl_b32 s30, s30, 3")
    A("s_lshr_b32 s33, s2, 5")
    A("s_add_u32 s30, s30, s33")
    A("s_lshr_b32 s33, s28, 1")
    A("s_lshl_b32 s33, s33, 2")
    A("s_mul_i32 s35, s28, 15360")
    for t in range(4):
        A(f"s_add_u32 s34, s29, {t}")
        A("s_and_b32 s34, s34, 3")
        A(f"s_mul_i32 s{44+t}, s34, 61440")
        A(f"s_add_u32 s{44+t}, s{44+t}, s35")
        A("s_add_u32 s34, s34, s33")
        A("s_lshl_b32 s34, s34, 11")
        A(f"v_add_u32 v{RB+t}, s34, v{L16}")
        A(f"v_add_u32 v{RB+5+t}, s34, v{L8}")
    A("s_and_b32 s34, s28, 1")
    A("s_mul_i32 s34, s34, 5120")
    A("s_add_u32 s34, s34, 16384")
    A(f"v_add_u32 v{RB+4}, s34, v{L16}")
    A("s_lshl_b32 s34, s30, 3")
    A("s_add_u32 s34, s34, s33")
    A("s_add_u32 s34, s34, s29")
    A("s_lshl_b32 s34, s34, 4")
    A("v_and_b32 v3, 15, v0")
    A("v_add_u32 v3, s34, v3")
    A("v_mul_u32_u24 v3, 1280, v3")
    A("v_lshrrev_b32 v2, 4, v0")
    A("v_lshl_add_u32 v3, v2, 3, v3")
    A("s_bfe_u32 s34, s2, 0x20003")
    A("s_lshl_b32 s34, s34, 1")
    A("s_and_b32 s35, s28, 1")
    A("s_add_u32 s34, s34, s35")
    A("s_mul_i32 s34, s34, 160")
    A("v_add_u32 v3, s34, v3")
    A("s_lshl_b32 s34, s30, 1")
    A("s_lshr_b32 s35, s28, 1")
    A("s_add_u32 s34, s34, s35")
    A("s_lshl_b32 s34, s34, 7")
    A("s_lshl_b32 s35, s29, 5")
    A("s_add_u32 s34, s34, s35")
    A(f"s_add_u32 s34, s34, {FLG_OFF}")
    A("v_and_b32 v2, 7, v0")
    A("v_lshl_add_u32 v2, v2, 2, s34")
    A(f"s_mov_b32 s48, {PSLOT}")
    A(f"s_mov_b32 s49, {-3*PSLOT & 0xffffffff}")
    TH1, TH2 = cfg.get("th1", 180)*32*4, cfg.get("th2", 430)*32*4
    A("s_and_b32 s33, s2, 1")
    for i in range(4):
        A(f"v_readlane_b32 s{16+i}, v22, s33")
        A("s_add_u32 s33, s33, 2")
    for i in (3, 2, 1, 0):
        A(f"s_sub_u32 s{16+i}, s{16+i}, s16")
        A(f"s_lshl_b32 s{16+i}, s{16+i}, 2")
        A(f"s_or_b32 s{16+i}, s{16+i}, {i}")
    for a_, b_ in ((0, 1), (2, 3), (0, 2), (1, 3), (1, 2)):
        A(f"s_min_i32 s33, s{16+a_}, s{16+b_}")
        A(f"s_max_i32 s{16+b_}, s{16+a_}, s{16+b_}")
        A(f"s_mov_b32 s{16+a_}, s33")
    A("s_mov_b32 s54, 7")
    A("s_mov_b32 s56, s29")
    A("s_mov_b32 s57, 0")
    for hi, lo in ((19, 16), (18, 17)):
        A(f"s_sub_i32 s33, s{hi}, s{lo}")
        if cfg.get("fine", 1):
            A("s_mov_b32 s34, 0")
            for r_ in range(1, cfg.get("rmax", 5) + 1):
                A(f"s_cmp_gt_i32 s33, {(cfg.get('t0', 80) + cfg.get('dt', 115)*(r_-1))*32*4}")
                A(f"s_cselect_b32 s34, {r_}, s34")
        else:
            A(f"s_cmp_gt_i32 s33, {TH1}")
            A("s_cselect_b32 s34, 2, 0")
            A(f"s_cmp_gt_i32 s33, {TH2}")
            A("s_cselect_b32 s34, 4, s34")
        if cfg.get("forceD"):
            A(f"s_mov_b32 s34, {cfg['forceD']}")
        if not cfg.get("bal", 1):
            A("s_mov_b32 s34, 0")
        A(f"s_and_b32 s{hi}, s{hi}, 3")
        A(f"s_and_b32 s{lo}, s{lo}, 3")
        A(f"s_cmp_eq_u32 s{hi}, s29")
        A("s_cselect_b32 s33, s34, 0")
        A("s_sub_u32 s54, s54, s33")
        A(f"s_mul_i32 s35, s{hi}, 48")
        A("s_add_u32 s35, s35, 48")
        A("s_lshl_b32 s33, s34, 2")
        A("s_sub_u32 s35, s35, s33")
        A(f"s_cmp_eq_u32 s{lo}, s29")
        A("s_cselect_b32 s33, s34, 0")
        A("s_cselect_b32 s57, s35, s57")
        A("s_add_u32 s54, s54, s33")
        A("s_cmp_lg_u32 s33, 0")
        A(f"s_cselect_b32 s56, s{hi}, s56")
    A("s_sub_u32 s56, s56, s29")
    A("s_lshl_b32 s56, s56, 5")
    A("v_add_u32 v13, s56, v2")
    A("s_add_u32 s56, s43, 48")
    A("s_min_u32 s33, s54, 7")
    A("s_lshl_b32 s33, s33, 2")
    A("s_add_u32 s33, s33, 20")
    A("s_and_b32 s33, s33, 0xfffffff8")
    A("s_add_u32 s23, s33, s43")
    if cfg.get("pw", 4):
        A("s_bfe_u32 s58, s2, 0x20003")
        A("s_add_u32 s58, s58, s30")
        A(f"s_and_b32 s58, s58, {cfg.get('pw', 4) - 1}")
        A("s_lshl_b32 s58, s58, 1")
        A("s_and_b32 s22, s58, 2")
    ST()

    def reads(n, k2, par):
        L = []
        F0 = 72*par + 36*k2
        split = n is not None and n < 12 and n % 3 == 1
        order = [("A", 0), ("B", 0), ("B", 1), ("B", 2), ("B", 3), ("A", 1), ("A", 2), ("A", 3), ("A", 4)]
        for kind, i in order:
            if kind == "B" and split:
                L.append(f"ds_read2_b64 {ar(F0+4*i, 4)}, v{RB+5+i} offset0:{128*k2} offset1:{128*k2+64}")
            elif kind == "B":
                L.append(f"ds_read_b128 {ar(F0+4*i, 4)}, v{RB+i} offset:{1024*k2}")
            else:
                L.append(f"ds_read_b128 {ar(F0+16+4*i, 4)}, v{RB+4} offset:{10240*k2+1024*i}")
        return L

    def group(par, acc0, gaps, zero=False):
        for g in range(40):
            n, ki = divmod(g, 2)
            t, c = divmod(n, 5)
            if t % 2:
                c = 4 - c
            t = 3 - t
            k2 = ki if n % 2 == 0 else 1 - ki
            acc = vr(acc0 + 20*t + 4*c, 4)
            A(mfma(acc, ar(72*par+36*k2+16+4*c, 4), ar(72*par+36*k2+4*t, 4), "0" if zero and ki == 0 else acc))
            for e in gaps[g]:
                if callable(e):
                    e()
                elif isinstance(e, tuple):
                    A(e[0])
                    VM.issue(e[1])
                else:
                    A(e)

    RP = [0, 1, 3, 4, 5, 7, 8, 9, 11]

    def place(gaps, L, pos):
        pos = list(pos)
        pend = []
        for e in L:
            if e[0] != "d":
                pend.append(e[1])
                continue
            g = pos.pop(0)
            for k, s_ in enumerate(pend):
                gaps[max(0, g - 1 - (len(pend) - 1 - k) // 2)].append(s_)
            pend = []
            gaps[g].insert(0, (e[1], e[2]))
        assert not pend

    def spread(n, lo=2, hi=38):
        cand = [g for g in range(lo, hi + 1) if (g % 20) not in RP]
        assert n <= len(cand), (n, len(cand))
        return [cand[(k*len(cand))//n] for k in range(n)]

    def base_adv(gaps, m, wide):
        d = PSLOT if (m + 1) % 4 else -3*PSLOT
        regs = list(range(RB, RB+5)) + (list(range(RB+5, RB+9)) if wide else [])
        g = len(gaps) - 8
        for i, r in enumerate(regs):
            gaps[g + (i*7)//len(regs)].append(f"v_add_u32 v{r}, s{48 if d > 0 else 49}, v{r}")

    def set_flag(lane, tag):
        def fn():
            n_ = VM.need([tag])
            if n_ is not None:
                A(f"s_waitcnt vmcnt({n_})")
            A("v_mov_b32 v14, 1")
            A(f"s_mov_b64 exec, {1 << lane}")
            A("global_store_dword v1, v14, s[52:53] sc1")
            A("s_mov_b64 exec, -1")
            VM.issue("flag")
        return fn

    def check_flags(label, vaddr, flush=None):
        if flush is None:
            n_ = VM.need(["poll" + label])
            if n_ is not None:
                A(f"s_waitcnt vmcnt({n_})")
        A("v_cmp_ne_u32 vcc, 0, v15")
        A("s_cmp_eq_u64 vcc, exec")
        A(f"s_cbranch_scc1 {label}_OK")
        if flush is not None:
            for e in flush:
                A(e[1])
            A("s_mov_b32 s26, 0")
            A("v_mov_b32 v14, 1")
            A("s_waitcnt vmcnt(0)")
            A("s_mov_b64 exec, 1")
            A("global_store_dword v1, v14, s[52:53] sc1")
        poll(A, label, vaddr, 15, "s[52:53]", "-1", "0")

    def sbody(m, ops, extra=None):
        gaps = [[] for _ in range(40)]
        for k, s_ in enumerate(reads(2*m+2, 0, (m+1) & 1)):
            gaps[RP[k]].append(s_)
        for k, s_ in enumerate(reads(2*m+3, 1, (m+1) & 1)):
            gaps[20+RP[k]].append(s_)
        nd = sum(e[0] == "d" for e in ops)
        place(gaps, ops, spread(nd) if nd else [])
        if m < 26:
            base_adv(gaps, m + 1, m + 1 < 5)
        elif m < 28:
            gaps[30] += [f"s_add_u32 s35, s35, {PSLOT}", f"s_cmp_eq_u32 s35, {4*PSLOT}", "s_cselect_b32 s50, s49, s48", "s_cselect_b32 s35, 0, s35"]
            for i, g_ in enumerate((32, 33, 35, 36, 37)):
                gaps[g_].append(f"v_add_u32 v{RB+i}, s50, v{RB+i}")
        for g, e in (extra or []):
            gaps[g].append(e)
        n_ = VM.need([f"G{m+1}"])
        A("s_waitcnt lgkmcnt(0)" + (f" vmcnt({n_})" if n_ is not None else ""))
        A("s_barrier")
        group(m & 1, FA if m < 6 else SA, gaps, zero=m in (0, 6))
        if m < 12:
            ST(2)

    def full(m):
        return tagd(p_at(m) + p_fill_b(m < 6) + p_fill_a(), f"G{m}")

    def only_a(m):
        return tagd(p_at(m) + p_fill_a(), f"G{m}")

    def only_b(m):
        return tagd(p_at(m) + p_fill_b(m < 6), f"G{m}")

    def mix(*lists):
        pos = []
        for gi, L in enumerate(lists):
            g, cur = [], []
            for e in L:
                cur.append(e)
                if e[0] == "d":
                    g.append(cur)
                    cur = []
            for k, e in enumerate(g):
                pos.append(((k + 0.5) / len(g), gi, e))
        pos.sort(key=lambda x: (x[0], x[1]))
        return [e for _, _, grp in pos for e in grp]

    ST(2)
    n_ = VM.need(["G0"])
    A(f"s_waitcnt vmcnt({n_})")
    A("s_barrier")
    for s_ in reads(0, 0, 0) + reads(1, 1, 0):
        A(s_)
    for e in only_a(3):
        A(e[1])
        if e[0] == "d":
            VM.issue(e[2])
        elif "m0" in e[1]:
            A("s_nop 0")
    for r in range(RB, RB+9):
        A(f"v_add_u32 v{r}, s48, v{r}")
    pl = cfg.get("pl", 2)
    pend_b = []
    for m in range(6):
        ops = only_b(3) if m == 0 else []
        if m + 4 < 6 or m > pl:
            ops += pend_b + full(m + 4)
            pend_b = []
        else:
            ops += only_a(m + 4)
            pend_b += only_b(m + 4)
        ex_ = []
        if m == 0:
            ex_.append((cfg.get("flat", 19), set_flag(0, "O")))
        if m == pl:
            ex_.append((cfg.get("pollat", 20), ("global_load_dword v15, v2, s[52:53] sc1", "pollK2_PO")))
        sbody(m, ops, extra=ex_)
        if m == pl:
            ST()
            check_flags("K2_PO", 2)
            ST()
    assert not pend_b
    cv = []
    for t in (3, 2, 1):
        for q in range(10):
            cv.append(f"v_cvt_pk_bf16_f32 v{TM+10*(t-1)+q}, v{FA+20*t+2*q}, v{FA+20*t+2*q+1}")
    fs = [send(TM+10*(t-1), t, 1, "F") for t in (3, 2, 1)]
    sbody(6, full(10) + fs[0], extra=[(k, c_) for k, c_ in enumerate(cv)])
    sbody(7, mix(full(11), fs[1]))
    sbody(8, mix(full(12), fs[2]))
    sbody(9, full(13))
    sbody(10, full(14), extra=[(0, ("global_load_dword v15, v13, s[52:53] sc1", "pollK2_PD"))])
    sbody(11, full(15), extra=[(0, set_flag(1, "F"))])
    A(f"s_waitcnt vmcnt({VM.need(['pollK2_PD'])})")
    A("v_cmp_ne_u32 vcc, 0, v15")
    A("s_sub_u32 s59, s54, 7")
    A("s_max_i32 s59, s59, 0")
    A("s_cmp_eq_u64 vcc, exec")
    A("s_cselect_b32 s59, 0, s59")
    A("s_sub_u32 s54, s54, s59")
    ST()
    assert VM.q[-19:] == ["G14"]*9 + ["flag"] + ["G15"]*9, VM.q[-30:]
    A(f"s_add_u32 s36, s43, {2*(16-6)}")
    if cfg.get("pw", 4):
        A("s_mov_b32 s51, s36")
        A("s_xor_b32 s36, s36, s58")
    A(f"s_mov_b32 s39, {(16 % 4)*PSLOT}")
    A(f"s_mov_b32 s35, {(13 % 4)*PSLOT}")
    DP = [2, 6, 10, 14, 18, 22, 26, 30, 34]
    A.label("K2_LOOP")
    for par in range(2):
        gaps = [[] for _ in range(40)]
        for k, s_ in enumerate(reads(None, 0, par ^ 1)):
            gaps[RP[k]].append(s_)
        for k, s_ in enumerate(reads(None, 1, par ^ 1)):
            gaps[20+RP[k]].append(s_)
        g, nd = 0, 0
        for e in p_fill_b(False) + p_fill_a():
            if e[0] == "d":
                g = DP[nd]
                nd += 1
                gaps[g].append(e[1])
            else:
                gaps[g] += list(e[1:])
                g += 1
        gaps[16] += ["s_add_u32 s51, s51, 2", f"s_add_u32 s39, s39, {PSLOT}"]
        if par:
            gaps[18] += ["s_cmp_eq_u32 s51, s23", "s_cselect_b32 s58, s22, s58"]
            gaps[22] += ["s_cmp_eq_u32 s51, s56", "s_cselect_b32 s51, s57, s51"]
        gaps[24] += ["s_xor_b32 s36, s51, s58"]
        gaps[17] += [f"s_cmp_eq_u32 s39, {4*PSLOT}", "s_cselect_b32 s39, 0, s39"]
        gaps[12] += [f"s_add_u32 s35, s35, {PSLOT}"]
        gaps[13] += [f"s_cmp_eq_u32 s35, {4*PSLOT}", "s_cselect_b32 s50, s49, s48"]
        gaps[19] += [f"s_cmp_eq_u32 s35, {4*PSLOT}", "s_cselect_b32 s35, 0, s35"]
        for i, g_ in enumerate((32, 33, 35, 36, 37)):
            gaps[g_].append(f"v_add_u32 v{RB+i}, s50, v{RB+i}")
        if par:
            gaps[12] += ["s_sub_u32 s54, s54, 1"]
            gaps[38] += ["s_cmp_lg_u32 s54, 0"]
        A("s_waitcnt vmcnt(18) lgkmcnt(0)")
        A("s_barrier")
        group(par, SA, gaps)
    A("s_cbranch_scc1 K2_LOOP")
    A("s_cmp_eq_u32 s59, 0")
    A("s_cbranch_scc1 K2_LOOP_END")
    poll(A, "K2_PD", 13, 15, "s[52:53]", "-1", "0")
    A("s_mov_b32 s54, s59")
    A("s_mov_b32 s59, 0")
    A("s_branch K2_LOOP")
    A.label("K2_LOOP_END")
    ST()
    VM.q, VM.done = ["G27"]*9 + ["G28"]*9 + ["G29"]*9, 0
    RF, RS, T, XR, XF_ = 52, 82, 192, 222, 232
    FS = FA

    def recv(P, off, tag):
        return [("s", f"s_add_u32 s34, s44, {off}"),
                ("d", f"buffer_load_dwordx4 {vr(P, 4)}, v{L16}, s[4:7], s34 offen sc1", tag),
                ("d", f"buffer_load_dwordx4 {vr(P+4, 4)}, v{L16}, s[4:7], s34 offen offset:1024 sc1", tag),
                ("d", f"buffer_load_dwordx2 {vr(P+8, 2)}, v{L8}, s[4:7], s34 offen offset:2048 sc1", tag)]
    B = Asm()
    B("s_lshr_b32 s33, s2, 3")
    B("s_and_b32 s34, s2, 1")
    B("s_lshl_b32 s34, s34, 5")
    B("s_add_u32 s33, s33, s34")
    B("s_lshl_b32 s33, s33, 2")
    B("s_add_u32 s33, s33, s28")
    B("s_lshl_b32 s33, s33, 4")
    B(f"s_add_u32 s33, s33, {FLG_OFF + 0x1000}")
    B("v_and_b32 v2, 3, v0")
    B("v_lshl_add_u32 v2, v2, 2, s33")
    srd(B, 20, 60, size=2621440)
    srd(B, 16, 62, size=2621440)
    ex_ = [(k, l.strip()) for k, l in enumerate(B.L)]
    ex_.insert(10, (10, ("global_load_dword v15, v2, s[52:53] sc1", "pollK2_PF")))
    for c in range(5):
        ex_.append((22 + 3*c, (f"buffer_load_dwordx2 v[{XR+2*c}:{XR+2*c+1}], v3, s[20:23], 0 offen offset:{32*c}", "x")))
    sbody(26, [], extra=ex_)
    if cfg.get("fe", 1):
        check_flags("K2_PF", 2)
        sbody(27, sum((recv(RF+10*d, 7680+2560*d, f"RF{d}") for d in range(3)), []))
        rs_ = sum((recv(RS+10*d, 2560*d, "RS") for d in range(3)), [])
    else:
        sbody(27, [])
        check_flags("K2_PF", 2)
        rs_ = sum((recv(RF+10*d, 7680+2560*d, f"RF{d}") for d in range(3)), []) + sum((recv(RS+10*d, 2560*d, "RS") for d in range(3)), [])
    rsp = cfg.get("rsp", 0)
    sbody(28, rs_ if rsp == 1 else [])
    gaps = [[] for _ in range(40)]
    tail_ = []
    for i, t in enumerate((3, 2, 1)):
        P = SA + 20*t
        for q in range(10):
            gaps[14 + 10*i + q // 2].append(f"v_cvt_pk_bf16_f32 v{P+q}, v{P+2*q}, v{P+2*q+1}")
        sd = send(P, t, 0, "S")
        if i < 2:
            gaps[19 + 10*i].append(sd[0][1])
            for k in range(3):
                gaps[20 + 10*i + k].insert(0, (sd[1+k][1], "S"))
        else:
            tail_ = sd
    nsh = 0
    if cfg.get("fe", 1):
        def wait_rf0():
            A(f"s_waitcnt vmcnt({VM.need(['RF0'])})")
        gaps[0].append(wait_rf0)
        for q in range(10):
            gaps[1 + q] += [f"v_lshlrev_b32 v{T+2*q}, 16, v{RF+q}", f"v_and_b32 v{T+2*q+1}, 0xffff0000, v{RF+q}"]
        nsh = 1
    A("s_waitcnt lgkmcnt(0)")
    group(1, SA, gaps)
    for e in tail_:
        A(e[1])
        if e[0] == "d":
            VM.issue(e[2])
    ST()
    if rsp == 2:
        for e in rs_:
            A(e[1])
            if e[0] == "d":
                VM.issue(e[2])
    for d in range(3):
        if d >= nsh:
            A(f"s_waitcnt vmcnt({VM.need([f'RF{d}'])})")
            for q in range(10):
                A(f"v_lshlrev_b32 v{T+2*q}, 16, v{RF+10*d+q}")
                A(f"v_and_b32 v{T+2*q+1}, 0xffff0000, v{RF+10*d+q}")
        for q in range(10):
            A(f"v_pk_add_f32 {vr(FS+2*q, 2)}, {vr(FS+2*q, 2)}, {vr(T+2*q, 2)}")
    A(f"s_mov_b32 s33, {hex(f2u(-LOG2E))}")
    for q in range(10):
        A(f"v_cvt_pk_bf16_f32 v{T+q}, v{FS+2*q}, v{FS+2*q+1}")
    for q in range(10):
        A(f"v_lshlrev_b32 v{FS+2*q}, 16, v{T+q}")
        A(f"v_and_b32 v{FS+2*q+1}, 0xffff0000, v{T+q}")
    for q in range(20):
        A(f"v_mul_f32 v{T+q}, s33, v{FS+q}")
    for q in range(20):
        A(f"v_exp_f32 v{T+q}, v{T+q}")
    for q in range(20):
        A(f"v_add_f32 v{T+q}, 1.0, v{T+q}")
    for q in range(20):
        A(f"v_rcp_f32 v{T+q}, v{T+q}")
    for q in range(10):
        A(f"v_pk_mul_f32 {vr(FS+2*q, 2)}, {vr(FS+2*q, 2)}, {vr(T+2*q, 2)}")
    for q in range(10):
        A(f"v_cvt_pk_bf16_f32 v{T+q}, v{FS+2*q}, v{FS+2*q+1}")
    for q in range(10):
        A(f"v_lshlrev_b32 v{FS+2*q}, 16, v{T+q}")
        A(f"v_and_b32 v{FS+2*q+1}, 0xffff0000, v{T+q}")
        A(f"v_lshlrev_b32 v{XF_+2*q}, 16, v{XR+q}")
        A(f"v_and_b32 v{XF_+2*q+1}, 0xffff0000, v{XR+q}")
    ST()
    A(f"s_mov_b32 s35, {SPIN_MAX if not cfg.get('sabl') else 1}")
    if rsp == 0:
        A("s_branch K2_PS_LOAD")
    else:
        A(f"s_waitcnt vmcnt({VM.need(['RS'])})")
    A.label("K2_PS")
    A(f"v_max3_u32 v12, v{RS}, v{RS+1}, v{RS+2}")
    A(f"v_max3_u32 v13, v{RS+3}, v{RS+4}, v{RS+5}")
    for q in range(6, 30, 4):
        A(f"v_max3_u32 v12, v12, v{RS+q}, v{RS+q+1}")
        A(f"v_max3_u32 v13, v13, v{RS+q+2}, v{RS+q+3}")
    A("v_max_u32 v12, v12, v13")
    A("v_cmp_eq_u32 vcc, -1, v12")
    A("s_cmp_eq_u64 vcc, 0")
    A("s_cbranch_scc1 K2_PS_OK")
    A("s_sub_u32 s35, s35, 1")
    A("s_cmp_eq_u32 s35, 0")
    A("s_cbranch_scc1 K2_PS_OK")
    A.label("K2_PS_LOAD")
    pm = cfg.get("pm", 0)
    if pm == 1:
        A(f"s_sleep {cfg.get('psl', 8)}")
    elif pm == 2:
        A("v_min_u32 v12, 2, v0")
        A("v_mul_u32_u24 v12, 2560, v12")
        A("v_add_u32 v12, 2556, v12")
        A.label("K2_PI")
        A("buffer_load_dword v13, v12, s[4:7], s44 offen sc1")
        A("s_waitcnt vmcnt(0)")
        A("v_cmp_eq_u32 vcc, -1, v13")
        A("s_cmp_eq_u64 vcc, 0")
        A("s_cbranch_scc1 K2_PI_OK")
        A(f"s_sleep {cfg.get('psl', 2)}")
        A("s_sub_u32 s35, s35, 1")
        A("s_cmp_gt_u32 s35, 1")
        A("s_cbranch_scc1 K2_PI")
        A.label("K2_PI_OK")
    for d in range(3):
        for e in recv(RS + 10*d, 2560*d, "RS"):
            A(e[1])
    A("s_waitcnt vmcnt(0)")
    A("s_branch K2_PS")
    A.label("K2_PS_OK")
    ST()
    for d in range(3):
        for q in range(10):
            A(f"v_lshlrev_b32 v{T+2*q}, 16, v{RS+10*d+q}")
            A(f"v_and_b32 v{T+2*q+1}, 0xffff0000, v{RS+10*d+q}")
        for q in range(10):
            A(f"v_pk_add_f32 {vr(SA+2*q, 2)}, {vr(SA+2*q, 2)}, {vr(T+2*q, 2)}")
    for q in range(10):
        A(f"v_cvt_pk_bf16_f32 v{T+q}, v{SA+2*q}, v{SA+2*q+1}")
    for q in range(10):
        A(f"v_lshlrev_b32 v{SA+2*q}, 16, v{T+q}")
        A(f"v_and_b32 v{SA+2*q+1}, 0xffff0000, v{T+q}")
    for q in range(10):
        A(f"v_pk_mul_f32 {vr(SA+2*q, 2)}, {vr(SA+2*q, 2)}, {vr(FS+2*q, 2)}")
    for q in range(10):
        A(f"v_cvt_pk_bf16_f32 v{T+q}, v{SA+2*q}, v{SA+2*q+1}")
    for q in range(10):
        A(f"v_lshlrev_b32 v{SA+2*q}, 16, v{T+q}")
        A(f"v_and_b32 v{SA+2*q+1}, 0xffff0000, v{T+q}")
    for q in range(10):
        A(f"v_pk_add_f32 {vr(SA+2*q, 2)}, {vr(SA+2*q, 2)}, {vr(XF_+2*q, 2)}")
    for q in range(10):
        A(f"v_cvt_pk_bf16_f32 v{XR+q}, v{SA+2*q}, v{SA+2*q+1}")
    for c in range(5):
        A(f"buffer_store_dwordx2 v[{XR+2*c}:{XR+2*c+1}], v3, s[16:19], 0 offen offset:{32*c}")
    ST()


HEADER = """; Kernarg layout for this problem (96 bytes, ptrs only, base s[0:1]):
;   offset  72: d_out     shape=(1, 2048, 640) dtype=bfloat16
;   offset  80: d_debug   256 bytes
"""


CFG = {}


def generate(cfg):
    CFG.clear()
    CFG.update(cfg)
    A = Asm()
    A.raw(HEADER.rstrip())
    A.raw(f"; @launch grid=(256,1,1) block=(256,1,1) lds={K1_LDS}")
    A.raw('.amdgcn_target "amdgcn-amd-amdhsa--gfx950"')
    gen_main(A, cfg)
    return A.text()


if __name__ == "__main__":
    for x in range(192):
        assert (x * 2731) >> 16 == x // 24 and (x * 10923) >> 16 == x // 6
    for x in range(320):
        assert (x * 3277) >> 16 == x // 20
    cfg = {}
    out = f"cdna_kernels/{NAME}.s"
    for a in sys.argv[1:]:
        if "=" in a:
            k, v = a.split("=")
            if k == "out":
                out = v
            else:
                cfg[k] = int(v)
    open(out, "w").write(generate(cfg))
    print("wrote", out)
```

```python
import sys, math, struct

NAME = "recurrent_scan__mha_block_cached__swiglu_ffn__prompt"
XN_OFF = 0
WP_OFF = 0x400000
OF_OFF = 0x1000000
RT_STRIDE = 240 * 1024
LOG2E = 1.4426950408889634


def f2u(x):
    return struct.unpack("<I", struct.pack("<f", x))[0]


class Asm:
    def __init__(self):
        self.L = []

    def __call__(self, s):
        self.L.append("    " + s)

    def label(self, s):
        self.L.append(s + ":")

    def raw(self, s):
        self.L.append(s)

    def text(self):
        return "\n".join(self.L) + "\n"


def vr(b, n=1):
    return f"v{b}" if n == 1 else f"v[{b}:{b+n-1}]"


def ar(b, n=1):
    return f"a{b}" if n == 1 else f"a[{b}:{b+n-1}]"


def sr(b, n=1):
    return f"s{b}" if n == 1 else f"s[{b}:{b+n-1}]"


def kernel_begin(A, name):
    A.raw(".text")
    A.raw(f".globl {name}")
    A.raw(".p2align 8")
    A.raw(f".type {name},@function")
    A.label(name)


def kernel_desc(A, name, nv, ns, ao):
    A.raw('.section .rodata,"a"')
    A.raw(".p2align 6")
    A.raw(f".amdhsa_kernel {name}")
    A.raw(f"  .amdhsa_next_free_vgpr {nv}")
    A.raw(f"  .amdhsa_next_free_sgpr {ns}")
    A.raw(f"  .amdhsa_accum_offset {ao}")
    A.raw("  .amdhsa_group_segment_fixed_size 0")
    A.raw("  .amdhsa_kernarg_size 96")
    A.raw("  .amdhsa_user_sgpr_count 2")
    A.raw("  .amdhsa_user_sgpr_kernarg_segment_ptr 1")
    A.raw("  .amdhsa_system_sgpr_workgroup_id_x 1")
    A.raw(".end_amdhsa_kernel")


def srd(A, d, ptr, off_sgpr=None, off_imm=0, size=None, size_sgpr=None):
    if off_sgpr is not None:
        A(f"s_add_u32 s{d}, s{ptr}, s{off_sgpr}")
        A(f"s_addc_u32 s{d+1}, s{ptr+1}, 0")
        if off_imm:
            A(f"s_add_u32 s{d}, s{d}, {off_imm}")
            A(f"s_addc_u32 s{d+1}, s{d+1}, 0")
    elif off_imm:
        A(f"s_add_u32 s{d}, s{ptr}, {off_imm}")
        A(f"s_addc_u32 s{d+1}, s{ptr+1}, 0")
    else:
        A(f"s_mov_b32 s{d}, s{ptr}")
        A(f"s_mov_b32 s{d+1}, s{ptr+1}")
    if size_sgpr is not None:
        A(f"s_mov_b32 s{d+2}, s{size_sgpr}")
    else:
        A(f"s_mov_b32 s{d+2}, {size}")
    A(f"s_mov_b32 s{d+3}, 0x00020000")


STAMP_OFF = 0x8000000


class Stamps:
    def __init__(self, A, on):
        self.A, self.on, self.n = A, on, 0

    def __call__(self, lvl=1):
        if not self.on or (lvl != self.on and self.n > 0 and lvl != 9):
            return
        A = self.A
        A("s_memtime s[66:67]")
        A("s_memrealtime s[68:69]")
        A("s_waitcnt lgkmcnt(0)")
        A(f"s_mov_b32 s{70+2*self.n}, s66")
        A(f"s_mov_b32 s{71+2*self.n}, s68")
        self.n += 1
        assert self.n <= 16

    def dump(self, wave_sgpr):
        if not self.on:
            return
        A = self.A
        A("s_waitcnt vmcnt(0)")
        self(9)
        A("s_lshl_b32 s33, s2, 2")
        A(f"s_add_u32 s33, s33, s{wave_sgpr}")
        A("s_lshl_b32 s33, s33, 7")
        A(f"s_add_u32 s33, s33, {STAMP_OFF}")
        A("s_add_u32 s34, s52, s33")
        A("s_addc_u32 s35, s53, 0")
        A("v_mov_b32 v1, 0")
        for i in range(self.n):
            A(f"v_mov_b32 v2, s{70+2*i}")
            A(f"v_mov_b32 v3, s{71+2*i}")
            A(f"global_store_dwordx2 v1, v[2:3], s[34:35] offset:{8*i}")
        A("s_waitcnt vmcnt(0)")


def mfma(d, a, b, c):
    return f"v_mfma_f32_16x16x32_bf16 {d}, {a}, {b}, {c}"


XCH_OFF = 0x4000000
K2_LDS = 4 * 36864


QF = 160
SB = 96
NM = 80
VF = 48
LS = 40
VK, VV, DK, DV = 2, 4, 8, 11
KF = 192
KREG, VREG = 36864, 86016


def qf(qt, u):
    return vr(QF + (u*4+qt)*4, 4)


def sreg(t, qt, kt):
    return (96 + 16*(t & 3) if kt == 0 else 48 + 16*(t & 1)) + 4*qt


def oacc(dt, qt):
    return (dt*4 + qt) * 4


def kfr(t, kt, u):
    return ar(KF + ((t + kt) & 1)*24 + u*4, 4)


def k_read(t, kt, u):
    return f"ds_read_b128 {kfr(t, kt, u)}, v{VK+(u&1)} offset:{(t & 3)*12288+kt*6144+128*(u>>1)}"


def v_read(reg, t, dt, rd):
    return f"ds_read_b64_tr_b16 {ar(reg+2*rd, 2)}, v{VV+(dt&3)} offset:{(t & 3)*12288+rd*6144+128*(dt>>2)}"


def qk_mfmas(t, zero=False):
    M = []
    for kt in range(2):
        for qt in range(4):
            d = vr(sreg(t, qt, kt), 4)
            for k in range(6):
                u = k if qt % 2 == 0 else 5 - k
                M.append(mfma(d, kfr(t, kt, u), qf(qt, u), ("0" if zero else vr(NM+qt*4, 4)) if k == 0 else d))
    return M


def softmax_ops(t, qts):
    E, S = [], []
    for qt in qts:
        for p in range(4):
            b = sreg(t, qt, p >> 1) + 2*(p & 1)
            e0 = len(E)
            E.append(f"v_exp_f32 v{b}, v{b}")
            E.append(f"v_exp_f32 v{b+1}, v{b+1}")
            S.append((e0, f"v_add_f32 v{LS+2*qt}, v{LS+2*qt}, v{b}"))
            S.append((e0+1, f"v_add_f32 v{LS+2*qt+1}, v{LS+2*qt+1}, v{b+1}"))
            S.append((e0+1, f"v_cvt_pk_bf16_f32 v{sreg(t, qt, 0)+p}, v{b}, v{b+1}"))
    return E, S


def fill_valu(gaps, lo, hi, E, S):
    ei, si = 0, 0
    epos = {}
    n_empty = sum(1 for g in range(lo, hi) if not gaps[g][0] and not gaps[g][2])
    assert n_empty >= len(E), (n_empty, len(E))
    for g in range(lo, hi):
        used = len(gaps[g][0]) + len(gaps[g][2])
        avail = [k for k in range(si, len(S)) if S[k][0] in epos and epos[S[k][0]] < g]
        navail = 0
        for k in range(si, len(S)):
            if S[k][0] in epos and epos[S[k][0]] < g:
                navail += 1
            else:
                break
        if used == 0:
            empty_left = sum(1 for q in range(g, hi) if not gaps[q][0] and not gaps[q][2])
            must_exp = empty_left <= len(E) - ei
            if ei < len(E) and (must_exp or navail < 4):
                gaps[g][1].append(E[ei])
                epos[ei] = g
                ei += 1
                continue
        free = 2 - used
        while free > 0 and navail > 0:
            gaps[g][1].append(S[si][1])
            si += 1
            navail -= 1
            free -= 1
    assert ei == len(E) and si == len(S), (ei, len(E), si, len(S))


def early_fill(sg):
    reg, srd_, base, t0 = (DK, "s[16:19]", KREG, sg) if sg & 1 else (DV, "s[20:23]", VREG, sg + 2)
    return ([f"s_add_u32 m0, s29, {base + (t0 & 3)*12288}"] +
            [f"buffer_load_dwordx4 v{reg+n}, {srd_}, s30 offen offset:{1024*n}{' nt' if CFG.get('ntl') else ''} lds" for n in range(3)] +
            ["s_add_u32 s30, s30, 12288"])


def gen_stage(A, sg, extra=None, first=False):
    M = qk_mfmas(sg + 2)
    ta = sg & 2
    ring = [KF + 48 + 4*k for k in range(4)] + [KF + (sg & 1)*24 + 4*k for k in range(6)]
    vreg = lambda j: ring[j % 10]
    for d in range(6):
        dt = 6*(sg & 1) + d
        for qi in range(4):
            qt = qi if d % 2 == 0 else 3 - qi
            o = ar(oacc(dt, qt), 4)
            for ki in range(2):
                k = ki if qi % 2 == 0 else 1 - ki
                M.append(mfma(o, vr(sreg(ta + k, qt, 0), 4), ar(vreg(2*d + k), 4), "0" if first and ki == 0 else o))
    gaps = [[[], [], []] for _ in range(96)]
    for u in range(6):
        gaps[1+3*u][0].append(k_read(sg + 2, 1, u))
    gaps[23][2].append("s_waitcnt lgkmcnt(0)")
    for r in range(24):
        j = r >> 1
        gaps[26+2*r][0].append(v_read(vreg(j), ta + (j & 1), 6*(sg & 1) + (j >> 1), r & 1))
    for g in (47, 63):
        gaps[g][2].append("s_waitcnt lgkmcnt(3)")
    sit = CFG.get('sit', 0)
    ex = [0, 1, 0 if sit else 1, 0]
    b2 = CFG.get("b2", 0)
    if not b2:
        if first and CFG.get("pkl", 1):
            gaps[79][2].append("s_waitcnt vmcnt(16) lgkmcnt(0)" if sg else "s_waitcnt lgkmcnt(0)")
            for n, g in enumerate((21, 33, 45, 57, 69)):
                gaps[g-1][2].append(f"s_add_u32 m0, s58, {1024*(5*sg+n)}")
                gaps[g][0].append(f"buffer_load_dwordx4 v{30+n}, s[40:43], {'s39' if sg else '0'} offen nt lds")
        else:
            gaps[79][2].append(f"s_waitcnt vmcnt({(6 if sg & 1 else 9) + ex[sg] + ex[sg-1]}) lgkmcnt(0)")
        gaps[79][2].append("s_barrier")
    elif sg & 1:
        gaps[79][2].append(f"s_waitcnt vmcnt({1 if sg == 1 else 1}) lgkmcnt(0)")
        gaps[79][2].append("s_barrier")
    else:
        gaps[79][2].append("s_waitcnt vmcnt(21) lgkmcnt(0)" if first else "s_waitcnt lgkmcnt(0)")
    if sg == 1 and first and CFG.get("pkl", 1):
        pass
    elif sg == 1:
        gaps[18][0].append("ds_read_b64_tr_b16 v[14:15], v35")
        gaps[19][0].append(f"ds_read_b64_tr_b16 v[16:17], v35 offset:{16*320}")
        gaps[39][0].append("buffer_store_dwordx4 v[14:17], v39, s[48:51], s56 offen sc1")
        gaps[75][2].append("v_add_u32 v35, 32, v35")
        gaps[75][2].append("s_add_u32 s56, s56, 1024")
    elif sg == (3 if b2 else 2) and not sit:
        gaps[39][0].append("buffer_store_dwordx4 v[18:21], v39, s[44:47], s57 offen sc1")
        gaps[75][2].append("s_add_u32 s57, s57, 1024")
    for u in range(6):
        gaps[81+u][0].append(k_read(sg + 3, 0, u))
    gaps[95][2].append("s_waitcnt lgkmcnt(0)")
    de = CFG.get("de", 2)
    if not b2 and de == 2:
        reg, srd_, base, t0 = (DK, "s[16:19]", KREG, sg) if sg & 1 else (DV, "s[20:23]", VREG, sg + 2)
        gaps[1][2].append(f"s_add_u32 m0, s29, {base + ((t0+1) & 3)*12288}")
        for n, g in enumerate((3, 8, 12)):
            gaps[g][0].append(f"buffer_load_dwordx4 v{reg+n}, {srd_}, s30 offen offset:{1024*n}{' nt' if CFG.get('ntl') else ''} lds")
        gaps[13][2].append("s_sub_u32 s30, s30, 12288" if sg & 1 else "s_add_u32 s30, s30, 12288")
        for g, s_ in zip((78, 80, 88, 93, 93), early_fill(sg + 1)):
            gaps[g][0 if s_.startswith("buffer") else 2].append(s_)
    elif not b2:
        P = [3, 9, 15, 21, 27, 33] if de == 0 else [2, 6, 11, 15, 20, 24]
        reg, srd_, base, t0 = (DK, "s[16:19]", KREG, sg) if sg & 1 else (DV, "s[20:23]", VREG, sg + 2)
        gaps[1][2].append(f"s_add_u32 m0, s29, {base + (t0 & 3)*12288}")
        for n in range(6):
            gaps[P[n]][0].append(f"buffer_load_dwordx4 v{reg+n%3}, {srd_}, s30 offen offset:{1024*(n%3)} lds")
        gaps[P[2]][2].append("s_add_u32 s30, s30, 12288")
        gaps[16 if de == 0 else 13][2].append(f"s_add_u32 m0, s29, {base + ((t0+1) & 3)*12288}")
        gaps[36][2].append("s_sub_u32 s30, s30, 12288" if sg & 1 else "s_add_u32 s30, s30, 12288")
    elif not sg & 1:
        P = [2, 6, 11, 15, 20, 24, 29, 35, 41, 49, 55, 61]
        lst = [(DV, "s[20:23]", VREG, sg + 2), (DV, "s[20:23]", VREG, sg + 3), (DK, "s[16:19]", KREG, sg), (DK, "s[16:19]", KREG, sg + 1)]
        for k, (reg, srd_, base, t0) in enumerate(lst):
            gaps[1 if k == 0 else P[3*k-1]][2].append(f"s_add_u32 m0, s29, {base + (t0 & 3)*12288}")
            for n in range(3):
                gaps[P[3*k+n]][0].append(f"buffer_load_dwordx4 v{reg+n}, {srd_}, s30 offen offset:{1024*n}{' nt' if CFG.get('ntl') else ''} lds")
        gaps[13][2].append("s_add_u32 s30, s30, 12288")
        gaps[42][2].append("s_add_u32 s30, s30, 12288")
    if extra:
        for g, s in extra:
            gaps[g][2].append(s)
    E, S = softmax_ops(sg + 1, (2, 3))
    fill_valu(gaps, 0, 47, E, S)
    E, S = softmax_ops(sg + 2, (0, 1))
    fill_valu(gaps, 48, 96, E, S)
    abl = CFG.get("abl", 0) if not first else 0
    for g in range(96):
        A(M[g])
        for s in gaps[g][0] + gaps[g][1] + gaps[g][2]:
            if (abl & 1 and s.startswith("buffer_load")) or (abl & 2 and s.startswith("s_barrier")) or (abl & 4 and s.startswith("buffer_store")):
                continue
            if abl & 16 and "s30, s30" in s:
                s = "s_nop 0"
            if abl & 32 and s.startswith("ds_read_b128"):
                continue
            if abl & 64 and s.startswith("ds_read_b64_tr_b16 a"):
                continue
            if abl & 128 and s.startswith("v_add_f32"):
                continue
            if abl & 256 and s.startswith("v_exp"):
                s = s.replace("v_exp_f32", "v_mov_b32")
            if abl & 8 and "vmcnt" in s:
                s = "s_waitcnt lgkmcnt(0)"
            A(s)


def gen_tail(A):
    LG = Track("lg")
    rd = [(j, r) for j in range(24) for r in range(2)]

    def next_read():
        j, r = rd.pop(0)
        A(v_read(KF + 4*(j % 16), 2 + (j & 1), j >> 1, r))
        LG.issue(f"v{j}")
    for _ in range(12):
        next_read()
    A("s_waitcnt vmcnt(0)")
    A("s_barrier")
    A("s_bfe_u32 s33, s2, 0x20001")
    A("s_mul_i32 s40, s33, 12")
    A("s_add_u32 s40, s40, 192")
    A("s_mul_i32 s43, s33, 48")
    A("s_lshl_b32 s41, s28, 12")
    A("s_mul_i32 s42, s28, 5120")
    A("s_add_u32 s42, s42, 16384")
    A(f"s_mov_b32 s33, {SPIN_MAX}")
    A.label("K2_PP")
    A("v_cmp_le_u32 vcc, 0x20000000, v23")
    A("s_cmp_eq_u64 vcc, exec")
    A("s_cbranch_scc1 K2_PP_OK")
    A("s_sleep 1")
    A("global_load_dwordx2 v[22:23], v25, s[64:65] sc1")
    A("s_waitcnt vmcnt(0)")
    A("s_sub_u32 s33, s33, 1")
    A("s_cmp_lg_u32 s33, 0")
    A("s_cbranch_scc1 K2_PP")
    A.label("K2_PP_OK")
    W = sum((p_at(m) + p_fill_b() + p_fill_a() for m in range(NTAILF)), [])

    def next_fill():
        while W:
            e = W.pop(0)
            if e[0] == "d":
                A(e[1])
                while W and W[0][0] != "d":
                    A(W.pop(0)[1])
                return
            A(e[1])
            if W[0][0] == "d":
                A("s_nop 0")
    E, S = softmax_ops(3, (2, 3))
    for k, e in enumerate(E):
        if k % 6 == 0:
            next_fill()
        A(e)
    B = Asm()
    for qt in range(4):
        B(f"v_add_f32 v{30+qt}, v{LS+2*qt}, v{LS+2*qt+1}")
    B("v_mov_b32 v14, 1.0")
    B("v_bfe_u32 v16, v0, 2, 2")
    B("v_lshrrev_b32 v15, 4, v0")
    for qt in range(4):
        B(f"v_mfma_f32_16x16x4_f32 {vr(NM+4*qt, 4)}, v{30+qt}, v14, 0")
    B("v_cmp_eq_u32 vcc, v16, v15")
    B("v_and_b32 v16, 1, v0")
    B("v_lshlrev_b32 v16, 4, v16")
    B("v_mov_b32 v15, 0x3f80")
    B("v_lshlrev_b32 v15, v16, v15")
    B("v_cndmask_b32 v15, 0, v15, vcc")
    B("v_and_b32 v16, 2, v0")
    B("v_cmp_eq_u32 vcc, 0, v16")
    for i in (0, 1, 4, 5):
        B(f"v_mov_b32 v{SEL+i}, 0")
    B(f"v_cndmask_b32 v{SEL+2}, 0, v15, vcc")
    B(f"v_cndmask_b32 v{SEL+3}, v15, v{SEL}, vcc")
    B(f"v_add_f32 v14, v{NM}, v{NM+1}")
    B(f"v_add_f32 v15, v{NM+2}, v{NM+3}")
    for i in range(4, 16):
        B(f"v_add_f32 v{14+(i&1)}, v{14+(i&1)}, v{NM+i}")
    B("v_add_f32 v14, v14, v15")
    B("s_lshl_b32 s35, s28, 2|"f"s_add_u32 s35, s35, {FREG}")
    B(f"v_cmp_ngt_f32 vcc, {hex(f2u(2.0**60))}, v14")
    B("v_mov_b32 v15, s35")
    B("s_cmp_lg_u64 vcc, 0|s_cselect_b32 s34, 1, 0")
    B("v_mov_b32 v14, s34")
    B("ds_write_b32 v15, v14|"f"v_mov_b32 v16, {FREG}")
    f0 = [l.strip() for l in B.L]
    B = Asm()
    B("ds_read_b128 v[40:43], v16")
    for i in range(10):
        B(f"v_rcp_f32 v{NM+i}, v{NM+i}")
    B("s_waitcnt lgkmcnt(0)|v_or_b32 v40, v40, v41")
    B("v_or3_b32 v40, v40, v42, v43|v_lshlrev_b32 v16, 4, v0")
    B("v_readfirstlane_b32 s34, v40|v_lshlrev_b32 v17, 3, v0")
    for i in range(10, 16):
        B(f"v_rcp_f32 v{NM+i}, v{NM+i}")
    f1 = [l.strip() for l in B.L]
    seq = []
    for qs in ((0, 1), (2, 3)):
        for dt in range(6):
            seq += [(dt, q) for q in (qs if dt % 2 == 0 else qs[::-1])]
    for dt in range(6, 12):
        seq += [(dt, q if dt % 2 == 0 else 3 - q) for q in range(4)]
    sm = [x[1] for x in S]
    g = 0
    for n_, (dt, qt) in enumerate(seq):
        o = ar(oacc(dt, qt), 4)
        for ki in range(2):
            k = ki if n_ % 2 == 0 else 1 - ki
            w_ = LG.need([f"v{2*dt}", f"v{2*dt+1}"])
            if w_ is not None:
                A(f"s_waitcnt lgkmcnt({min(w_, 15)})")
            if g == 24:
                assert not sm
                A("s_nop 1")
            if g == 76:
                assert not f0 and not rd, (f0, rd)
                A("s_waitcnt lgkmcnt(0)")
                LG.drain()
                A("s_barrier")
            A(mfma(o, vr(sreg(2 + k, qt, 0), 4), ar(KF + 4*((2*dt + k) % 16), 4), o))
            n = 2
            if g % 4 == 3:
                next_fill()
                n = 1
            elif rd and (rd[0][0] < 16 or g >= 24 + 4*((rd[0][0] - 16) >> 1) + 3):
                next_read()
                n = 1
            src = sm if g < 24 else f0 if g < 76 else f1
            if g >= 76:
                n = 1
            for _ in range(n):
                if src:
                    for l in src.pop(0).split("|"):
                        A(l)
                        if l.startswith("ds_write"):
                            LG.issue("fl")
            g += 1
    assert not W and not f1, (W, f1)


def xlane_reduce(A, op, regs, tmp):
    for swap in ("v_permlane32_swap_b32", "v_permlane16_swap_b32"):
        for i, r in enumerate(regs):
            A(f"v_mov_b32 v{tmp+i}, v{r}")
        A("s_nop 1")
        for i, r in enumerate(regs):
            A(f"{swap} v{tmp+i}, v{r}")
        A("s_nop 1")
        for i, r in enumerate(regs):
            A(f"{op} v{r}, v{r}, v{tmp+i}")


class Track:
    def __init__(self, name, init=()):
        self.name, self.q, self.done = name, list(init), 0

    def issue(self, tag):
        self.q.append(tag)

    def need(self, tags):
        idx = max((len(self.q) - 1 - self.q[::-1].index(t)) for t in tags)
        if idx < self.done:
            return None
        self.done = idx + 1
        return len(self.q) - 1 - idx

    def drain(self):
        self.done = len(self.q)


XREG = 110592
CREG = 147456
FREG = 148608
K1_LDS = 148672 + 1088
FLG_OFF = 0x7000000
SPIN_MAX = 1 << 22


def emit_plain(A, L):
    prev = None
    for e in L:
        if e[0] == "d" and prev is not None and "m0" in prev:
            A("s_nop 0")
        for s_ in e[1:]:
            A(s_)
        prev = e[-1]


def poll(A, label, vaddr, vtmp, sbase, mask_sgpr_pair, want, cmp="v_cmp_ne_u32"):
    A(f"s_mov_b32 s33, {SPIN_MAX}")
    A(f"s_mov_b64 exec, {mask_sgpr_pair}")
    A.label(label)
    A(f"global_load_dword v{vtmp}, v{vaddr}, {sbase} sc1")
    A("s_waitcnt vmcnt(0)")
    A(f"{cmp} vcc, {want}, v{vtmp}")
    A("s_cmp_eq_u64 vcc, exec")
    A(f"s_cbranch_scc1 {label}_OK")
    A("s_sleep 1")
    A("s_sub_u32 s33, s33, 1")
    A("s_cmp_lg_u32 s33, 0")
    A(f"s_cbranch_scc1 {label}")
    A.label(label + "_OK")
    A("s_mov_b64 exec, -1")


def gen_main(A, cfg):
    name = NAME + "_kernel"
    NT = " nt" if cfg.get("nt", 0) else ""
    NTW = " nt" if cfg.get("ntw", 1) else ""
    NTG = " nt" if cfg.get("ntg", 0) else ""
    NTX = " nt" if cfg.get("ntx", 0) else ""
    kernel_begin(A, name)
    A("s_cmp_ge_u32 s2, 256")
    A("s_cbranch_scc1 K1_END")
    if cfg.get("cpf", 1):
        A("s_getpc_b64 s[34:35]")
        A("s_and_b32 s34, s34, 0xffffff00")
        A("s_lshr_b32 s33, s2, 3")
        A("s_lshl_b32 s33, s33, 12")
        A("v_lshl_add_u32 v2, v0, 4, s33")
        A(f"v_min_u32 v2, (K1_END-{name}-16)&0xfffffff0, v2")
        A("global_load_dwordx4 v[60:63], v2, s[34:35]")
    if cfg.get("mix", 1):
        A("s_bfe_u32 s33, s2, 0x10001")
        A("s_xor_b32 s2, s2, s33")
    ST = Stamps(A, cfg.get("stamp", 0))
    ST()
    A("s_memrealtime s[54:55]")
    A("s_load_dwordx2 s[60:61], s[0:1], 0")
    A("s_load_dwordx4 s[44:47], s[0:1], 24")
    A("s_load_dwordx4 s[48:51], s[0:1], 48")
    A("s_load_dwordx4 s[40:43], s[0:1], 8")
    A("s_load_dwordx2 s[58:59], s[0:1], 64")
    A("s_load_dwordx2 s[62:63], s[0:1], 72")
    A("s_load_dwordx2 s[64:65], s[0:1], 80")
    A("s_load_dwordx2 s[52:53], s[0:1], 88")
    A("v_lshrrev_b32 v1, 6, v0")
    A("v_and_b32 v0, 63, v0")
    A("v_readfirstlane_b32 s28, v1")
    if cfg.get("map", 1):
        A("s_and_b32 s31, s2, 6")
        A("s_lshl_b32 s31, s31, 2")
        A("s_bfe_u32 s33, s2, 0x30003")
        A("s_add_u32 s31, s31, s33")
        A("s_and_b32 s32, s2, 1")
        A("s_lshl_b32 s32, s32, 2")
        A("s_lshr_b32 s33, s2, 6")
        A("s_add_u32 s32, s32, s33")
    else:
        A("s_and_b32 s31, s2, 7")
        A("s_lshl_b32 s31, s31, 2")
        A("s_bfe_u32 s33, s2, 0x20003")
        A("s_add_u32 s31, s31, s33")
        A("s_lshr_b32 s32, s2, 5")
    A("s_mul_i32 s29, s28, 3072")
    XD, XR, WD, GD, CQ, CG, CC = 14, 16, 18, 21, 24, 26, 27
    XT = 24
    A("v_lshrrev_b32 v36, 3, v0")
    A("v_mul_u32_u24 v37, 1280, v36")
    A("v_lshrrev_b32 v38, 4, v0")
    A("v_and_b32 v39, 7, v0")
    A("v_xor_b32 v39, v39, v38")
    A(f"v_lshl_add_u32 v{XD}, v39, 4, v37")
    A("v_xor_b32 v39, 4, v39")
    A(f"v_lshl_add_u32 v{XD+1}, v39, 4, v37")
    A(f"v_add_u32 v{XD+1}, 10240, v{XD+1}")
    for n in range(3):
        A(f"v_add_u32 v40, {64*n}, v0")
        A(f"v_mul_u32_u24 v{44+n}, 2731, v40")
        A(f"v_lshrrev_b32 v{44+n}, 16, v{44+n}")
        A(f"v_mul_u32_u24 v41, 24, v{44+n}")
        A("v_sub_u32 v41, v40, v41")
        A(f"v_and_b32 v42, 2, v{44+n}")
        A("v_lshlrev_b32 v42, 1, v42")
        A("v_xor_b32 v41, v41, v42")
        A("s_lshl_b32 s33, s28, 4")
        A(f"v_add_u32 v42, s33, v{44+n}")
        A("v_mul_u32_u24 v42, 12288, v42")
        A("v_lshl_add_u32 v42, v41, 4, v42")
        A(f"v_subrev_u32 v{WD+n}, {1024*n}, v42")
        A("v_mul_u32_u24 v41, 10923, v40")
        A("v_lshrrev_b32 v41, 16, v41")
        A("v_mul_u32_u24 v42, 6, v41")
        A("v_sub_u32 v42, v40, v42")
        A("s_and_b32 s33, s31, 1")
        A("s_lshl_b32 s33, s33, 1")
        A("v_add_u32 v42, s33, v42")
        A("v_subrev_u32 v43, 6, v42")
        A("v_min_u32 v42, v42, v43")
        A("s_and_b32 s33, s28, 1")
        A("s_lshl_b32 s33, s33, 5")
        A("v_add_u32 v41, s33, v41")
        A("v_mul_u32_u24 v41, 3072, v41")
        A("v_lshl_add_u32 v41, v42, 4, v41")
        A(f"v_subrev_u32 v{GD+n}, {1024*n}, v41")
    rot = cfg.get("rot", 4)
    if rot == 0:
        A("s_mov_b32 s39, 0")
    elif rot == 1:
        A("s_add_u32 s39, s31, s32")
        A("s_and_b32 s39, s39, 1")
        A("s_mul_i32 s39, s39, 5")
    elif rot == 4:
        A("s_add_u32 s39, s31, s32")
        A("s_and_b32 s39, s39, 1")
        A("s_mov_b32 s24, s39")
        A("s_mov_b32 s25, 0")
        A("s_mov_b32 s26, 0")
    elif rot == 2:
        A("s_and_b32 s39, s2, 1")
        A("s_mul_i32 s39, s39, 5")
    else:
        A("s_add_u32 s39, s31, s32")
        A("s_and_b32 s39, s39, 3")
        A("s_mul_i32 s39, s39, 5")
        A("s_lshr_b32 s39, s39, 1")
    A("s_lshl_b32 s36, s39, 7")
    A(f"s_mul_i32 s38, s39, {64*3072}")
    A("s_lshl_b32 s37, s38, 2")
    A("s_mov_b32 s39, 0")
    A("s_lshl_b32 s57, s28, 13")
    A(f"s_add_u32 s57, s57, {XREG}")
    A("s_lshl_b32 s33, s32, 2")
    A("s_add_u32 s33, s33, s28")
    A(f"s_mul_i32 s56, s33, {64*1280}")
    A("s_waitcnt lgkmcnt(0)")
    A("s_mov_b32 s3, s54")
    ST(3)
    srd(A, 4, 60, off_sgpr=56, size=64*1280)
    A("s_mul_i32 s34, s31, 384")
    A(f"s_sub_u32 s35, {640*12288}, s34")
    srd(A, 8, 44, off_sgpr=34, size_sgpr=35)
    A("s_cmp_lt_u32 s28, 2")
    A("s_cselect_b32 s44, s48, s50")
    A("s_cselect_b32 s45, s49, s51")
    A("s_mul_i32 s34, s31, 96")
    if cfg.get("gual"):
        A("s_and_b32 s34, s34, 0xffffff80")
    A(f"s_sub_u32 s35, {640*3072}, s34")
    srd(A, 12, 44, off_sgpr=34, size_sgpr=35)

    GA, SUM, GRM, CAC, ONE, WF, CF, XF = 0, 96, 112, 128, 148, 152, 176, 192
    ONC = 184
    QA = 64
    SLOT = 36864

    def qacc(t, qt):
        return QA + ((t >> 1)*4 + qt)*8 + (t & 1)*4

    def x_dma(n):
        return [("s", f"s_add_u32 m0, s57, {1024*n}"), ("s", f"s_add_u32 s35, s36, {20480*(n>>1)}"),
                ("d", f"buffer_load_dwordx4 v{XD+(n&1)}, s[4:7], s35 offen{NTX} lds")]
    xadv = [("s", "s_add_u32 s36, s36, 128")]
    if rot == 4:
        xadv = [("s", "s_add_u32 s25, s25, 1"), ("s", "s_xor_b32 s36, s25, s24"), ("s", "s_lshl_b32 s36, s36, 7")]
    elif rot:
        xadv.append(("s2", "s_cmp_eq_u32 s36, 1280", "s_cselect_b32 s36, 0, s36"))

    def x_read(st, k2, qt):
        return f"ds_read_b128 {ar(XF+st*32+(k2*4+qt)*4, 4)}, v{XR+k2} offset:{qt*2048}"

    def w_dma():
        L = []
        L.append(("s", "s_lshl_b32 s34, s29, 1"))
        L.append(("s", "s_add_u32 m0, s39, s34"))
        for n in range(3):
            L.append(("d", f"buffer_load_dwordx4 v{WD+n}, s[8:11], s37 offen offset:{1024*n}{NTW} lds"))
        L.append(("s", "s_add_u32 m0, m0, 3072"))
        L.append(("s", f"s_add_u32 s35, s37, {8*12288}"))
        for n in range(3):
            L.append(("d", f"buffer_load_dwordx4 v{WD+n}, s[8:11], s35 offen offset:{1024*n}{NTW} lds"))
        L.append(("s", "s_add_u32 s34, s29, 24576"))
        L.append(("s", "s_add_u32 m0, s39, s34"))
        for n in range(3):
            L.append(("d", f"buffer_load_dwordx4 v{GD+n}, s[12:15], s38 offen offset:{1024*n}{NTG} lds"))
        if rot == 4:
            L += [("s", "s_add_u32 s26, s26, 1"), ("s", "s_xor_b32 s38, s26, s24"), ("s", f"s_mul_i32 s38, s38, {64*3072}")]
        else:
            L.append(("s", f"s_add_u32 s38, s38, {64*3072}"))
        if rot and rot != 4:
            L.append(("s2", f"s_cmp_eq_u32 s38, {640*3072}", "s_cselect_b32 s38, 0, s38"))
        L.append(("s", "s_lshl_b32 s37, s38, 2"))
        L.append(("s", f"s_add_u32 s39, s39, {SLOT}"))
        L.append(("s2", f"s_cmp_eq_u32 s39, {3*SLOT}", "s_cselect_b32 s39, 0, s39"))
        return L

    def kv_dma(kind, i):
        L = [("s", f"s_add_u32 m0, s29, {(KREG if kind == 'K' else VREG) + i*12288}")]
        if kind == "K" and i == 0:
            for n in range(3):
                L.append(("s", f"v_subrev_u32 v{60+n}, 12288, v{DK+n}"))
            for n in range(3):
                L.append(("d", f"buffer_load_dwordx4 v{60+n}, s[16:19], 0 offen offset:{1024*n}{NT} lds"))
        elif kind == "K":
            L.append(("s", f"s_mov_b32 s30, {(i-1)*12288}"))
            for n in range(3):
                L.append(("d", f"buffer_load_dwordx4 v{DK+n}, s[16:19], s30 offen offset:{1024*n}{NT} lds"))
        else:
            L.append(("s", f"s_mov_b32 s30, {i*12288}"))
            for n in range(3):
                L.append(("d", f"buffer_load_dwordx4 v{DV+n}, s[20:23], s30 offen offset:{1024*n}{NT} lds"))
        return L

    def w_reads(t):
        L = []
        for k2 in range(2):
            for rd in range(2):
                d = ar(WF + (t % 3)*8 + k2*4 + 2*rd, 2)
                if t < 12:
                    u, par = t >> 1, t & 1
                    L.append(f"ds_read_b64_tr_b16 {d}, v{CQ+(u&1)} offset:{k2*32*384+rd*4*384+128*(u>>1)+8*par}")
                else:
                    tt = t - 12
                    L.append(f"ds_read_b64_tr_b16 {d}, v{CG} offset:{24576+(tt//3)*6144+k2*32*96+rd*4*96+32*(tt%3)}")
        return L

    def c_reads(p):
        L = []
        for k2 in range(2):
            for rd in range(2):
                d = ar(CF + k2*4 + 2*rd, 2)
                if p < 3:
                    L.append(f"ds_read_b64_tr_b16 {d}, v{CC} offset:{k2*32*384+rd*4*384+128*p}")
                else:
                    L.append(f"ds_read_b64_tr_b16 {d}, v{CC+p-2} offset:{24576+k2*32*96+rd*4*96}")
        return L

    A0 = A
    A = Asm()
    A("s_lshl_b32 s34, s33, 7")
    A("s_lshl_b32 s35, s31, 2")
    A("s_add_u32 s34, s34, s35")
    A("s_and_b32 s35, s2, 1")
    A("s_lshl_b32 s35, s35, 5")
    A("s_lshr_b32 s56, s2, 3")
    A("s_add_u32 s35, s35, s56")
    A("s_lshl_b32 s35, s35, 2")
    A("s_add_u32 s35, s35, s28")
    A("s_lshl_b32 s35, s35, 2")
    A("s_bfe_u32 s56, s2, 0x20001")
    A("s_add_u32 s35, s35, s56")
    A("s_lshl_b32 s35, s35, 2")
    A("s_add_u32 s35, s35, 0x1000")
    A(f"s_add_u32 s34, s34, {FLG_OFF}")
    A(f"s_add_u32 s35, s35, {FLG_OFF}")
    A("v_mov_b32 v1, s34")
    A("v_mov_b32 v40, s35")
    A("v_cmp_eq_u32 vcc, 1, v0")
    A("v_mov_b32 v41, 0")
    A("s_nop 0")
    A("v_cndmask_b32 v1, v1, v40, vcc")
    A("s_mul_i32 s34, s31, 786432")
    srd(A, 16, 40, off_sgpr=34, size=786432)
    srd(A, 20, 42, off_sgpr=34, size=786432)
    A("s_cmp_ge_u32 s2, 192")
    A("s_cselect_b32 s44, s58, s46")
    A("s_cselect_b32 s45, s59, s47")
    A("s_cselect_b32 s34, 192, 0")
    A("s_sub_u32 s34, s2, s34")
    A("s_mul_i32 s34, s34, 40960")
    A("s_cmp_lt_u32 s2, 240")
    A("s_cselect_b32 s35, 40960, 0")
    A("s_cselect_b32 s34, s34, 0")
    srd(A, 40, 44, off_sgpr=34, size_sgpr=35)
    A("s_lshl_b32 s34, s2, 2")
    A("s_add_u32 s34, s34, s28")
    A("s_mul_i32 s34, s34, 10240")
    A("s_lshr_b32 s35, s35, 2")
    srd(A, 48, 52, off_sgpr=34, off_imm=WP_OFF, size_sgpr=35)
    A("s_and_b32 s34, s2, 1")
    A("s_lshl_b32 s34, s34, 5")
    A("s_lshr_b32 s35, s2, 3")
    A("s_add_u32 s34, s34, s35")
    A("s_lshl_b32 s34, s34, 2")
    A("s_bfe_u32 s35, s2, 0x20001")
    A("s_add_u32 s34, s34, s35")
    A("s_lshl_b32 s34, s34, 2")
    A("s_add_u32 s34, s34, s28")
    A("s_mul_i32 s34, s34, 15360")
    srd(A, 44, 52, off_sgpr=34, off_imm=XCH_OFF, size=7680)
    A("v_bfe_u32 v39, v0, 2, 2")
    A("v_and_b32 v40, 3, v0")
    A("v_and_b32 v41, 15, v0")
    for n in range(3):
        A("s_lshl_b32 s34, s28, 3")
        A(f"v_add_u32 v42, s34, v{44+n}")
        A("v_bfe_u32 v43, v42, 1, 3")
        A("v_xor_b32 v43, v43, v0")
        A("v_lshlrev_b32 v43, 4, v43")
        A("v_add_u32 v43, s29, v43")
        A(f"v_add_u32 v{DK+n}, 12288, v43")
        A("v_and_b32 v43, 6, v42")
        A("v_xor_b32 v43, v43, v0")
        A("v_lshlrev_b32 v43, 4, v43")
        A(f"v_add_u32 v{DV+n}, s29, v43")
    A("v_lshl_add_u32 v42, v38, 3, v39")
    A("v_mul_u32_u24 v43, 384, v42")
    A("v_lshl_add_u32 v43, v40, 4, v43" if not cfg.get("nocf") else "v_lshl_add_u32 v43, v40, 3, v43")
    if cfg.get("nocf"):
        A("v_and_b32 v47, 1, v38")
        A("v_lshl_add_u32 v43, v47, 5, v43")
    A("v_lshrrev_b32 v44, 1, v39")
    A(f"v_lshl_add_u32 v{CQ}, v44, 6, v43")
    A("v_xor_b32 v45, 1, v44")
    A(f"v_lshl_add_u32 v{CQ+1}, v45, 6, v43")
    A("s_lshr_b32 s34, s28, 1")
    A("v_xor_b32 v45, s34, v44")
    A(f"v_lshl_add_u32 v{CC}, v45, 6, v43")
    A("s_and_b32 s35, s28, 1")
    A("s_lshl_b32 s34, s35, 3")
    A(f"v_add_u32 v{CC}, s34, v{CC}")
    A("v_mul_u32_u24 v43, 96, v42")
    A(f"v_lshl_add_u32 v{CG}, v40, 3, v43")
    A("s_lshl_b32 s34, s28, 5")
    A("s_cmp_eq_u32 s28, 3")
    A("s_cselect_b32 s34, 6144, s34")
    A(f"v_add_u32 v{CC+1}, s34, v{CG}")
    A("s_lshl_b32 s34, s35, 5")
    A(f"s_add_u32 s34, s34, {6144+32}")
    A(f"v_add_u32 v{CC+2}, s34, v{CG}")
    A("v_bfe_u32 v44, v41, 1, 3")
    A("v_xor_b32 v44, v44, v38")
    A("v_xor_b32 v45, 4, v44")
    A("v_lshlrev_b32 v43, 7, v41")
    A("v_add_u32 v43, s57, v43")
    A(f"v_lshl_add_u32 v{XR}, v44, 4, v43")
    A(f"v_lshl_add_u32 v{XR+1}, v45, 4, v43")
    A("v_mul_u32_u24 v43, 384, v41")
    A(f"v_add_u32 v43, {KREG}, v43")
    A(f"v_lshl_add_u32 v{VK}, v44, 4, v43")
    A(f"v_lshl_add_u32 v{VK+1}, v45, 4, v43")
    A("v_lshrrev_b32 v42, 2, v0")
    A("v_mul_u32_u24 v43, 384, v42")
    A(f"v_add_u32 v43, {VREG}, v43")
    A("v_and_b32 v44, 1, v40")
    A("v_lshl_add_u32 v43, v44, 3, v43")
    A("v_and_b32 v44, 6, v42")
    A("v_lshrrev_b32 v45, 1, v40")
    A("v_xor_b32 v44, v44, v45")
    for j in range(4):
        A(f"v_xor_b32 v45, {2*j}, v44")
        A(f"v_lshl_add_u32 v{VV+j}, v45, 4, v43")
    PD = 30
    A("s_mul_i32 s34, s28, 320")
    for n in range(5):
        A(f"v_add_u32 v43, {64*n}, v0")
        A("v_mul_u32_u24 v44, 3277, v43")
        A("v_lshrrev_b32 v44, 16, v44")
        A("v_mul_u32_u24 v45, 20, v44")
        A("v_sub_u32 v45, v43, v45")
        A("v_mul_u32_u24 v44, 1280, v44")
        A("v_lshl_add_u32 v44, v45, 4, v44")
        A(f"v_add_u32 v{PD+n}, s34, v44")
    PR, PS = 35, 39
    A("v_mul_u32_u24 v43, 320, v42")
    A("v_lshl_add_u32 v43, v40, 3, v43")
    A("s_mul_i32 s58, s28, 10240")
    A("s_cmp_eq_u32 s28, 3")
    A("s_cselect_b32 s58, 135168, s58")
    A(f"v_add_u32 v{PR}, s58, v43")
    A("v_lshlrev_b32 v36, 4, v38")
    A(f"v_add_u32 v36, {CREG}, v36")
    A("s_lshl_b32 s34, s28, 6")
    A("v_add_u32 v56, s34, v36")
    A("s_and_b32 s34, s34, 64")
    A("v_add_u32 v57, s34, v36")
    A("v_mov_b32 v43, 0x3f803f80")
    if cfg.get("spo", 1):
        A("v_cmp_eq_u32 vcc, 0, v40")
        A(f"v_mov_b32 v45, {FREG + 64}")
        A("s_nop 0")
        A("v_cndmask_b32 v44, 0, v43, vcc")
        A("v_cmp_eq_u32 vcc, 0, v41")
        for i in range(4):
            A(f"v_accvgpr_write_b32 a{ONE+i}, v44")
        A("v_cndmask_b32 v44, 0, v43, vcc")
        A("v_cndmask_b32 v56, v45, v56, vcc")
        A("v_cndmask_b32 v57, v45, v57, vcc")
        for i in range(4):
            A(f"v_accvgpr_write_b32 a{ONC+i}, v44")
    else:
        for i in range(4):
            A(f"v_accvgpr_write_b32 a{ONE+i}, v43")
            A(f"v_accvgpr_write_b32 a{ONC+i}, v43")
    su = [l.strip().replace("s34", "s66").replace("s35", "s67") for l in A.L]
    A = A0
    per = (len(su) + 16) // 17
    prev = None
    for e in sum((x_dma(n) for n in range(8)), []) + xadv + w_dma():
        if e[0] == "d" and "m0" in prev:
            A("s_nop 0")
        for s_ in e[1:]:
            A(s_)
        prev = e[-1]
        if e[0] == "d":
            k = 0
            while su and (k < per or su[0].startswith(("s_cselect", "s_addc", "global_store", "s_mov_b64 exec"))):
                A(su.pop(0))
                k += 1
    assert not su
    ST(3)
    w1in = cfg.get("w1in", 0)
    mpf = cfg.get("mpf", 0)

    def mall_pf():
        A("s_load_dwordx2 s[66:67], s[0:1], 24")
        A("s_load_dwordx4 s[24:27], s[0:1], 48")
        A("s_lshl_b32 s68, s2, 2")
        A("s_add_u32 s68, s68, s28")
        A("s_lshl_b32 s68, s68, 6")
        A("v_add_u32 v47, s68, v0")
        A("v_lshlrev_b32 v46, 7, v47")
        A(f"v_add_u32 v46, {mpf*64*12288}, v46")
        A(f"v_min_u32 v46, {640*12288-128}, v46")
        A("v_and_b32 v45, 0x3fff, v47")
        A("v_lshlrev_b32 v45, 7, v45")
        A(f"v_add_u32 v45, {mpf*64*3072}, v45")
        A(f"v_min_u32 v45, {640*3072-128}, v45")
        A("s_waitcnt lgkmcnt(0)")
        A("global_load_dword v60, v46, s[66:67]")
        A("s_cmp_lt_u32 s2, 64")
        A("s_cselect_b32 s24, s24, s26")
        A("s_cselect_b32 s25, s25, s27")
        A("s_cmp_lt_u32 s2, 128")
        A("s_cselect_b32 s24, s24, s60")
        A("s_cselect_b32 s25, s25, s61")
        A("v_subrev_u32 v46, 0x8000, v47")
        A("v_lshlrev_b32 v46, 7, v46")
        A(f"v_min_u32 v46, {2621440-128}, v46")
        A("s_cselect_b64 vcc, -1, 0")
        A("v_cndmask_b32 v45, v46, v45, vcc")
        A("global_load_dword v61, v45, s[24:25]")
    if mpf and cfg.get("mpfe", 0):
        mall_pf()
    if not w1in:
        emit_plain(A, w_dma())
    if mpf and not cfg.get("mpfe", 0):
        mall_pf()
    ST(3)
    A(f"s_waitcnt vmcnt({(9 if w1in else 18) + (2 if mpf else 0)})")
    ST(3)
    for k2 in range(2):
        for qt in range(4):
            A(x_read(0, k2, qt))
    A(f"s_waitcnt vmcnt({(0 if w1in else 9) + (2 if mpf else 0)}) lgkmcnt(0)")
    ST(3)
    A("s_barrier")
    ST()
    ST(3)
    ST(4)
    for s in w_reads(0) + w_reads(1):
        A(s)

    PA, PB = 14, 40
    G0, TT = 48, 52

    def stats_ops():
        B = Asm()
        for qt in range(4):
            B(f"v_accvgpr_read_b32 v{G0+qt}, a{GRM+4*qt}")
        B("v_and_b32 v58, 3, v0")
        for r in range(1, 4):
            B(f"v_cmp_eq_u32 vcc, {r}, v58")
            for qt in range(4):
                B(f"v_accvgpr_read_b32 v{TT+qt}, a{GRM+4*qt+r}")
            for qt in range(4):
                B(f"v_cndmask_b32 v{G0+qt}, v{G0+qt}, v{TT+qt}, vcc")
        B("v_bfe_u32 v58, v0, 2, 2")
        B("v_lshrrev_b32 v59, 4, v0")
        B("v_cmp_eq_u32 vcc, v58, v59")
        B(f"s_mov_b32 s34, {hex(f2u(1.0/640))}")
        B("s_nop 0")
        if not cfg.get("g44", 0):
            for qt in range(4):
                B(f"v_cndmask_b32 v{G0+qt}, 0, v{G0+qt}, vcc")
        xlane_reduce(B, "v_add_f32", [G0+q for q in range(4)], TT)
        for qt in range(4):
            B(f"v_accvgpr_read_b32 v{TT+qt}, a{SUM+4*qt}")
        for qt in range(4):
            B(f"v_mul_f32 v{TT+qt}, s34, v{TT+qt}")
            B(f"v_mul_f32 v{G0+qt}, s34, v{G0+qt}")
        for qt in range(4):
            B(f"v_fma_f32 v{G0+qt}, -v{TT+qt}, v{TT+qt}, v{G0+qt}")
        for qt in range(4):
            B(f"v_max_f32 v{G0+qt}, 0, v{G0+qt}")
        for qt in range(4):
            B(f"v_cvt_pk_bf16_f32 v{G0+qt}, v{TT+qt}, v{G0+qt}")
        for qt in range(4):
            B(f"v_lshlrev_b32 v{TT+qt}, 16, v{G0+qt}")
            B(f"v_and_b32 v{G0+qt}, 0xffff0000, v{G0+qt}")
        for qt in range(4):
            B(f"v_sub_f32 v{PA+2*qt}, 0, v{TT+qt}")
            B(f"v_add_f32 v{G0+qt}, {hex(f2u(1e-5))}, v{G0+qt}")
        for qt in range(4):
            B(f"v_cvt_pk_bf16_f32 v{G0+qt}, v{G0+qt}, v{G0+qt}")
        for qt in range(4):
            B(f"v_lshlrev_b32 v{G0+qt}, 16, v{G0+qt}")
        for qt in range(4):
            B(f"v_sqrt_f32 v{G0+qt}, v{G0+qt}")
        for qt in range(4):
            B(f"v_cvt_pk_bf16_f32 v{G0+qt}, v{G0+qt}, v{G0+qt}")
        for qt in range(4):
            B(f"v_lshlrev_b32 v{G0+qt}, 16, v{G0+qt}")
        for qt in range(4):
            B(f"v_rcp_f32 v{TT+qt}, v{G0+qt}")
        for qt in range(4):
            B(f"v_mul_f32 v{PB+2*qt+1}, v{G0+qt}, v{G0+qt}")
        for qt in range(4):
            B(f"v_mul_f32 v{PA+2*qt+1}, {hex(f2u(LOG2E * 192 ** -0.5))}, v{TT+qt}")
            B(f"v_mul_f32 v{PB+2*qt}, {hex(f2u(-LOG2E))}, v{TT+qt}")
        return [l.strip() for l in B.L]

    def superstep(st, mode, side=None):
        z0 = mode == "first"
        M = []
        blk = []
        xf = lambda k2, qt: ar(XF+st*32+(k2*4+qt)*4, 4)
        stat_blocks = [0, 1, 3, 4, 6, 7, 9, 10] if mode != "last" else [0, 0, 1, 1, 3, 3, 4, 4]
        for t in range(18):
            blk.append(len(M))
            gsn = cfg.get("gsn", 2)
            for qi in range(4):
                qt = qi if (gsn < 2 or t % 2 == 0) else 3 - qi
                acc = vr(qacc(t, qt), 4) if t < 12 else ar(GA + ((t-12)*4+qt)*4, 4)
                for ki in range(2):
                    k2 = ki if (gsn == 0 or qi % 2 == 0) else 1 - ki
                    M.append((mfma(acc, ar(WF+(t % 3)*8+k2*4, 4), xf(k2, qt), "0" if z0 and ki == 0 else acc), [f"w{t}"]))
            if t % 3 == 2 and t < 15:
                p = t // 3
                for k2 in range(2):
                    M.append((mfma(ar(CAC+4*p, 4), ar(CF+k2*4, 4), ar(ONC, 4), "0" if z0 and k2 == 0 else ar(CAC+4*p, 4)), [f"c{p}"]))
            for i, sb_ in enumerate(stat_blocks):
                if sb_ == t:
                    k2, qt = i >> 2, i & 3
                    sm_ = mfma(ar(SUM+4*qt, 4), ar(ONE, 4), xf(k2, qt), "0" if z0 and k2 == 0 else ar(SUM+4*qt, 4))
                    if cfg.get("g44", 0):
                        xb = XF+st*32+(k2*4+qt)*4
                        gm = ar(GRM+4*qt, 4)
                        lo = f"v_mfma_f32_4x4x4_16b_bf16 {gm}, {ar(xb, 2)}, {ar(xb, 2)}, {'0' if z0 and k2 == 0 else gm}"
                        hi = f"v_mfma_f32_4x4x4_16b_bf16 {gm}, {ar(xb+2, 2)}, {ar(xb+2, 2)}, {gm}"
                        M[-2] = (lo + "\n    " + M[-2][0], M[-2][1])
                        M.append((hi + "\n    " + sm_, []))
                    else:
                        M.append((sm_, []))
                        M.append((mfma(ar(GRM+4*qt, 4), xf(k2, qt), xf(k2, qt), "0" if z0 and k2 == 0 else ar(GRM+4*qt, 4)), []))
        NG = len(M)
        blk.append(NG)
        front = [None]*NG
        back = [[] for _ in range(NG)]
        resv = set(b - 1 for b in blk[1:])

        def room(g):
            return 2 - (front[g] is not None) - len(back[g]) - (g in resv)

        def put_front(g, e):
            while front[g] is not None or room(g) < 1:
                g += 1
            front[g] = e
            return g

        def put_back(g, ss):
            while g < NG - 1 and room(g) < len(ss):
                g += 1
            back[g] += ss
            return g
        for t in range(18):
            if mode == "last" and t >= 16:
                continue
            for k, s_ in enumerate(w_reads((t+2) % 18)):
                front[blk[t]+k] = ("l", s_, f"w{(t+2) % 18}" + ("n" if t >= 16 else ""), None)
        for p in range(5):
            for k, s_ in enumerate(c_reads(p)):
                front[blk[3*p]+4+k] = ("l", s_, f"c{p}", None)
        if mode != "last":
            for qt in range(4):
                g = blk[(5+2*qt) if not z0 else (9+qt)] + 4
                for k2 in range(2):
                    g = put_front(g, ("l", x_read(st ^ 1, k2, qt), f"x{qt}", ("vm", f"X{qt}")))
        dl = {"loop": w_dma(), "first": w_dma(), "pre": kv_dma("K", 0) + kv_dma("K", 1) + kv_dma("K", 2),
              "last": kv_dma("V", 0) + kv_dma("K", 3) + kv_dma("V", 1)}[mode]
        g = 0
        last_d = -10
        nd = 0
        if z0:
            pre = [(e, f"X{n>>1}") for n in range(8) for e in x_dma(n)] + [(e, None) for e in xadv]
            if w1in:
                pre = [(e, "W8") for e in w_dma()] + pre
            for e, tg in pre:
                if e[0] == "d":
                    g = put_front(max(g + 1, last_d + (3 if w1in else 4)), ("d", e[1], tg, None))
                    last_d = g
                else:
                    g = put_back(g, list(e[1:]))
        for e in dl:
            if e[0] == "d":
                g = put_front(max(g + 1, last_d + (7 if not z0 else 3)), ("d", e[1], f"W{nd}", None))
                last_d = g
                nd += 1
            else:
                g = put_back(g, list(e[1:]))
        if mode in ("loop", "first"):
            assert g < blk[10] or z0, (g, blk)
            for n in range(8):
                g = max(g, blk[(8 + 2*(n >> 1)) if not z0 else (12 + (n >> 1))])
                for e in x_dma(n):
                    if e[0] == "d":
                        g = put_front(max(g + 1, last_d + (5 if not z0 else 3)), ("d", e[1], f"X{n>>1}", ("lg", f"x{n>>1}")))
                        last_d = g
                    else:
                        g = put_back(g, list(e[1:]))
            for e in xadv:
                g = put_back(g, list(e[1:]))
        gb = blk[16] - 1
        rest = []
        if mode != "last":
            g = put_back(blk[1], [f"s_add_u32 s33, s33, {SLOT}"])
            g = put_back(g + 1, [f"s_cmp_eq_u32 s33, {3*SLOT}", "s_cselect_b32 s59, s56, s55"])
            g = put_back(g + 1, [f"s_cmp_eq_u32 s33, {3*SLOT}", "s_cselect_b32 s33, 0, s33"])
            assert g < blk[7]
            for r_, after in ((CC, 7), (CQ, 10), (CQ+1, 10), (CC+1, 10), (CC+2, 13), (CG, 16)):
                g_ = put_back(blk[after], [f"v_add_u32 v{r_}, s59, v{r_}"])
                assert r_ != CQ or g_ < gb
        if side:
            g = blk[2]
            for blk_ in side:
                while room(g) < 1:
                    g += 1
                back[g] += blk_
                g += 1
        if mode != "last":
            pass
        else:
            for p in range(5):
                front[blk[16]+p] = ("l", f"ds_write_b128 v{56 if p < 4 else 57}, {ar(CAC+4*p, 4)} offset:{256*p}", "cw", None)
            g = blk[6]
            ops = stats_ops()
            while ops and g < NG:
                cost = 2 if ops[0].startswith(("v_sqrt", "v_rcp")) else 1
                if room(g) >= cost and not any(b_.startswith(("v_sqrt", "v_rcp")) for b_ in back[g]):
                    back[g].append(ops.pop(0))
                else:
                    g += 1
            rest = ops
        LG = Track("lgkm", ["w0"]*4 + ["w1"]*4)
        VM = Track("vm", [f"W{i}" for i in range(9)] + [f"X{i>>1}" for i in range(8)] if not z0 else ([] if w1in else ["W8"]*9))
        for g in range(NG):
            txt, needs = M[g]
            if needs:
                n_ = LG.need(needs)
                if n_ is not None:
                    A(f"s_waitcnt lgkmcnt({n_})")
            if not (cfg.get("nostat") and not needs and mode != "first") and not (cfg.get("noc") and needs and needs[0][0] == "c" and mode != "first"):
                A(txt)
            if front[g] is not None and cfg.get("noc") and front[g][2][0] == "c" and front[g][2] != "cw" and mode != "first":
                LG.issue(front[g][2])
                A("ds_read_b32 v63, v36")
            elif front[g] is not None:
                kind, s_, tag, nd_ = front[g]
                if nd_:
                    n_ = (VM if nd_[0] == "vm" else LG).need([nd_[1]])
                    if n_ is not None:
                        A(f"s_waitcnt {'vmcnt' if nd_[0] == 'vm' else 'lgkmcnt'}({n_})")
                A(s_)
                (LG if kind == "l" else VM).issue(tag)
            for s_ in back[g]:
                A(s_)
            if g == gb and mode != "last":
                assert VM.done > 8
                A("s_waitcnt lgkmcnt(0)")
                LG.drain()
                A("s_barrier")
        if mode in ("loop", "first"):
            assert [t for t in VM.q[17:]] == [f"W{i}" for i in range(9)] + [f"X{i>>1}" for i in range(8)], VM.q
        for s_ in rest:
            A(s_)

    A("s_mov_b32 s54, 4")
    A("s_mov_b32 s33, 0")
    A(f"s_mov_b32 s55, {SLOT}")
    A(f"s_mov_b32 s56, {-2*SLOT & 0xffffffff}")
    superstep(0, "first")
    if cfg.get("stamp") == 4:
        for k in range(1, 8):
            ST(4)
            superstep(k & 1, "loop")
        ST(4)
        A("s_branch K1_GEMM_END")
    A("s_branch K1_GEMM1")
    A.raw(".p2align 5")
    A.label("K1_GEMM")
    superstep(0, "loop")
    A.label("K1_GEMM1")
    superstep(1, "loop")
    A("s_sub_u32 s54, s54, 1")
    A("s_cmp_lg_u32 s54, 0")
    A("s_cbranch_scc1 K1_GEMM")
    A.label("K1_GEMM_END")
    ST(3)
    B = Asm()
    B("s_lshl_b32 s66, s32, 2")
    B("s_add_u32 s66, s66, s28")
    B(f"s_mul_i32 s67, s66, {4*RT_STRIDE}")
    srd(B, 24, 52, off_sgpr=67, off_imm=OF_OFF, size=4*RT_STRIDE)
    B("s_bfe_u32 s66, s2, 0x20003")
    B("s_mul_i32 s66, s66, 10240")
    B(f"s_sub_u32 s67, {240*40960}, s66")
    srd(B, 8, 52, off_sgpr=66, off_imm=WP_OFF, size_sgpr=67)
    B("s_and_b32 s66, s2, 1")
    B("s_lshl_b32 s66, s66, 5")
    B("s_lshr_b32 s67, s2, 3")
    B("s_add_u32 s66, s66, s67")
    B("s_mul_i32 s67, s66, 245760")
    srd(B, 4, 52, off_sgpr=67, off_imm=XCH_OFF, size=245760)
    B("s_lshr_b32 s66, s66, 2")
    B(f"s_mul_i32 s66, s66, {8*RT_STRIDE}")
    srd(B, 12, 52, off_sgpr=66, off_imm=OF_OFF, size=8*RT_STRIDE)
    B("s_mul_i32 s35, s31, 3")
    B("s_add_u32 s36, s35, 1")
    B("s_lshr_b32 s36, s36, 1")
    B("s_add_u32 s36, s36, 192")
    B("s_lshl_b32 s37, s36, 10")
    B("s_lshr_b32 s35, s35, 1")
    B("s_add_u32 s35, s35, 193")
    B("s_and_b32 s36, s31, 1")
    B("s_sub_u32 s35, s35, s36")
    B("s_lshl_b32 s35, s35, 10")
    B("s_lshl_b32 s36, s36, 9")
    B("s_add_u32 s38, s35, s36")
    B(f"s_mov_b32 s39, {16*1280}")
    B(f"v_lshlrev_b32 v{PS}, 4, v0")
    B("v_lshlrev_b32 v37, 3, v0")
    side = []
    for l in B.L:
        l = l.strip()
        if l.startswith("s_addc"):
            side[-1].append(l)
        else:
            side.append([l])
    superstep(0, "pre", side=side)
    ST(3)
    ST(4)
    superstep(1, "last")
    ST()
    ST(4)
    A("s_waitcnt vmcnt(9) lgkmcnt(0)")
    A("s_barrier")
    ST(3)
    CT = 48
    for i in range(4):
        A(f"ds_read_b128 v[{CT+4*i}:{CT+4*i+3}], v36 offset:{64*(11-(i^1))}")
    npk = 0 if not cfg.get('pkl', 1) else 10
    for u in range(5, -1, -1):
        cb_ = CT + 8*((5-u) & 1)
        A("s_waitcnt lgkmcnt(2)" if u > 0 else "s_waitcnt lgkmcnt(0)")
        for qt in range(3, -1, -1):
            B = QA + (u*4+qt)*8
            pa = vr(PA+2*qt, 2)
            if npk < 10:
                A(f"s_add_u32 m0, s58, {1024*npk}")
            for p in range(4):
                A(f"v_pk_fma_f32 {vr(B+2*p, 2)}, {pa}, {vr(cb_+2*p, 2)}, {vr(B+2*p, 2)} op_sel_hi:[0,1,1]")
            for p in range(4):
                A(f"v_pk_mul_f32 {vr(B+2*p, 2)}, {pa}, {vr(B+2*p, 2)} op_sel:[1,0]")
            for p in range(3, -1, -1):
                A(f"v_cvt_pk_bf16_f32 v{QF+(u*4+qt)*4+p}, v{B+2*p}, v{B+2*p+1}")
            if npk < 10:
                A(f"buffer_load_dwordx4 v{PD+npk%5}, s[40:43], {'0' if npk < 5 else 's39'} offen nt lds")
                npk += 1
        if u >= 2:
            for i in range(2):
                A(f"ds_read_b128 v[{cb_+4*i}:{cb_+4*i+3}], v36 offset:{64*(2*(u-2)+i)}")
    ST(3)
    HC = 64
    SO = 37
    for t in range(6):
        A(f"ds_read_b128 v[{HC+4*t}:{HC+4*t+3}], v36 offset:{64*(12+t)}")
    for u in range(6):
        A(k_read(0, 0, u))
    A("s_waitcnt lgkmcnt(6)")
    for u in range(6):
        A(k_read(0, 1, u))
    cnt = 0
    for qt in range(4):
        HP = 148 + 6*(qt & 1)
        for t in range(3):
            G = 96 + (cnt % 4)*12
            U, T0 = G + 4, G + 8
            cnt += 1
            pa, pb = vr(PA+2*qt, 2), vr(PB+2*qt, 2)
            for r in range(4):
                A(f"v_accvgpr_read_b32 v{G+r}, a{GA+(t*4+qt)*4+r}")
            for r in range(4):
                A(f"v_accvgpr_read_b32 v{U+r}, a{GA+((t+3)*4+qt)*4+r}")
            for p in range(2):
                A(f"v_pk_fma_f32 {vr(G+2*p, 2)}, {pa}, {vr(HC+4*t+2*p, 2)}, {vr(G+2*p, 2)} op_sel_hi:[0,1,1]")
            for p in range(2):
                A(f"v_pk_fma_f32 {vr(U+2*p, 2)}, {pa}, {vr(HC+4*(t+3)+2*p, 2)}, {vr(U+2*p, 2)} op_sel_hi:[0,1,1]")
            for p in range(2):
                A(f"v_pk_mul_f32 {vr(T0+2*p, 2)}, {pb}, {vr(G+2*p, 2)} op_sel_hi:[0,1]")
            for r in range(4):
                A(f"v_exp_f32 v{T0+r}, v{T0+r}")
            for p in range(2):
                A(f"v_pk_mul_f32 {vr(G+2*p, 2)}, {vr(G+2*p, 2)}, {vr(U+2*p, 2)}")
            for p in range(2):
                A(f"v_pk_fma_f32 {vr(T0+2*p, 2)}, {vr(T0+2*p, 2)}, {pb}, {pb} op_sel:[0,1,1]")
            for r in range(4):
                A(f"v_rcp_f32 v{T0+r}, v{T0+r}")
            A("s_nop 0")
            for p in range(2):
                A(f"v_pk_mul_f32 {vr(G+2*p, 2)}, {vr(G+2*p, 2)}, {vr(T0+2*p, 2)}")
            for p in range(2):
                A(f"v_cvt_pk_bf16_f32 v{HP+2*t+p}, v{G+2*p}, v{G+2*p+1}")
            if cfg.get("sit", 0) and t != 1:
                k_ = 2*qt + (t >> 1)
                if k_ == 0:
                    for i in range(4):
                        A(f"v_mov_b32 v{60+i}, -1")
                    A("s_mov_b32 s57, 4096")
                A(f"buffer_store_dwordx4 v[60:63], v{PS}, s[44:47], {'0' if k_ < 4 else 's57'} offen offset:{1024*(k_ % 4)} sc1")
            if t == 1:
                A(f"buffer_store_dwordx4 {vr(HP, 4)}, v{PS}, s[24:27], s37 offen sc1")
                A(f"s_add_u32 s37, s37, {RT_STRIDE}")
            if t == 2:
                A(f"buffer_store_dwordx2 {vr(HP+4, 2)}, v{SO}, s[24:27], s38 offen sc1")
                A(f"s_add_u32 s38, s38, {RT_STRIDE}")
    ST()
    B = Asm()
    B("s_mov_b32 s55, 0")
    B(f"s_mov_b32 s30, {3*12288}")
    B("s_cmp_eq_u32 s28, 0")
    B(f"s_cselect_b32 s59, {4 if cfg.get('pkl', 1) else 5}, 1")
    B("s_mov_b32 s56, 0")
    B("s_mov_b32 s57, 0")
    B(f"s_mul_i32 s33, s28, {2*RT_STRIDE}")
    B(f"v_add_u32 v{PV}, s33, v{PS}")
    B(f"v_add_u32 v{PV+1}, {RT_STRIDE-2048}, v{PV}")
    B("s_lshr_b32 s33, s28, 1")
    B("s_mul_i32 s33, s33, 40960")
    B("s_and_b32 s35, s28, 1")
    B("s_mul_i32 s35, s35, 5120")
    B("s_add_u32 s33, s33, s35")
    B(f"v_add_u32 v{PV+2}, s33, v{PS}")
    B(f"v_add_u32 v{PV+3}, 4096, v{PV+2}")
    for i in range(4):
        B(f"v_mov_b32 v{18+i}, -1")
    B("v_and_b32 v25, 7, v0")
    B("v_lshlrev_b32 v25, 3, v25")
    B("v_mov_b32 v23, 0")
    B("s_mov_b64 exec, 3")
    B("global_store_dword v1, v23, s[52:53] sc1")
    B("s_mov_b64 exec, -1")
    for i in range(8):
        B(f"v_mov_b32 v{LS+i}, 0")
    f0 = [l.strip() for l in B.L]
    B = Asm()
    MX = [22, 24, 36, 38]
    for qt in range(4):
        b = sreg(0, qt, 0)
        B(f"v_max3_f32 v{MX[qt]}, v{b}, v{b+1}, v{b+2}")
        B(f"v_max_f32 v{MX[qt]}, v{MX[qt]}, v{b+3}")
    xlane_reduce(B, "v_max_f32", MX, 14)
    for qt in range(4):
        for r in range(4):
            B(f"v_sub_f32 v{NM+qt*4+r}, 0, v{MX[qt]}")
    for kt in range(2):
        for qt in range(4):
            for e in range(4):
                B(f"v_sub_f32 v{sreg(0, qt, kt)+e}, v{sreg(0, qt, kt)+e}, v{MX[qt]}")
    f1 = [l.strip() for l in B.L]
    A("s_waitcnt lgkmcnt(0)")
    A("s_nop 1")
    for g, m_ in enumerate(qk_mfmas(0, zero=True)):
        A(m_)
        src = f0 if g < 24 else f1
        if g == 24:
            assert not f0
            A(f"s_waitcnt vmcnt({(27 if cfg.get('sit', 0) else 19) - (10 if cfg.get('pkl', 1) else 0)})")
            A("s_barrier")
        elif 24 < g < 30:
            A(k_read(1, 1, g - 25))
            if g == 29:
                A(k_read(1, 1, 5))
        else:
            for _ in range(2):
                if src:
                    if src[0] == "s_mov_b64 exec, 3":
                        A(src.pop(0))
                        A(src.pop(0))
                    A(src.pop(0))
    for u in range(6):
        A(k_read(1, 0, u))
    assert len(f1) >= 24
    for l in f1:
        A(l)
    A.label("K1_SKIPMAX")
    ST(3)
    E, S = softmax_ops(0, (0,))
    for e in E:
        A(e)
    A("s_nop 0")
    for _, s in S:
        A(s)
    gaps = [[[], [], []] for _ in range(48)]
    if not cfg.get("b2", 0):
        gaps[1][2].append(f"s_add_u32 m0, s29, {KREG}")
        for n in range(3):
            gaps[3+6*n][0].append(f"buffer_load_dwordx4 v{DK+n}, s[16:19], s30 offen offset:{1024*n} lds")
    else:
        gaps[20][2].append("s_barrier")
    gaps[15][2].append("s_sub_u32 s30, s30, 12288")
    if cfg.get("de", 2) == 2:
        for g, s_ in zip((20, 21, 27, 33, 33), early_fill(0)):
            gaps[g][0 if s_.startswith("buffer") else 2].append(s_)
    E, S = softmax_ops(0, (1, 2, 3))
    fill_valu(gaps, 0, 48, E, S)
    A("s_waitcnt lgkmcnt(0)")
    for g, m_ in enumerate(qk_mfmas(1)):
        A(m_)
        for s in gaps[g][0] + gaps[g][1] + gaps[g][2]:
            A(s)
    for u in range(6):
        A(k_read(2, 0, u))
    E, S = softmax_ops(1, (0, 1))
    for e in E:
        A(e)
    A("s_nop 0")
    for _, s in S:
        A(s)
    ST()
    A("s_mov_b32 s54, 15")
    A("s_waitcnt lgkmcnt(0)")
    ST(5)
    gen_stage(A, 0, first=True)
    ST(5)
    gen_stage(A, 1, first=True)
    ST(5)
    A("s_branch K1_LOOP2")
    A.raw(".p2align 6")
    A.label("K1_LOOP")
    gen_stage(A, 0, extra=[(90, "s_sub_u32 s54, s54, 1")])
    gen_stage(A, 1, extra=[(94, "s_cmp_eq_u32 s54, 0")])
    A("s_cbranch_scc1 K1_TAIL")
    A.label("K1_LOOP2")
    gen_stage(A, 2)
    gen_stage(A, 3, extra=[(94, "s_cmp_lg_u32 s54, s59")])
    A("s_cbranch_scc1 K1_LOOP")
    A("s_cmp_eq_u32 s54, 1")
    A("s_cbranch_scc0 K1_REPORT")
    A("global_load_dwordx2 v[22:23], v25, s[64:65] sc1")
    A("s_branch K1_LOOP")
    A.label("K1_REPORT")
    A("s_mov_b32 s59, 1")
    A("s_memrealtime s[34:35]")
    A("s_and_b32 s33, s2, 7")
    A("s_lshl_b32 s33, s33, 3")
    A("v_mov_b32 v15, 0x01000000")
    A("v_mov_b32 v16, s33")
    A("s_waitcnt lgkmcnt(0)")
    A("s_sub_u32 s35, s34, s3")
    A(f"s_mul_i32 s35, s35, {cfg.get('kap', 6)}")
    A("s_lshr_b32 s35, s35, 4")
    A("s_add_u32 s34, s34, s35")
    A("v_mov_b32 v14, s34")
    A("s_mov_b64 exec, 1")
    A("global_atomic_add_x2 v16, v[14:15], s[64:65] sc1")
    A("s_mov_b64 exec, -1")
    A("s_branch K1_LOOP")
    A.label("K1_TAIL")
    ST(5)
    gen_tail(A)
    ST(5)
    ST()
    A("s_andn2_b32 s34, s34, s55" if not cfg.get("abl", 0) else "s_and_b32 s34, 0, s34")
    A("s_cbranch_scc0 K1_EPI")
    A("s_mov_b32 s55, 1")
    A("v_and_b32 v34, 15, v0")
    A("v_mul_u32_u24 v34, 384, v34")
    A("v_lshrrev_b32 v35, 4, v0")
    A("v_lshl_add_u32 v34, v35, 4, v34")
    for qt in range(4):
        A(f"v_mov_b32 v{30+qt}, 0xff800000")
    A("s_mov_b32 s34, 0")
    A.label("K1_MAXLOOP")
    for u in range(6):
        A(f"buffer_load_dwordx4 {ar(KF+u*4, 4)}, v34, s[16:19], s34 offen offset:{64*u}")
    A("s_waitcnt vmcnt(0)")
    for qt in range(4):
        d = vr(sreg(0, qt, 0), 4)
        for u in range(6):
            A(mfma(d, ar(KF+u*4, 4), qf(qt, u), "0" if u == 0 else d))
    A("s_nop 15")
    for qt in range(4):
        b = sreg(0, qt, 0)
        A(f"v_max3_f32 v{30+qt}, v{30+qt}, v{b}, v{b+1}")
        A(f"v_max3_f32 v{30+qt}, v{30+qt}, v{b+2}, v{b+3}")
    A("s_add_u32 s34, s34, 6144")
    A("s_cmp_lt_u32 s34, 786432")
    A("s_cbranch_scc1 K1_MAXLOOP")
    xlane_reduce(A, "v_max_f32", [30, 31, 32, 33], 34)
    for qt in range(4):
        for r in range(4):
            A(f"v_sub_f32 v{NM+qt*4+r}, 0, v{30+qt}")
    srd(A, 40, 52, size=0)
    A("s_mov_b32 s39, 0")
    A("s_mov_b32 s46, 0")
    A("s_mov_b32 s50, 0")
    A("v_mov_b32 v35, 0")
    A("s_barrier")
    for kind, i in [("K", 0), ("K", 1), ("V", 0), ("K", 2), ("V", 1), ("K", 3)]:
        emit_plain(A, kv_dma(kind, i))
    A(f"s_mov_b32 s30, {3*12288}")
    for i in range(8):
        A(f"v_mov_b32 v{LS+i}, 0")
    A("s_waitcnt vmcnt(0)")
    A("s_barrier")
    for kt in range(2):
        for u in range(6):
            A(k_read(0, kt, u))
    A("s_waitcnt lgkmcnt(0)")
    for m_ in qk_mfmas(0):
        A(m_)
    A("s_barrier")
    for kt in range(2):
        for u in range(6):
            A(k_read(1, kt, u))
    A("s_nop 7")
    A("s_branch K1_SKIPMAX")
    A.label("K1_EPI")
    gen_proj(A, cfg, ST)
    ST.dump(28)
    A.label("K1_END")
    A("s_endpgm")
    kernel_desc(A, name, 512, 102 if ST.on else 72, 256)


PSLOT = 36864


def p_fill_b(ffn=True):
    L = [("s", "s_lshl_b32 s37, s36, 10"), ("s", "s_add_u32 m0, s39, s41")]
    for i in range(4):
        L.append(("d", f"buffer_load_dwordx4 v{PV+(i>>1)}, s[12:15], s37 offen offset:{1024*i} sc1 lds"))
    return L


def p_fill_a():
    L = [("s", "s_mul_i32 s38, s36, 40960"), ("s", "s_add_u32 m0, s39, s42")]
    for i in range(4):
        L.append(("d", f"buffer_load_dwordx4 v{PV+2}, s[8:11], s38 offen offset:{1024*i} sc1 lds"))
    L.append(("s", "s_add_u32 m0, m0, 4096"))
    L.append(("d", f"buffer_load_dwordx4 v{PV+3}, s[8:11], s38 offen sc1 lds"))
    return L


def p_at(m):
    L = [("s", f"s_add_u32 s36, s40, {2*m}" if m < 6 else f"s_add_u32 s36, s43, {2*(m-6)}")]
    if CFG.get("pw", 4) and m >= 6:
        L.append(("s", "s_xor_b32 s36, s36, s58"))
    return L + [("s", f"s_mov_b32 s39, {(m % 4)*PSLOT}")]


def tagd(L, tag):
    return [e if e[0] != "d" else (e[0], e[1], tag) for e in L]


NTAILF = 3
SEL = 104
PV = 26


def gen_proj(A, cfg, ST):
    FA, SA, OS, TM = 32, 112, 160, 192
    RB = 4
    L16, L8 = 16, 17
    VM = Track("vm", ["G0"]*9 + ["G1"]*9 + ["G2"]*9)

    def send(P, t, kind, tag):
        L = [("s", f"s_add_u32 s34, s{44+t}, {kind*7680 + (t-1)*2560}")]
        L.append(("d", f"buffer_store_dwordx4 {vr(P, 4)}, v{L16}, s[4:7], s34 offen sc1", tag))
        L.append(("d", f"buffer_store_dwordx4 {vr(P+4, 4)}, v{L16}, s[4:7], s34 offen offset:1024 sc1", tag))
        L.append(("d", f"buffer_store_dwordx2 {vr(P+8, 2)}, v{L8}, s[4:7], s34 offen offset:2048 sc1", tag))
        return L

    RC = 30
    A("s_mul_i32 s33, s31, 6144")
    for qt in range(4):
        A(f"s_add_u32 s{16+2*qt}, s33, {qt*RT_STRIDE}")
        A(f"s_add_u32 s{17+2*qt}, s33, {qt*RT_STRIDE+4096}")
    def o_store(qt, u):
        so, im = (16+2*qt, 1024*u) if u < 4 else (17+2*qt, 1024*(u-4))
        A(f"buffer_store_dwordx4 {vr(OS+(qt*6+u)*4, 4)}, v{L16}, s[24:27], s{so} offen offset:{im} sc1")
        VM.issue("O")
    g3e = cfg.get("g3e", 0)
    g2 = tagd(p_at(3) + p_fill_b() + p_fill_a(), "G3") if g3e else []
    stores = []
    units = [(u, pr, h) for u in range(6) for pr in range(2) for h in range(2)]

    def finish(k):
        u, pr, h = units[k]
        D = 112 + (k % 2)*8
        for i in range(2):
            for p in range(2):
                A(f"v_cvt_pk_bf16_f32 v{OS+((2*pr+i)*6+u)*4+2*h+p}, v{D+4*i+2*p}, v{D+4*i+2*p+1}")
            if h == 1:
                o_store(2*pr+i, u)
    for k, (u, pr, h) in enumerate(units):
        T0, X, D = 48 + (k % 2)*8, 96 + (k % 2)*4, 112 + (k % 2)*8
        if g2:
            while g2[0][0] != "d":
                A(g2.pop(0)[1])
        for e in range(8):
            A(f"v_accvgpr_read_b32 v{T0+e}, a{oacc(2*u+h, 2*pr+(e>>2))+(e&3)}")
        if g2:
            e = g2.pop(0)
            A(e[1])
            VM.issue(e[2])
        for p in range(4):
            A(f"v_pk_mul_f32 {vr(T0+2*p, 2)}, {vr(NM+8*pr+2*p, 2)}, {vr(T0+2*p, 2)}")
        for p in range(4):
            A(f"v_cvt_pk_bf16_f32 v{X+p}, v{T0+2*p}, v{T0+2*p+1}")
        if k:
            finish(k - 1)
        else:
            A("s_nop 1")
        A(mfma(vr(D, 4), vr(X, 4), vr(SEL+2, 4), "0"))
        A(mfma(vr(D+4, 4), vr(X, 4), vr(SEL, 4), "0"))
    A("s_nop 7")
    finish(23)
    assert not g2
    A("s_bfe_u32 s29, s2, 0x20001")
    A("s_and_b32 s30, s2, 1")
    A("s_lshl_b32 s30, s30, 3")
    A("s_lshr_b32 s33, s2, 5")
    A("s_add_u32 s30, s30, s33")
    A("s_lshr_b32 s33, s28, 1")
    A("s_lshl_b32 s33, s33, 2")
    A("s_mul_i32 s35, s28, 15360")
    for t in range(4):
        A(f"s_add_u32 s34, s29, {t}")
        A("s_and_b32 s34, s34, 3")
        A(f"s_mul_i32 s{44+t}, s34, 61440")
        A(f"s_add_u32 s{44+t}, s{44+t}, s35")
        A("s_add_u32 s34, s34, s33")
        A("s_lshl_b32 s34, s34, 11")
        A(f"v_add_u32 v{RB+t}, s34, v{L16}")
        A(f"v_add_u32 v{RB+5+t}, s34, v{L8}")
    A("s_and_b32 s34, s28, 1")
    A("s_mul_i32 s34, s34, 5120")
    A("s_add_u32 s34, s34, 16384")
    A(f"v_add_u32 v{RB+4}, s34, v{L16}")
    A("s_lshl_b32 s34, s30, 3")
    A("s_add_u32 s34, s34, s33")
    A("s_add_u32 s34, s34, s29")
    A("s_lshl_b32 s34, s34, 4")
    A("v_and_b32 v3, 15, v0")
    A("v_add_u32 v3, s34, v3")
    A("v_mul_u32_u24 v3, 1280, v3")
    A("v_lshrrev_b32 v2, 4, v0")
    A("v_lshl_add_u32 v3, v2, 3, v3")
    A("s_bfe_u32 s34, s2, 0x20003")
    A("s_lshl_b32 s34, s34, 1")
    A("s_and_b32 s35, s28, 1")
    A("s_add_u32 s34, s34, s35")
    A("s_mul_i32 s34, s34, 160")
    A("v_add_u32 v3, s34, v3")
    A("s_lshl_b32 s34, s30, 1")
    A("s_lshr_b32 s35, s28, 1")
    A("s_add_u32 s34, s34, s35")
    A("s_lshl_b32 s34, s34, 7")
    A("s_lshl_b32 s35, s29, 5")
    A("s_add_u32 s34, s34, s35")
    A(f"s_add_u32 s34, s34, {FLG_OFF}")
    A("v_and_b32 v2, 7, v0")
    A("v_lshl_add_u32 v2, v2, 2, s34")
    A(f"s_mov_b32 s48, {PSLOT}")
    A(f"s_mov_b32 s49, {-3*PSLOT & 0xffffffff}")
    TH1, TH2 = cfg.get("th1", 180)*32*4, cfg.get("th2", 430)*32*4
    A("s_and_b32 s33, s2, 1")
    for i in range(4):
        A(f"v_readlane_b32 s{16+i}, v22, s33")
        A("s_add_u32 s33, s33, 2")
    for i in (3, 2, 1, 0):
        A(f"s_sub_u32 s{16+i}, s{16+i}, s16")
        A(f"s_lshl_b32 s{16+i}, s{16+i}, 2")
        A(f"s_or_b32 s{16+i}, s{16+i}, {i}")
    for a_, b_ in ((0, 1), (2, 3), (0, 2), (1, 3), (1, 2)):
        A(f"s_min_i32 s33, s{16+a_}, s{16+b_}")
        A(f"s_max_i32 s{16+b_}, s{16+a_}, s{16+b_}")
        A(f"s_mov_b32 s{16+a_}, s33")
    A("s_mov_b32 s54, 7")
    A("s_mov_b32 s56, s29")
    A("s_mov_b32 s57, 0")
    for hi, lo in ((19, 16), (18, 17)):
        A(f"s_sub_i32 s33, s{hi}, s{lo}")
        if cfg.get("fine", 1):
            A("s_mov_b32 s34, 0")
            for r_ in range(1, cfg.get("rmax", 6) + 1):
                A(f"s_cmp_gt_i32 s33, {(cfg.get('t0', 110) + cfg.get('dt', 160)*(r_-1))*32*4}")
                A(f"s_cselect_b32 s34, {r_}, s34")
        else:
            A(f"s_cmp_gt_i32 s33, {TH1}")
            A("s_cselect_b32 s34, 2, 0")
            A(f"s_cmp_gt_i32 s33, {TH2}")
            A("s_cselect_b32 s34, 4, s34")
        if cfg.get("forceD"):
            A(f"s_mov_b32 s34, {cfg['forceD']}")
        if not cfg.get("bal", 1):
            A("s_mov_b32 s34, 0")
        A(f"s_and_b32 s{hi}, s{hi}, 3")
        A(f"s_and_b32 s{lo}, s{lo}, 3")
        A(f"s_cmp_eq_u32 s{hi}, s29")
        A("s_cselect_b32 s33, s34, 0")
        A("s_sub_u32 s54, s54, s33")
        A(f"s_mul_i32 s35, s{hi}, 48")
        A("s_add_u32 s35, s35, 48")
        A("s_lshl_b32 s33, s34, 2")
        A("s_sub_u32 s35, s35, s33")
        A(f"s_cmp_eq_u32 s{lo}, s29")
        A("s_cselect_b32 s33, s34, 0")
        A("s_cselect_b32 s57, s35, s57")
        A("s_add_u32 s54, s54, s33")
        A("s_cmp_lg_u32 s33, 0")
        A(f"s_cselect_b32 s56, s{hi}, s56")
    A("s_sub_u32 s56, s56, s29")
    A("s_lshl_b32 s56, s56, 5")
    A("v_add_u32 v13, s56, v2")
    A("s_add_u32 s56, s43, 48")
    A("s_min_u32 s33, s54, 7")
    A("s_lshl_b32 s33, s33, 2")
    A("s_add_u32 s33, s33, 20")
    A("s_and_b32 s33, s33, 0xfffffff8")
    A("s_add_u32 s23, s33, s43")
    if cfg.get("pw", 4):
        A("s_bfe_u32 s58, s2, 0x20003")
        A("s_add_u32 s58, s58, s30")
        A(f"s_and_b32 s58, s58, {cfg.get('pw', 4) - 1}")
        A("s_lshl_b32 s58, s58, 1")
        A("s_and_b32 s22, s58, 2")
    ST()

    def reads(n, k2, par):
        L = []
        F0 = 72*par + 36*k2
        split = n is not None and n < 12 and n % 3 == 1
        order = [("A", 0), ("B", 0), ("B", 1), ("B", 2), ("B", 3), ("A", 1), ("A", 2), ("A", 3), ("A", 4)]
        for kind, i in order:
            if kind == "B" and split:
                L.append(f"ds_read2_b64 {ar(F0+4*i, 4)}, v{RB+5+i} offset0:{128*k2} offset1:{128*k2+64}")
            elif kind == "B":
                L.append(f"ds_read_b128 {ar(F0+4*i, 4)}, v{RB+i} offset:{1024*k2}")
            else:
                L.append(f"ds_read_b128 {ar(F0+16+4*i, 4)}, v{RB+4} offset:{10240*k2+1024*i}")
        return L

    def group(par, acc0, gaps, zero=False):
        for g in range(40):
            n, ki = divmod(g, 2)
            t, c = divmod(n, 5)
            if t % 2:
                c = 4 - c
            t = 3 - t
            k2 = ki if n % 2 == 0 else 1 - ki
            acc = vr(acc0 + 20*t + 4*c, 4)
            A(mfma(acc, ar(72*par+36*k2+16+4*c, 4), ar(72*par+36*k2+4*t, 4), "0" if zero and ki == 0 else acc))
            for e in gaps[g]:
                if callable(e):
                    e()
                elif isinstance(e, tuple):
                    A(e[0])
                    VM.issue(e[1])
                else:
                    A(e)

    RP = [0, 1, 3, 4, 5, 7, 8, 9, 11]

    def place(gaps, L, pos):
        pos = list(pos)
        pend = []
        for e in L:
            if e[0] != "d":
                pend.append(e[1])
                continue
            g = pos.pop(0)
            for k, s_ in enumerate(pend):
                gaps[max(0, g - 1 - (len(pend) - 1 - k) // 2)].append(s_)
            pend = []
            gaps[g].insert(0, (e[1], e[2]))
        assert not pend

    def spread(n, lo=2, hi=38):
        cand = [g for g in range(lo, hi + 1) if (g % 20) not in RP]
        assert n <= len(cand), (n, len(cand))
        return [cand[(k*len(cand))//n] for k in range(n)]

    def base_adv(gaps, m, wide):
        d = PSLOT if (m + 1) % 4 else -3*PSLOT
        regs = list(range(RB, RB+5)) + (list(range(RB+5, RB+9)) if wide else [])
        g = len(gaps) - 8
        for i, r in enumerate(regs):
            gaps[g + (i*7)//len(regs)].append(f"v_add_u32 v{r}, s{48 if d > 0 else 49}, v{r}")

    def set_flag(lane, tag):
        def fn():
            n_ = VM.need([tag])
            if n_ is not None:
                A(f"s_waitcnt vmcnt({n_})")
            A("v_mov_b32 v14, 1")
            A(f"s_mov_b64 exec, {1 << lane}")
            A("global_store_dword v1, v14, s[52:53] sc1")
            A("s_mov_b64 exec, -1")
            VM.issue("flag")
        return fn

    def check_flags(label, vaddr, flush=None):
        if flush is None:
            n_ = VM.need(["poll" + label])
            if n_ is not None:
                A(f"s_waitcnt vmcnt({n_})")
        A("v_cmp_ne_u32 vcc, 0, v15")
        A("s_cmp_eq_u64 vcc, exec")
        A(f"s_cbranch_scc1 {label}_OK")
        if flush is not None:
            for e in flush:
                A(e[1])
            A("s_mov_b32 s26, 0")
            A("v_mov_b32 v14, 1")
            A("s_waitcnt vmcnt(0)")
            A("s_mov_b64 exec, 1")
            A("global_store_dword v1, v14, s[52:53] sc1")
        poll(A, label, vaddr, 15, "s[52:53]", "-1", "0")

    def sbody(m, ops, extra=None):
        gaps = [[] for _ in range(40)]
        for k, s_ in enumerate(reads(2*m+2, 0, (m+1) & 1)):
            gaps[RP[k]].append(s_)
        for k, s_ in enumerate(reads(2*m+3, 1, (m+1) & 1)):
            gaps[20+RP[k]].append(s_)
        nd = sum(e[0] == "d" for e in ops)
        place(gaps, ops, spread(nd) if nd else [])
        if m < 26:
            base_adv(gaps, m + 1, m + 1 < 5)
        elif m < 28:
            gaps[30] += [f"s_add_u32 s35, s35, {PSLOT}", f"s_cmp_eq_u32 s35, {4*PSLOT}", "s_cselect_b32 s50, s49, s48", "s_cselect_b32 s35, 0, s35"]
            for i, g_ in enumerate((32, 33, 35, 36, 37)):
                gaps[g_].append(f"v_add_u32 v{RB+i}, s50, v{RB+i}")
        for g, e in (extra or []):
            gaps[g].append(e)
        n_ = VM.need([f"G{m+1}"])
        A("s_waitcnt lgkmcnt(0)" + (f" vmcnt({n_})" if n_ is not None else ""))
        A("s_barrier")
        group(m & 1, FA if m < 6 else SA, gaps, zero=m in (0, 6))
        if m < 12:
            ST(2)

    def full(m):
        return tagd(p_at(m) + p_fill_b(m < 6) + p_fill_a(), f"G{m}")

    def only_a(m):
        return tagd(p_at(m) + p_fill_a(), f"G{m}")

    def only_b(m):
        return tagd(p_at(m) + p_fill_b(m < 6), f"G{m}")

    def mix(*lists):
        pos = []
        for gi, L in enumerate(lists):
            g, cur = [], []
            for e in L:
                cur.append(e)
                if e[0] == "d":
                    g.append(cur)
                    cur = []
            for k, e in enumerate(g):
                pos.append(((k + 0.5) / len(g), gi, e))
        pos.sort(key=lambda x: (x[0], x[1]))
        return [e for _, _, grp in pos for e in grp]

    ST(2)
    n_ = VM.need(["G0"])
    A(f"s_waitcnt vmcnt({n_})")
    A("s_barrier")
    for s_ in reads(0, 0, 0) + reads(1, 1, 0):
        A(s_)
    for e in only_a(3):
        A(e[1])
        if e[0] == "d":
            VM.issue(e[2])
        elif "m0" in e[1]:
            A("s_nop 0")
    for r in range(RB, RB+9):
        A(f"v_add_u32 v{r}, s48, v{r}")
    pl = cfg.get("pl", 2)
    pend_b = []
    for m in range(6):
        ops = only_b(3) if m == 0 else []
        if m + 4 < 6 or m > pl:
            ops += pend_b + full(m + 4)
            pend_b = []
        else:
            ops += only_a(m + 4)
            pend_b += only_b(m + 4)
        ex_ = []
        if m == 0:
            ex_.append((cfg.get("flat", 19), set_flag(0, "O")))
        if m == pl:
            ex_.append((cfg.get("pollat", 20), ("global_load_dword v15, v2, s[52:53] sc1", "pollK2_PO")))
        sbody(m, ops, extra=ex_)
        if m == pl:
            ST()
            check_flags("K2_PO", 2)
            ST()
    assert not pend_b
    cv = []
    for t in (3, 2, 1):
        for q in range(10):
            cv.append(f"v_cvt_pk_bf16_f32 v{TM+10*(t-1)+q}, v{FA+20*t+2*q}, v{FA+20*t+2*q+1}")
    fs = [send(TM+10*(t-1), t, 1, "F") for t in (3, 2, 1)]
    sbody(6, full(10) + fs[0], extra=[(k, c_) for k, c_ in enumerate(cv)])
    sbody(7, mix(full(11), fs[1]))
    sbody(8, mix(full(12), fs[2]))
    sbody(9, full(13))
    sbody(10, full(14), extra=[(0, ("global_load_dword v15, v13, s[52:53] sc1", "pollK2_PD"))])
    sbody(11, full(15), extra=[(0, set_flag(1, "F"))])
    A(f"s_waitcnt vmcnt({VM.need(['pollK2_PD'])})")
    A("v_cmp_ne_u32 vcc, 0, v15")
    A("s_sub_u32 s59, s54, 7")
    A("s_max_i32 s59, s59, 0")
    A("s_cmp_eq_u64 vcc, exec")
    A("s_cselect_b32 s59, 0, s59")
    A("s_sub_u32 s54, s54, s59")
    ST()
    assert VM.q[-19:] == ["G14"]*9 + ["flag"] + ["G15"]*9, VM.q[-30:]
    A(f"s_add_u32 s36, s43, {2*(16-6)}")
    if cfg.get("pw", 4):
        A("s_mov_b32 s51, s36")
        A("s_xor_b32 s36, s36, s58")
    A(f"s_mov_b32 s39, {(16 % 4)*PSLOT}")
    A(f"s_mov_b32 s35, {(13 % 4)*PSLOT}")
    DP = [2, 6, 10, 14, 18, 22, 26, 30, 34]
    A.label("K2_LOOP")
    for par in range(2):
        gaps = [[] for _ in range(40)]
        for k, s_ in enumerate(reads(None, 0, par ^ 1)):
            gaps[RP[k]].append(s_)
        for k, s_ in enumerate(reads(None, 1, par ^ 1)):
            gaps[20+RP[k]].append(s_)
        g, nd = 0, 0
        for e in p_fill_b(False) + p_fill_a():
            if e[0] == "d":
                g = DP[nd]
                nd += 1
                gaps[g].append(e[1])
            else:
                gaps[g] += list(e[1:])
                g += 1
        gaps[16] += ["s_add_u32 s51, s51, 2", f"s_add_u32 s39, s39, {PSLOT}"]
        if par:
            gaps[18] += ["s_cmp_eq_u32 s51, s23", "s_cselect_b32 s58, s22, s58"]
            gaps[22] += ["s_cmp_eq_u32 s51, s56", "s_cselect_b32 s51, s57, s51"]
        gaps[24] += ["s_xor_b32 s36, s51, s58"]
        gaps[17] += [f"s_cmp_eq_u32 s39, {4*PSLOT}", "s_cselect_b32 s39, 0, s39"]
        gaps[12] += [f"s_add_u32 s35, s35, {PSLOT}"]
        gaps[13] += [f"s_cmp_eq_u32 s35, {4*PSLOT}", "s_cselect_b32 s50, s49, s48"]
        gaps[19] += [f"s_cmp_eq_u32 s35, {4*PSLOT}", "s_cselect_b32 s35, 0, s35"]
        for i, g_ in enumerate((32, 33, 35, 36, 37)):
            gaps[g_].append(f"v_add_u32 v{RB+i}, s50, v{RB+i}")
        if par:
            gaps[12] += ["s_sub_u32 s54, s54, 1"]
            gaps[38] += ["s_cmp_lg_u32 s54, 0"]
        A("s_waitcnt vmcnt(18) lgkmcnt(0)")
        A("s_barrier")
        group(par, SA, gaps)
    A("s_cbranch_scc1 K2_LOOP")
    A("s_cmp_eq_u32 s59, 0")
    A("s_cbranch_scc1 K2_LOOP_END")
    poll(A, "K2_PD", 13, 15, "s[52:53]", "-1", "0")
    A("s_mov_b32 s54, s59")
    A("s_mov_b32 s59, 0")
    A("s_branch K2_LOOP")
    A.label("K2_LOOP_END")
    ST()
    VM.q, VM.done = ["G27"]*9 + ["G28"]*9 + ["G29"]*9, 0
    RF, RS, T, XR, XF_ = 52, 82, 192, 222, 232
    FS = FA

    def recv(P, off, tag):
        return [("s", f"s_add_u32 s34, s44, {off}"),
                ("d", f"buffer_load_dwordx4 {vr(P, 4)}, v{L16}, s[4:7], s34 offen sc1", tag),
                ("d", f"buffer_load_dwordx4 {vr(P+4, 4)}, v{L16}, s[4:7], s34 offen offset:1024 sc1", tag),
                ("d", f"buffer_load_dwordx2 {vr(P+8, 2)}, v{L8}, s[4:7], s34 offen offset:2048 sc1", tag)]
    B = Asm()
    B("s_lshr_b32 s33, s2, 3")
    B("s_and_b32 s34, s2, 1")
    B("s_lshl_b32 s34, s34, 5")
    B("s_add_u32 s33, s33, s34")
    B("s_lshl_b32 s33, s33, 2")
    B("s_add_u32 s33, s33, s28")
    B("s_lshl_b32 s33, s33, 4")
    B(f"s_add_u32 s33, s33, {FLG_OFF + 0x1000}")
    B("v_and_b32 v2, 3, v0")
    B("v_lshl_add_u32 v2, v2, 2, s33")
    srd(B, 20, 60, size=2621440)
    srd(B, 16, 62, size=2621440)
    ex_ = [(k, l.strip()) for k, l in enumerate(B.L)]
    ex_.insert(10, (10, ("global_load_dword v15, v2, s[52:53] sc1", "pollK2_PF")))
    for c in range(5):
        ex_.append((22 + 3*c, (f"buffer_load_dwordx2 v[{XR+2*c}:{XR+2*c+1}], v3, s[20:23], 0 offen offset:{32*c}", "x")))
    sbody(26, [], extra=ex_)
    if cfg.get("fe", 1):
        check_flags("K2_PF", 2)
        sbody(27, sum((recv(RF+10*d, 7680+2560*d, f"RF{d}") for d in range(3)), []))
        rs_ = sum((recv(RS+10*d, 2560*d, "RS") for d in range(3)), [])
    else:
        sbody(27, [])
        check_flags("K2_PF", 2)
        rs_ = sum((recv(RF+10*d, 7680+2560*d, f"RF{d}") for d in range(3)), []) + sum((recv(RS+10*d, 2560*d, "RS") for d in range(3)), [])
    rsp = cfg.get("rsp", 0)
    sbody(28, rs_ if rsp == 1 else [])
    gaps = [[] for _ in range(40)]
    tail_ = []
    for i, t in enumerate((3, 2, 1)):
        P = SA + 20*t
        for q in range(10):
            gaps[14 + 10*i + q // 2].append(f"v_cvt_pk_bf16_f32 v{P+q}, v{P+2*q}, v{P+2*q+1}")
        sd = send(P, t, 0, "S")
        if i < 2:
            gaps[19 + 10*i].append(sd[0][1])
            for k in range(3):
                gaps[20 + 10*i + k].insert(0, (sd[1+k][1], "S"))
        else:
            tail_ = sd
    nsh = 0
    if cfg.get("fe", 1):
        def wait_rf0():
            A(f"s_waitcnt vmcnt({VM.need(['RF0'])})")
        gaps[0].append(wait_rf0)
        for q in range(10):
            gaps[1 + q] += [f"v_lshlrev_b32 v{T+2*q}, 16, v{RF+q}", f"v_and_b32 v{T+2*q+1}, 0xffff0000, v{RF+q}"]
        nsh = 1
    A("s_waitcnt lgkmcnt(0)")
    group(1, SA, gaps)
    for e in tail_:
        A(e[1])
        if e[0] == "d":
            VM.issue(e[2])
    ST()
    if rsp == 2:
        for e in rs_:
            A(e[1])
            if e[0] == "d":
                VM.issue(e[2])
    for d in range(3):
        if d >= nsh:
            A(f"s_waitcnt vmcnt({VM.need([f'RF{d}'])})")
            for q in range(10):
                A(f"v_lshlrev_b32 v{T+2*q}, 16, v{RF+10*d+q}")
                A(f"v_and_b32 v{T+2*q+1}, 0xffff0000, v{RF+10*d+q}")
        for q in range(10):
            A(f"v_pk_add_f32 {vr(FS+2*q, 2)}, {vr(FS+2*q, 2)}, {vr(T+2*q, 2)}")
    A(f"s_mov_b32 s33, {hex(f2u(-LOG2E))}")
    for q in range(10):
        A(f"v_cvt_pk_bf16_f32 v{T+q}, v{FS+2*q}, v{FS+2*q+1}")
    for q in range(10):
        A(f"v_lshlrev_b32 v{FS+2*q}, 16, v{T+q}")
        A(f"v_and_b32 v{FS+2*q+1}, 0xffff0000, v{T+q}")
    for q in range(20):
        A(f"v_mul_f32 v{T+q}, s33, v{FS+q}")
    for q in range(20):
        A(f"v_exp_f32 v{T+q}, v{T+q}")
    for q in range(20):
        A(f"v_add_f32 v{T+q}, 1.0, v{T+q}")
    for q in range(20):
        A(f"v_rcp_f32 v{T+q}, v{T+q}")
    for q in range(10):
        A(f"v_pk_mul_f32 {vr(FS+2*q, 2)}, {vr(FS+2*q, 2)}, {vr(T+2*q, 2)}")
    for q in range(10):
        A(f"v_cvt_pk_bf16_f32 v{T+q}, v{FS+2*q}, v{FS+2*q+1}")
    for q in range(10):
        A(f"v_lshlrev_b32 v{FS+2*q}, 16, v{T+q}")
        A(f"v_and_b32 v{FS+2*q+1}, 0xffff0000, v{T+q}")
        A(f"v_lshlrev_b32 v{XF_+2*q}, 16, v{XR+q}")
        A(f"v_and_b32 v{XF_+2*q+1}, 0xffff0000, v{XR+q}")
    ST()
    A(f"s_mov_b32 s35, {SPIN_MAX if not cfg.get('sabl') else 1}")
    if rsp == 0:
        A("s_branch K2_PS_LOAD")
    else:
        A(f"s_waitcnt vmcnt({VM.need(['RS'])})")
    A.label("K2_PS")
    A(f"v_max3_u32 v12, v{RS}, v{RS+1}, v{RS+2}")
    A(f"v_max3_u32 v13, v{RS+3}, v{RS+4}, v{RS+5}")
    for q in range(6, 30, 4):
        A(f"v_max3_u32 v12, v12, v{RS+q}, v{RS+q+1}")
        A(f"v_max3_u32 v13, v13, v{RS+q+2}, v{RS+q+3}")
    A("v_max_u32 v12, v12, v13")
    A("v_cmp_eq_u32 vcc, -1, v12")
    A("s_cmp_eq_u64 vcc, 0")
    A("s_cbranch_scc1 K2_PS_OK")
    A("s_sub_u32 s35, s35, 1")
    A("s_cmp_eq_u32 s35, 0")
    A("s_cbranch_scc1 K2_PS_OK")
    A.label("K2_PS_LOAD")
    pm = cfg.get("pm", 0)
    if pm == 1:
        A(f"s_sleep {cfg.get('psl', 8)}")
    elif pm == 2:
        A("v_min_u32 v12, 2, v0")
        A("v_mul_u32_u24 v12, 2560, v12")
        A("v_add_u32 v12, 2556, v12")
        A.label("K2_PI")
        A("buffer_load_dword v13, v12, s[4:7], s44 offen sc1")
        A("s_waitcnt vmcnt(0)")
        A("v_cmp_eq_u32 vcc, -1, v13")
        A("s_cmp_eq_u64 vcc, 0")
        A("s_cbranch_scc1 K2_PI_OK")
        A(f"s_sleep {cfg.get('psl', 2)}")
        A("s_sub_u32 s35, s35, 1")
        A("s_cmp_gt_u32 s35, 1")
        A("s_cbranch_scc1 K2_PI")
        A.label("K2_PI_OK")
    for d in range(3):
        for e in recv(RS + 10*d, 2560*d, "RS"):
            A(e[1])
    A("s_waitcnt vmcnt(0)")
    A("s_branch K2_PS")
    A.label("K2_PS_OK")
    ST()
    for d in range(3):
        for q in range(10):
            A(f"v_lshlrev_b32 v{T+2*q}, 16, v{RS+10*d+q}")
            A(f"v_and_b32 v{T+2*q+1}, 0xffff0000, v{RS+10*d+q}")
        for q in range(10):
            A(f"v_pk_add_f32 {vr(SA+2*q, 2)}, {vr(SA+2*q, 2)}, {vr(T+2*q, 2)}")
    for q in range(10):
        A(f"v_cvt_pk_bf16_f32 v{T+q}, v{SA+2*q}, v{SA+2*q+1}")
    for q in range(10):
        A(f"v_lshlrev_b32 v{SA+2*q}, 16, v{T+q}")
        A(f"v_and_b32 v{SA+2*q+1}, 0xffff0000, v{T+q}")
    for q in range(10):
        A(f"v_pk_mul_f32 {vr(SA+2*q, 2)}, {vr(SA+2*q, 2)}, {vr(FS+2*q, 2)}")
    for q in range(10):
        A(f"v_cvt_pk_bf16_f32 v{T+q}, v{SA+2*q}, v{SA+2*q+1}")
    for q in range(10):
        A(f"v_lshlrev_b32 v{SA+2*q}, 16, v{T+q}")
        A(f"v_and_b32 v{SA+2*q+1}, 0xffff0000, v{T+q}")
    for q in range(10):
        A(f"v_pk_add_f32 {vr(SA+2*q, 2)}, {vr(SA+2*q, 2)}, {vr(XF_+2*q, 2)}")
    for q in range(10):
        A(f"v_cvt_pk_bf16_f32 v{XR+q}, v{SA+2*q}, v{SA+2*q+1}")
    for c in range(5):
        A(f"buffer_store_dwordx2 v[{XR+2*c}:{XR+2*c+1}], v3, s[16:19], 0 offen offset:{32*c}")
    ST()


HEADER = """; Kernarg layout for this problem (96 bytes, ptrs only, base s[0:1]):
;   offset  72: d_out     shape=(1, 2048, 640) dtype=bfloat16
;   offset  80: d_debug   256 bytes
"""


CFG = {}


def generate(cfg):
    CFG.clear()
    CFG.update(cfg)
    A = Asm()
    A.raw(HEADER.rstrip())
    A.raw(f"; @launch grid=(256,1,1) block=(256,1,1) lds={K1_LDS}")
    A.raw('.amdgcn_target "amdgcn-amd-amdhsa--gfx950"')
    gen_main(A, cfg)
    return A.text()


if __name__ == "__main__":
    for x in range(192):
        assert (x * 2731) >> 16 == x // 24 and (x * 10923) >> 16 == x // 6
    for x in range(320):
        assert (x * 3277) >> 16 == x // 20
    cfg = {}
    out = f"cdna_kernels/{NAME}.s"
    for a in sys.argv[1:]:
        if "=" in a:
            k, v = a.split("=")
            if k == "out":
                out = v
            else:
                cfg[k] = int(v)
    open(out, "w").write(generate(cfg))
    print("wrote", out)
```
